```python
import torch

def _softmax(x, axis=-1):
    return torch.softmax(x, dim=axis)
def _gelu(x):
    return torch.nn.functional.gelu(x, approximate="tanh")
def _silu(x):
    return torch.nn.functional.silu(x)
def _sigmoid(x):
    return torch.sigmoid(x)
def _layernorm(x, axis=-1, eps=1e-5):
    m = x.mean(dim=axis, keepdim=True)
    v = x.var(dim=axis, keepdim=True, unbiased=False)
    return (x - m) / torch.sqrt(v + eps)
def _scatter_add(tgt, idx, src, axis=0):
    return tgt.clone().index_add_(axis, idx, src)
def _segment_sum(src, seg, n):
    out = torch.zeros((n,) + src.shape[1:], dtype=src.dtype)
    return out.index_add_(0, seg, src)
def _pad(x, pw):
    flat = tuple(v for pair in reversed(pw) for v in pair)
    return torch.nn.functional.pad(x, flat)

kernel_name = 'sequential_preLN__gqa_block_cached__geglu_ffn__decode'

def setup_inputs():

    _w = (lambda a: (lambda t: t.to(torch.bfloat16) if t.is_floating_point() else t)(torch.as_tensor(a)))
    def _A_setup():
        B, Sq, D = 2, 1, 576
        Hq, Hkv, Sk, Dh = 32, 16, 8192, 128
        assert Hq % Hkv == 0, (Hq, Hkv)
        return {
            "x": _w((lambda *s: torch.randn(*s, dtype=torch.bfloat16) * 0.05)(B, Sq, D)),
            "k_cache": _w((lambda *s: torch.randn(*s, dtype=torch.bfloat16) * 3.2)(B, Hkv, Sk, Dh)),
            "v_cache": _w((lambda *s: torch.randn(*s, dtype=torch.bfloat16) * 0.4)(B, Hkv, Sk, Dh)),
            "wq": _w((lambda *s: torch.randn(*s, dtype=torch.bfloat16) * 3.2)(D, Hq * Dh) * (D ** -0.5)),
            "wo": _w((lambda *s: torch.randn(*s, dtype=torch.bfloat16) * 0.4)(Hq * Dh, D) * ((Hq * Dh) ** -0.5)),
        }
    _A_in = _A_setup()

    def _B_setup():
        B, S, D, F = 2, 1, 576, 4608
        return {
            "x": _w((lambda *s: torch.randn(*s, dtype=torch.bfloat16) * 0.05)(B, S, D)),
            "w_gate": _w((lambda *s: torch.randn(*s, dtype=torch.bfloat16) * 0.05)(D, F)),
            "w_up": _w((lambda *s: torch.randn(*s, dtype=torch.bfloat16) * 0.05)(D, F)),
            "w_down": _w((lambda *s: torch.randn(*s, dtype=torch.bfloat16) * 0.05)(F, D)),
        }
    _B_in = _B_setup()

    return {
        "A_x": _A_in["x"],
        "A_k_cache": _A_in["k_cache"],
        "A_v_cache": _A_in["v_cache"],
        "A_wq": _A_in["wq"],
        "A_wo": _A_in["wo"],
        "B_x": _B_in["x"],
        "B_w_gate": _B_in["w_gate"],
        "B_w_up": _B_in["w_up"],
        "B_w_down": _B_in["w_down"],
    }

def reference(A_x, A_k_cache, A_v_cache, A_wq, A_wo, B_x, B_w_gate, B_w_up, B_w_down):
    def _A_ref(x, k_cache, v_cache, wq, wo):
        B, Sq, D = x.shape
        Hq, Dh = 32, 128
        Hkv = k_cache.shape[1]
        rep = Hq // Hkv
        q = (lambda x, *d: x.permute(*d))((x @ wq).reshape(B, Sq, Hq, Dh), 0, 2, 1, 3)
        k = (lambda x, n, axis: torch.repeat_interleave(x, n, dim=axis))(k_cache, rep, axis=1)
        v = (lambda x, n, axis: torch.repeat_interleave(x, n, dim=axis))(v_cache, rep, axis=1)
        scores = torch.einsum("bhqd,bhkd->bhqk", q, k) * (Dh ** -0.5)
        p = _softmax(scores, axis=-1)
        o = torch.einsum("bhqk,bhkd->bhqd", p, v)
        return (lambda x, *d: x.permute(*d))(o, 0, 2, 1, 3).reshape(B, Sq, Hq * Dh) @ wo

    def _B_ref(x, w_gate, w_up, w_down):
        return (_gelu(x @ w_gate) * (x @ w_up)) @ w_down

    x = A_x
    h = x + _A_ref(_layernorm(x, axis=-1), A_k_cache, A_v_cache, A_wq, A_wo)
    h2 = h + _B_ref(_layernorm(h, axis=-1), B_w_gate, B_w_up, B_w_down)
    return h2
```

```python
NAME = "sequential_preLN__gqa_block_cached__geglu_ffn__decode"
HDR = open("cdna_kernels/%s.s.ref" % NAME).read().split("; Override launch")[0]
class Asm:
    def __init__(self):
        self.L = []
        self.nlab = 0
    def __call__(self, s):
        for line in s.strip("\n").split("\n"):
            self.L.append("    " + line.strip() if not line.strip().endswith(":") else line.strip())
    def label(self, base="L"):
        self.nlab += 1
        return "%s_%d" % (base, self.nlab)
    def text(self):
        return "\n".join(self.L) + "\n"
def wrap(body, grid, block, lds, vgpr, sgpr, accum=None, kname=None):
    kname = kname or NAME + "_kernel"
    if accum is None:
        accum = (vgpr + 3) // 4 * 4
    s = HDR + "; @launch grid=(%d,1,1) block=(%d,1,1) lds=%d\n" % (grid, block, lds)
    s += '.amdgcn_target "amdgcn-amd-amdhsa--gfx950"\n.text\n.globl %s\n.p2align 8\n.type %s,@function\n%s:\n' % (kname, kname, kname)
    s += body
    s += '''.section .rodata,"a"
.p2align 6
.amdhsa_kernel %s
  .amdhsa_next_free_vgpr %d
  .amdhsa_next_free_sgpr %d
  .amdhsa_accum_offset %d
  .amdhsa_group_segment_fixed_size 0
  .amdhsa_kernarg_size 96
  .amdhsa_user_sgpr_count 2
  .amdhsa_user_sgpr_kernarg_segment_ptr 1
  .amdhsa_system_sgpr_workgroup_id_x 1
.end_amdhsa_kernel
''' % (kname, vgpr, sgpr, accum)
    return s
```

```python
import sys, struct, math
from asmlib import *

def f32(x):
    return struct.unpack("<I", struct.pack("<f", x))[0]

WS_EPOCH = 0x0
WS_MQ = 0x1000
SB = 0x10000
WS_M1 = SB + 0x0
WS_ML = SB + 0x40000
WS_M2 = SB + 0x42000
WS_M3 = SB + 0x8A000
WS_M4 = SB + 0x8C000
RESET_PER_WG = 5120
WS_STAMP = 0x8000000
NSTAMP = 16
L_Q = 0x0
L_XN = 0x200
L_ACT = 0xB00
L_PML = 0xB80
L_PACC = 0xC00
L_WQ = 0x2000
L_WB = 0x6800
LDS_BYTES = L_WB + 110592
N_FFN, N_OP, N_RED = 144, 64, 36
OP0 = N_FFN
RED0 = N_FFN + N_OP
SPIN = 400000
LOG2E = 1.4426950408889634
EPOCH_INC = 0x9E3779B9


class Gen:
    def __init__(self, diag=False, nback=4, win=8, opts=None):
        self.a = Asm()
        self.diag = diag
        self.nback = nback
        self.win = win
        self.o = opts or {}

    def stamp(self, k):
        if self.diag:
            self.a("s_memrealtime s[%d:%d]" % (64 + 2 * k, 65 + 2 * k))

    def flush_stamps(self, ks):
        if not self.diag:
            return
        a = self.a
        a("s_waitcnt lgkmcnt(0)")
        a("s_mov_b64 exec, 1")
        a("s_mul_i32 s62, s2, %d\ns_add_u32 s62, s62, 0x%x" % (NSTAMP * 8, WS_STAMP))
        a("v_mov_b32 v252, 0")
        for k in ks:
            a("v_mov_b32 v250, s%d\nv_mov_b32 v251, s%d" % (64 + 2 * k, 65 + 2 * k))
            a("buffer_store_dwordx2 v[250:251], v252, s[28:31], s62 offen offset:%d" % (8 * k))
            a("s_nop 1")

    def srd(self, d, lo, size, add=None):
        a = self.a
        if add is None:
            a("s_mov_b32 s%d, s%d\ns_mov_b32 s%d, s%d" % (d, lo, d + 1, lo + 1))
        else:
            a("s_add_u32 s%d, s%d, %s\ns_addc_u32 s%d, s%d, 0" % (d, lo, add, d + 1, lo + 1))
        a("s_mov_b32 s%d, 0x%x\ns_mov_b32 s%d, 0x20000" % (d + 2, size, d + 3))

    def xrow(self, op, x, t, halves=True, rows=True):
        a = self.a
        if rows:
            a("v_mov_b32 v%d, v%d\ns_nop 1\nv_permlane16_swap_b32 v%d, v%d\ns_nop 0\n%s v%d, v%d, v%d" % (t, x, x, t, op, x, x, t))
        if halves:
            a("v_mov_b32 v%d, v%d\ns_nop 1\nv_permlane32_swap_b32 v%d, v%d\ns_nop 0\n%s v%d, v%d, v%d" % (t, x, x, t, op, x, x, t))

    def dpp(self, op, d, s0, s1, ctrl, bank=0xf):
        self.a("%s_dpp v%d, v%d, v%d %s row_mask:0xf bank_mask:0x%x" % (op, d, s0, s1, ctrl, bank))

    def row_reduce(self, op, regs):
        for ctrl in ("row_ror:8", "row_ror:4", "row_ror:2", "row_ror:1"):
            if len(regs) < 3:
                self.a("s_nop 1")
            for r in regs:
                self.dpp(op, r, r, r, ctrl)

    def oct_reduce(self, op, regs):
        for ctrl in ("row_half_mirror", "quad_perm:[1,0,3,2]", "quad_perm:[2,3,0,1]"):
            if len(regs) < 3:
                self.a("s_nop 1")
            for r in regs:
                self.dpp(op, r, r, r, ctrl)

    def layernorm(self, X, T, ldsaddr):
        a = self.a
        s, t, m, r = T, T + 1, T + 2, T + 3
        D = T + 4
        a("v_add_f32 v%d, v%d, v%d" % (s, X, X + 1))
        a("v_add_f32 v%d, v%d, v%d" % (t, X + 2, X + 3))
        for i in range(4, 18, 2):
            a("v_add_f32 v%d, v%d, v%d\nv_add_f32 v%d, v%d, v%d" % (s, s, X + i, t, t, X + i + 1))
        a("v_add_f32 v%d, v%d, v%d" % (s, s, t))
        self.row_reduce("v_add_f32", [s])
        self.xrow("v_add_f32", s, t, halves=False)
        a("v_mul_f32 v%d, 0x%x, v%d" % (m, f32(1.0 / 576), s))
        for i in range(18):
            a("v_sub_f32 v%d, v%d, v%d" % (D + i, X + i, m))
        a("v_mul_f32 v%d, v%d, v%d\nv_mul_f32 v%d, v%d, v%d" % (s, D, D, t, D + 1, D + 1))
        for i in range(2, 18, 2):
            a("v_fmac_f32 v%d, v%d, v%d\nv_fmac_f32 v%d, v%d, v%d" % (s, D + i, D + i, t, D + i + 1, D + i + 1))
        a("v_add_f32 v%d, v%d, v%d" % (s, s, t))
        self.row_reduce("v_add_f32", [s])
        self.xrow("v_add_f32", s, t, halves=False)
        a("v_mul_f32 v%d, 0x%x, v%d" % (s, f32(1.0 / 576), s))
        a("v_cvt_pk_bf16_f32 v%d, v%d, v%d" % (t, m, s))
        a("s_mov_b32 s40, 0xffff0000")
        a("v_lshlrev_b32 v%d, 16, v%d\nv_and_b32 v%d, s40, v%d" % (m, t, s, t))
        a("v_add_f32 v%d, 0x%x, v%d" % (s, f32(1e-5), s))
        a("v_cvt_pk_bf16_f32 v%d, v%d, v%d" % (s, s, s))
        a("v_and_b32 v%d, s40, v%d" % (s, s))
        a("v_sqrt_f32 v%d, v%d\ns_nop 0" % (s, s))
        a("v_cvt_pk_bf16_f32 v%d, v%d, v%d" % (s, s, s))
        a("v_and_b32 v%d, s40, v%d" % (s, s))
        a("v_rcp_f32 v%d, v%d" % (r, s))
        for i in range(18):
            a("v_sub_f32 v%d, v%d, v%d" % (D + i, X + i, m))
        for j in range(9):
            a("v_cvt_pk_bf16_f32 v%d, v%d, v%d" % (D + 2 * j + 1, D + 2 * j, D + 2 * j + 1))
        for j in range(9):
            a("v_lshlrev_b32 v%d, 16, v%d\nv_and_b32 v%d, s40, v%d" % (D + 2 * j, D + 2 * j + 1, D + 2 * j + 1, D + 2 * j + 1))
        for i in range(18):
            a("v_mul_f32 v%d, v%d, v%d" % (D + i, D + i, r))
        for j in range(9):
            a("v_cvt_pk_bf16_f32 v%d, v%d, v%d" % (D + 2 * j, D + 2 * j, D + 2 * j + 1))
        for j in range(9):
            a("ds_write_b32 v%d, v%d offset:%d" % (ldsaddr, D + 2 * j, j * 128))

    def poll_begin(self, name):
        self.a("s_mov_b32 s60, 0\n%s:" % name)

    def poll_end(self, name, regs, t):
        a = self.a
        a("s_waitcnt vmcnt(0)")
        regs = list(regs)
        first = True
        while regs:
            if first:
                if len(regs) >= 3:
                    a("v_max3_u32 v%d, v%d, v%d, v%d" % (t, regs[0], regs[1], regs[2])); regs = regs[3:]
                else:
                    a("v_max_u32 v%d, v%d, v%d" % (t, regs[0], regs[-1])); regs = regs[2:]
                first = False
            elif len(regs) >= 2:
                a("v_max3_u32 v%d, v%d, v%d, v%d" % (t, t, regs[0], regs[1])); regs = regs[2:]
            else:
                a("v_max_u32 v%d, v%d, v%d" % (t, t, regs[0])); regs = []
        a("v_cmp_eq_u32 vcc, -1, v%d" % t)
        a("s_add_u32 s60, s60, 1\ns_cmp_gt_u32 s60, %d\ns_cbranch_scc1 %s_x" % (SPIN, name))
        a("s_cbranch_vccnz %s\n%s_x:" % (name, name))

    def ticket(self, KR, VR, ring):
        a = self.a
        QA, QB, SA, SBR, T0, T1, MT, M, ML, LS, ACC, AF, MK = 10, 14, 18, 22, 26, 27, 28, 29, 30, 31, 32, 36, 5
        W = self.win
        for j in range(4):
            if ring:
                a("s_waitcnt vmcnt(%d)" % (W - 1))
            k = KR + 4 * j
            for e in range(4):
                a("v_dot2_f32_bf16 v%d, v%d, v%d, %s" % (SA + j, k + e, QA + e, "0" if e == 0 else "v%d" % (SA + j)))
                a("v_dot2_f32_bf16 v%d, v%d, v%d, %s" % (SBR + j, k + e, QB + e, "0" if e == 0 else "v%d" % (SBR + j)))
            if ring:
                a("buffer_load_dwordx4 v[%d:%d], v%d, s[36:39], s45 offen nt" % (k, k + 3, 1 + j))
        for j in range(4):
            self.dpp("v_add_f32", SA + j, SA + j, SA + j, "row_ror:8", 0x3)
        for j in range(4):
            self.dpp("v_add_f32", SA + j, SBR + j, SBR + j, "row_ror:8", 0xc)
        self.oct_reduce("v_add_f32", [SA + j for j in range(4)])
        for rnd in range(2):
            a("v_cvt_pk_bf16_f32 v%d, v%d, v%d\nv_cvt_pk_bf16_f32 v%d, v%d, v%d" % (T0, SA, SA + 1, T1, SA + 2, SA + 3))
            a("v_lshlrev_b32 v%d, 16, v%d\nv_and_b32 v%d, s46, v%d" % (SA, T0, SA + 1, T0))
            a("v_lshlrev_b32 v%d, 16, v%d\nv_and_b32 v%d, s46, v%d" % (SA + 2, T1, SA + 3, T1))
            if rnd == 0:
                for j in range(4):
                    a("v_mul_f32 v%d, s47, v%d" % (SA + j, SA + j))
        a("v_max3_f32 v%d, v%d, v%d, v%d\nv_max_f32 v%d, v%d, v%d" % (MT, SA, SA + 1, SA + 2, MT, MT, SA + 3))
        a("v_cmp_gt_f32 vcc, v%d, v%d" % (MT, M))
        lab = a.label("L_nors")
        a("s_cbranch_vccz %s\ns_call_b64 s[50:51], L_rescale\n%s:" % (lab, lab))
        for j in range(4):
            a("v_fma_f32 v%d, v%d, s48, -v%d" % (SA + j, SA + j, ML))
        for j in range(4):
            a("v_exp_f32 v%d, v%d" % (SA + j, SA + j))
        a("s_nop 0")
        for j in range(4):
            a("v_cvt_pk_bf16_f32 v%d, v%d, v%d" % (SBR + j, SA + j, SA + j))
        a("v_add_f32 v%d, v%d, v%d\nv_add_f32 v%d, v%d, v%d" % (T0, SA, SA + 1, T1, SA + 2, SA + 3))
        for j in range(4):
            for e in range(4):
                a("v_and_b32 v%d, v%d, v%d" % (AF + 4 * j + e, MK + e, SBR + j))
        a("v_add_f32 v%d, v%d, v%d\nv_add_f32 v%d, v%d, v%d" % (T0, T0, T1, LS, LS, T0))
        for j in range(4):
            if ring:
                a("s_waitcnt vmcnt(%d)" % (W - 1))
            v = VR + 4 * j
            a("v_mfma_f32_16x16x32_bf16 v[%d:%d], v[%d:%d], v[%d:%d], v[%d:%d]" % (ACC, ACC + 3, AF + 4 * j, AF + 4 * j + 3, v, v + 3, ACC, ACC + 3))
            if ring:
                a("buffer_load_dwordx4 v[%d:%d], v%d, s[40:43], s45 offen nt" % (v, v + 3, 1 + j))

    def streaming(self):
        a = self.a
        NB = self.nback
        RING, BACK = 52, 84
        a("L_stream:")
        a("s_sub_u32 s44, s3, 4\ns_lshl_b32 s45, s44, 10")
        a("v_lshlrev_b32 v1, 4, v0\nv_add_u32 v1, s45, v1")
        a("v_add_u32 v2, 0x1000, v1\nv_add_u32 v3, 0x2000, v1\nv_add_u32 v4, 0x3000, v1")
        a("s_lshr_b32 s46, s2, 3\ns_lshl_b32 s46, s46, 21")
        a("s_and_b32 s45, s2, 7\ns_lshl_b32 s45, s45, 18")
        a("s_waitcnt lgkmcnt(0)")
        self.srd(36, 6, 0x200000, "s46")
        self.srd(40, 8, 0x200000, "s46")
        n = 0
        for tk in range(NB + 1):
            base = BACK + 32 * tk if tk < NB else RING
            for kv in range(2):
                for j in range(4):
                    if n >= self.win:
                        a("s_waitcnt vmcnt(%d)" % (self.win - 1))
                    r = base + 16 * kv + 4 * j
                    a("buffer_load_dwordx4 v[%d:%d], v%d, s[%d:%d], s45 offen nt" % (r, r + 3, 1 + j, 36 + 4 * kv, 39 + 4 * kv))
                    n += 1
                    if n == self.win:
                        self.srd(28, 26, 0x10000000)
                        a("v_and_b32 v26, 1, v0\nv_lshlrev_b32 v26, 4, v26\nv_mov_b32 v27, 0xffff\nv_lshlrev_b32 v27, v26, v27")
                        a("v_bfe_u32 v26, v0, 1, 2")
                        for e in range(4):
                            a("v_cmp_eq_u32 vcc, %d, v26\ns_nop 1\nv_cndmask_b32 v%d, 0, v27, vcc" % (e, 5 + e))
                        a("v_mov_b32 v29, 0x%x\nv_mov_b32 v30, 0x%x\nv_mov_b32 v31, 0" % (f32(-1e38), f32(-1e38 * LOG2E)))
                        a("v_mov_b32 v32, 0\nv_mov_b32 v33, 0\nv_mov_b32 v34, 0\nv_mov_b32 v35, 0")
                        a("s_mov_b32 s46, 0xffff0000\ns_mov_b32 s47, 0x%x\ns_mov_b32 s48, 0x%x" % (f32(128 ** -0.5), f32(LOG2E)))
                        a("s_mov_b32 s52, 0\ns_mov_b32 s53, -1")
                        a("v_and_b32 v9, 15, v0\nv_lshlrev_b32 v9, 4, v9")
            a("s_add_u32 s45, s45, 0x4000")
        self.stamp(8)
        a("s_barrier")
        self.stamp(9)
        a("ds_read_b128 v[10:13], v9 offset:%d\nds_read_b128 v[14:17], v9 offset:%d" % (L_Q, L_Q + 256))
        a("s_mov_b32 s49, 0")
        a("s_waitcnt lgkmcnt(0)")
        NIT = 16 - NB
        a("L_sloop:")
        a("s_cmp_lt_u32 s49, %d\ns_cselect_b32 s38, s38, 0\ns_cselect_b32 s42, s42, 0" % (NIT - 1))
        self.ticket(RING, RING + 16, True)
        a("s_add_u32 s45, s45, 0x4000")
        for k in range(NB):
            a("s_cmp_eq_u32 s49, %d\ns_cbranch_scc1 L_back%d" % (k, k))
        a("L_scont:")
        a("s_add_u32 s49, s49, 1\ns_cmp_lt_u32 s49, %d\ns_cbranch_scc1 L_sloop" % NIT)
        self.xrow("v_add_f32", 31, 26)
        a("s_lshl_b32 s45, s44, 10")
        a("v_lshlrev_b32 v26, 4, v0\nv_add_u32 v26, s45, v26")
        a("s_nop 4")
        a("ds_write_b128 v26, v[32:35] offset:%d" % L_PACC)
        a("s_lshl_b32 s45, s44, 4")
        a("v_add_u32 v26, s45, v0")
        a("s_mov_b64 exec, 0x101")
        a("ds_write_b64 v26, v[30:31] offset:%d" % L_PML)
        a("s_waitcnt lgkmcnt(0)")
        self.stamp(10)
        a("s_barrier")
        if self.diag:
            a("s_cmp_lg_u32 s3, 4\ns_cbranch_scc1 L_end")
            self.flush_stamps([8, 9, 10])
        a("s_endpgm")
        for k in range(NB):
            a("L_back%d:" % k)
            self.ticket(BACK + 32 * k, BACK + 32 * k + 16, False)
            a("s_branch L_scont")
        a("L_rescale:")
        a("v_max_f32 v28, v28, v29")
        self.xrow("v_max_f32", 28, 26)
        a("v_mov_b32 v29, v28\nv_mul_f32 v27, s48, v28\nv_sub_f32 v26, v30, v27\nv_exp_f32 v26, v26\nv_mov_b32 v30, v27")
        a("v_mul_f32 v31, v31, v26")
        a("v_readlane_b32 s54, v26, 0\nv_readlane_b32 s55, v26, 8\ns_nop 1")
        a("v_mov_b32 v26, s54\nv_mov_b32 v27, s55\nv_cndmask_b32 v26, v26, v27, s[52:53]")
        for r in range(4):
            a("v_mul_f32 v%d, v%d, v26" % (32 + r, 32 + r))
        a("s_setpc_b64 s[50:51]")

    def service(self):
        a = self.a
        a("s_setprio 2")
        a("v_and_b32 v1, 15, v0\nv_lshrrev_b32 v2, 4, v0")
        a("s_cmp_lg_u32 s3, 0\ns_cbranch_scc1 L_svc_other")
        a("v_lshrrev_b32 v3, 5, v0\nv_mul_u32_u24 v3, 1152, v3\nv_and_b32 v4, 31, v0\nv_lshl_add_u32 v3, v4, 2, v3")
        a("v_lshrrev_b32 v4, 1, v0\nv_lshlrev_b32 v4, 13, v4\nv_and_b32 v5, 1, v0\nv_lshl_add_u32 v4, v5, 4, v4")
        a("v_mov_b32 v6, 0")
        a("s_and_b32 s44, s2, 7\ns_lshl_b32 s44, s44, 5\ns_lshr_b32 s45, s2, 3\ns_add_u32 s44, s44, s45")
        a("s_lshl_b32 s45, s44, 5")
        a("s_waitcnt lgkmcnt(0)")
        self.srd(36, 4, 2304)
        self.srd(28, 26, 0x10000000)
        self.srd(40, 10, 576 * 8192)
        self.srd(32, 24, 256)
        for j in range(9):
            a("buffer_load_dword v%d, v3, s[36:39], 0 offen offset:%d" % (16 + 2 * j + 1, j * 128))
        a("buffer_load_dword v7, v6, s[28:31], 0 offen offset:%d sc1" % WS_EPOCH)
        for i in range(18):
            a("s_mov_b32 m0, %d" % (L_WQ + i * 1024))
            a("s_nop 0")
            a("buffer_load_dwordx4 v4, s[40:43], s45 offen %slds" % self.o.get("wq_flags", ""))
            a("s_add_u32 s45, s45, %d" % (32 * 8192))
        a("s_mov_b32 s40, 0xffff0000")
        a("s_waitcnt vmcnt(18)")
        for j in range(9):
            a("v_lshlrev_b32 v%d, 16, v%d\nv_and_b32 v%d, s40, v%d" % (16 + 2 * j, 16 + 2 * j + 1, 16 + 2 * j + 1, 16 + 2 * j + 1))
        a("v_add_u32 v7, 0x%x, v7" % EPOCH_INC)
        a("v_add_u32 v8, %d, v3" % L_XN)
        self.layernorm(16, 40, 8)
        a("v_and_b32 v9, 1, v0\nv_mul_u32_u24 v9, 1152, v9\nv_lshl_add_u32 v9, v2, 4, v9")
        a("v_lshrrev_b32 v10, 2, v1\nv_lshl_add_u32 v10, v2, 3, v10\nv_lshlrev_b32 v10, 5, v10")
        a("v_and_b32 v11, 3, v0\nv_lshl_add_u32 v10, v11, 3, v10")
        a("s_waitcnt vmcnt(0) lgkmcnt(0)")
        FB, FA = 64, 136
        for ks in range(18):
            a("ds_read_b128 v[%d:%d], v9 offset:%d" % (FB + 4 * ks, FB + 4 * ks + 3, L_XN + ks * 64))
            a("ds_read_b64_tr_b16 v[%d:%d], v10 offset:%d" % (FA + 4 * ks, FA + 4 * ks + 1, L_WQ + ks * 1024))
            a("ds_read_b64_tr_b16 v[%d:%d], v10 offset:%d" % (FA + 4 * ks + 2, FA + 4 * ks + 3, L_WQ + ks * 1024 + 128))
            if ks % 3 == 2:
                a("s_waitcnt lgkmcnt(0)")
                for k2 in range(ks - 2, ks + 1):
                    a("v_mfma_f32_16x16x32_bf16 v[12:15], v[%d:%d], v[%d:%d], %s" % (FA + 4 * k2, FA + 4 * k2 + 3, FB + 4 * k2, FB + 4 * k2 + 3, "0" if k2 == 0 else "v[12:15]"))
        a("s_lshr_b32 s45, s44, 4\ns_lshl_b32 s45, s45, 11\ns_and_b32 s46, s44, 15\ns_lshl_b32 s46, s46, 6\ns_add_u32 s45, s45, s46\ns_add_u32 s45, s45, 0x%x" % WS_MQ)
        a("v_lshlrev_b32 v10, 10, v1\nv_lshl_add_u32 v10, v2, 4, v10")
        a("s_nop 4")
        a("v_cvt_pk_bf16_f32 v16, v12, v13\nv_mov_b32 v17, v7\nv_cvt_pk_bf16_f32 v18, v14, v15\nv_mov_b32 v19, v7")
        a("s_mov_b32 s46, 0x00030003\ns_mov_b32 s47, 0x00030003\ns_mov_b64 exec, s[46:47]")
        a("buffer_store_dwordx4 v[16:19], v10, s[28:31], s45 offen sc1")
        a("s_mov_b64 exec, -1")
        self.stamp(1)
        a("s_lshr_b32 s46, s2, 3\ns_and_b32 s47, s46, 15\ns_lshr_b32 s46, s46, 4\ns_lshl_b32 s47, s47, 1\ns_add_u32 s47, s47, s46\ns_lshl_b32 s47, s47, 10\ns_add_u32 s47, s47, 0x%x" % WS_MQ)
        a("v_lshlrev_b32 v10, 4, v0\nv_lshlrev_b32 v11, 3, v0")
        a("s_mov_b32 s60, 0\nL_qpoll:")
        a("buffer_load_dwordx4 v[20:23], v10, s[28:31], s47 offen sc1")
        a("s_waitcnt vmcnt(0)")
        a("v_xor_b32 v21, v21, v7\nv_xor_b32 v23, v23, v7\nv_or_b32 v21, v21, v23\nv_cmp_ne_u32 vcc, 0, v21")
        a("s_add_u32 s60, s60, 1\ns_cmp_gt_u32 s60, %d\ns_cbranch_scc1 L_qpoll_x\ns_cbranch_vccnz L_qpoll\nL_qpoll_x:" % SPIN)
        a("v_mov_b32 v21, v22")
        a("ds_write_b64 v11, v[20:21] offset:%d" % L_Q)
        a("v_readfirstlane_b32 s61, v7")
        a("s_waitcnt lgkmcnt(0)")
        self.stamp(2)
        a("s_branch L_svc_a")
        a("L_svc_other:")
        a("s_waitcnt lgkmcnt(0)")
        self.srd(28, 26, 0x10000000)
        self.srd(32, 24, 256)
        a("s_cmp_lg_u32 s3, 1\ns_cbranch_scc1 L_svc_a")
        a("v_mov_b32 v4, -1\nv_mov_b32 v5, -1\nv_mov_b32 v6, -1\nv_mov_b32 v7, -1\nv_lshlrev_b32 v8, 4, v0")
        a("s_mul_i32 s44, s2, %d\ns_add_u32 s44, s44, 0x%x" % (RESET_PER_WG, SB))
        for i in range(RESET_PER_WG // 1024):
            if i == 4:
                a("s_add_u32 s44, s44, 4096")
            a("buffer_store_dwordx4 v[4:7], v8, s[28:31], s44 offen offset:%d sc1" % ((i % 4) * 1024))
        a("v_mov_b32 v9, 1\nv_mov_b32 v10, 0")
        a("s_waitcnt vmcnt(0)")
        a("s_mov_b64 exec, 1")
        a("buffer_atomic_add v9, v10, s[32:35], 0 offen")
        a("s_mov_b64 exec, -1")
        a("L_svc_a:")
        a("s_barrier")
        a("s_cmp_lt_u32 s2, %d\ns_cbranch_scc1 L_prep_done" % OP0)
        a("s_cmp_ge_u32 s2, %d\ns_cbranch_scc1 L_prep_red" % RED0)
        self.srd(36, 12, 4096 * 1152)
        a("s_sub_u32 s44, s2, %d\ns_mul_i32 s45, s44, 73728\ns_mul_i32 s46, s3, 288\ns_add_u32 s45, s45, s46" % OP0)
        a("s_mul_i32 s46, s3, 18432\ns_add_u32 s46, s46, %d" % L_WB)
        a("v_mul_u32_u24 v4, 3641, v0\nv_lshrrev_b32 v4, 16, v4")
        a("v_mul_u32_u24 v5, 18, v4\nv_sub_u32 v5, v0, v5")
        a("v_mul_u32_u24 v4, 1152, v4\nv_lshl_add_u32 v4, v5, 4, v4")
        a("v_mov_b32 v7, 864")
        for n in range(18):
            if n >= 4:
                a("s_waitcnt vmcnt(3)")
            a("s_mov_b32 m0, s46\ns_add_u32 s46, s46, 1024")
            a("buffer_load_dwordx4 v4, s[36:39], s45 offen nt lds")
            if n < 17:
                a("v_add_u32 v5, 10, v5\nv_cmp_le_u32 vcc, 18, v5\nv_add_u32 v4, 3616, v4\nv_subrev_u32 v6, 18, v5")
                a("v_cndmask_b32 v5, v5, v6, vcc\nv_cndmask_b32 v6, 0, v7, vcc\nv_add_u32 v4, v4, v6")
        a("v_lshrrev_b32 v4, 2, v1\nv_lshl_add_u32 v4, v2, 3, v4\nv_mul_u32_u24 v4, 288, v4\nv_and_b32 v5, 3, v0\nv_lshl_add_u32 v4, v5, 3, v4")
        a("s_mul_i32 s46, s3, 18432\ns_add_u32 s46, s46, %d\nv_add_u32 v4, s46, v4" % L_WB)
        a("s_waitcnt vmcnt(0)")
        WF = 64
        for tt in range(9):
            for ks in range(2):
                for hh in range(2):
                    r = WF + tt * 8 + ks * 4 + hh * 2
                    a("ds_read_b64_tr_b16 v[%d:%d], v4 offset:%d" % (r, r + 1, (32 * ks + 4 * hh) * 288 + tt * 32))
            if tt % 3 == 2:
                a("s_waitcnt lgkmcnt(0)")
        a("s_branch L_prep_done")
        a("L_prep_red:")
        a("s_cmp_ge_u32 s2, %d\ns_cbranch_scc1 L_prep_done" % (RED0 + N_RED))
        self.srd(36, 4, 2304)
        a("s_sub_u32 s44, s2, %d\ns_lshl_b32 s45, s44, 5" % RED0)
        a("v_bfe_u32 v62, v0, 2, 1\nv_mul_u32_u24 v62, 1152, v62\nv_and_b32 v4, 3, v0\nv_lshl_add_u32 v62, v4, 3, v62\nv_add_u32 v62, s45, v62")
        a("buffer_load_dwordx2 v[60:61], v62, s[36:39], 0 offen")
        a("s_waitcnt vmcnt(0)")
        a("L_prep_done:")
        a("s_cmp_lg_u32 s3, 0\ns_cbranch_scc1 L_svc_b")
        a("v_mov_b32 v4, 0\ns_mov_b32 s60, 0\nL_rpoll:")
        a("buffer_load_dword v5, v4, s[32:35], 0 offen sc1\ns_waitcnt vmcnt(0)")
        a("v_cmp_gt_u32 vcc, 256, v5")
        a("s_add_u32 s60, s60, 1\ns_cmp_gt_u32 s60, %d\ns_cbranch_scc1 L_rpoll_x\ns_cbranch_vccz L_rpoll_x\ns_sleep 8\ns_branch L_rpoll\nL_rpoll_x:" % SPIN)
        a("s_lshr_b32 s44, s2, 3\ns_and_b32 s45, s44, 15\ns_lshr_b32 s44, s44, 4\ns_lshl_b32 s44, s44, 3\ns_and_b32 s46, s2, 7\ns_add_u32 s44, s44, s46")
        a("v_lshrrev_b32 v6, 5, v0\nv_lshlrev_b32 v6, 1, v6\nv_bfe_u32 v7, v0, 3, 1\nv_add_u32 v6, v6, v7\ns_lshl_b32 s45, s45, 2\nv_add_u32 v6, s45, v6")
        a("v_and_b32 v7, 7, v0\nv_lshlrev_b32 v7, 5, v7\nv_bfe_u32 v8, v0, 4, 1\nv_lshl_add_u32 v7, v8, 4, v7")
        a("v_lshl_add_u32 v8, v6, 12, v7\nv_lshlrev_b32 v9, 7, v6")
        a("s_lshl_b32 s46, s44, 8\ns_add_u32 s46, s46, 0x%x\ns_lshl_b32 s47, s44, 3\ns_add_u32 s47, s47, 0x%x" % (WS_M1, WS_ML))
        a("v_lshlrev_b32 v10, 4, v0\nv_lshrrev_b32 v11, 5, v0\nv_lshlrev_b32 v11, 3, v11")
        a("L_svc_b:")
        a("s_barrier")
        self.stamp(3)
        a("s_cmp_lg_u32 s3, 0\ns_cbranch_scc1 L_role")
        for wv in range(4):
            a("ds_read_b64 v[%d:%d], v11 offset:%d" % (12 + 2 * wv, 13 + 2 * wv, L_PML + 16 * wv))
        for wv in range(4):
            a("ds_read_b128 v[%d:%d], v10 offset:%d" % (20 + 4 * wv, 23 + 4 * wv, L_PACC + 1024 * wv))
        a("s_waitcnt lgkmcnt(0)")
        a("v_max3_f32 v36, v12, v14, v16\nv_max_f32 v36, v36, v18")
        for wv in range(4):
            a("v_sub_f32 v%d, v%d, v36" % (12 + 2 * wv, 12 + 2 * wv))
        for wv in range(4):
            a("v_exp_f32 v%d, v%d" % (12 + 2 * wv, 12 + 2 * wv))
        a("s_nop 0")
        a("v_mul_f32 v37, v12, v13")
        for r in range(4):
            a("v_mul_f32 v%d, v12, v%d" % (40 + r, 20 + r))
        for wv in range(1, 4):
            a("v_fmac_f32 v37, v%d, v%d" % (12 + 2 * wv, 13 + 2 * wv))
            for r in range(4):
                a("v_fmac_f32 v%d, v%d, v%d" % (40 + r, 12 + 2 * wv, 20 + 4 * wv + r))
        a("buffer_store_dwordx4 v[40:43], v8, s[28:31], s46 offen sc1")
        a("s_mov_b32 s48, 0x101\ns_mov_b32 s49, 0x101\ns_mov_b64 exec, s[48:49]")
        a("buffer_store_dwordx2 v[36:37], v9, s[28:31], s47 offen sc1")
        a("s_mov_b64 exec, -1")
        self.stamp(4)
        a("L_role:")
        a("s_cmp_lt_u32 s2, %d\ns_cbranch_scc1 L_ffn" % OP0)
        a("s_cmp_lt_u32 s2, %d\ns_cbranch_scc1 L_oproj" % RED0)
        a("s_cmp_lg_u32 s3, 0\ns_cbranch_scc1 L_end")
        a("s_cmp_lt_u32 s2, %d\ns_cbranch_scc1 L_red" % (RED0 + N_RED))
        self.flush_stamps([0, 1, 2, 3, 4])
        a("s_endpgm")
        self.oproj()
        self.reducer()
        self.ffn()

    def oproj(self):
        a = self.a
        WF = 64
        a("L_oproj:")
        a("s_sub_u32 s44, s2, %d" % OP0)
        a("s_lshl_b32 s45, s44, 12\ns_add_u32 s45, s45, 0x%x\ns_lshl_b32 s46, s44, 7\ns_add_u32 s46, s46, 0x%x" % (WS_M1, WS_ML))
        a("v_lshlrev_b32 v4, 8, v1\nv_lshl_add_u32 v4, v2, 5, v4\nv_lshlrev_b32 v5, 3, v1")
        a("v_bfe_u32 v6, v0, 3, 1\nv_lshlrev_b32 v6, 6, v6\nv_lshl_add_u32 v6, v2, 4, v6")
        a("s_mul_i32 s47, s3, %d\ns_lshl_b32 s48, s44, 7\ns_add_u32 s47, s47, s48\ns_add_u32 s47, s47, 0x%x" % (9 * 8192, WS_M2))
        self.poll_begin("L_op_poll")
        a("buffer_load_dwordx2 v[12:13], v5, s[28:31], s46 offen sc1")
        for ks in range(2):
            for hh in range(2):
                r = 16 + 8 * ks + 4 * hh
                a("buffer_load_dwordx4 v[%d:%d], v4, s[28:31], s45 offen offset:%d sc1" % (r, r + 3, ks * 128 + hh * 16))
        self.poll_end("L_op_poll", [12, 13] + list(range(16, 32)), 14)
        self.stamp(5)
        a("v_mov_b32 v14, v12")
        self.oct_reduce("v_max_f32", [14])
        a("v_sub_f32 v12, v12, v14\nv_exp_f32 v12, v12\ns_nop 0\nv_mul_f32 v13, v12, v13")
        self.oct_reduce("v_add_f32", [13])
        a("v_rcp_f32 v13, v13\ns_nop 0\nv_mul_f32 v12, v12, v13")
        for r in range(16, 32):
            a("v_mul_f32 v%d, v12, v%d" % (r, r))
        self.oct_reduce("v_add_f32", list(range(16, 32)))
        for i in range(8):
            a("v_cvt_pk_bf16_f32 v%d, v%d, v%d" % (32 + i, 16 + 2 * i, 17 + 2 * i))
        a("s_nop 1")
        D = 140
        for tt in range(9):
            a("v_mfma_f32_16x16x32_bf16 v[%d:%d], v[%d:%d], v[32:35], 0" % (D + 4 * tt, D + 4 * tt + 3, WF + 8 * tt, WF + 8 * tt + 3))
        for tt in range(9):
            a("v_mfma_f32_16x16x32_bf16 v[%d:%d], v[%d:%d], v[36:39], v[%d:%d]" % (D + 4 * tt, D + 4 * tt + 3, WF + 8 * tt + 4, WF + 8 * tt + 7, D + 4 * tt, D + 4 * tt + 3))
        a("s_mov_b32 s48, 0x01010101\ns_mov_b32 s49, 0x01010101\ns_mov_b64 exec, s[48:49]")
        for tt in range(9):
            if tt == 8:
                a("s_nop 7")
            a("buffer_store_dwordx4 v[%d:%d], v6, s[28:31], s47 offen sc1" % (D + 4 * tt, D + 4 * tt + 3))
            a("s_add_u32 s47, s47, 8192")
        self.stamp(6)
        if self.diag:
            a("s_cmp_lg_u32 s3, 0\ns_cbranch_scc1 L_end")
            self.flush_stamps([0, 1, 2, 3, 4, 5, 6])
        a("s_endpgm")

    def sum_gathered(self, base, n):
        a = self.a
        for i in range(1, n):
            for r in range(4):
                a("v_add_f32 v%d, v%d, v%d" % (base + r, base + r, base + 4 * i + r))
        for r in range(4):
            self.dpp("v_add_f32", base + r, base + r, base + r, "row_ror:8")
        for sw in ("v_permlane16_swap_b32", "v_permlane32_swap_b32"):
            for r in range(4):
                a("v_mov_b32 v%d, v%d" % (base + 4 + r, base + r))
            a("s_nop 0")
            for r in range(4):
                a("%s v%d, v%d" % (sw, base + r, base + 4 + r))
            for r in range(4):
                a("v_add_f32 v%d, v%d, v%d" % (base + r, base + r, base + 4 + r))

    def round4(self, base, t):
        a = self.a
        a("v_cvt_pk_bf16_f32 v%d, v%d, v%d\nv_cvt_pk_bf16_f32 v%d, v%d, v%d" % (t, base, base + 1, t + 1, base + 2, base + 3))
        a("v_lshlrev_b32 v%d, 16, v%d\nv_and_b32 v%d, s40, v%d" % (base, t, base + 1, t))
        a("v_lshlrev_b32 v%d, 16, v%d\nv_and_b32 v%d, s40, v%d" % (base + 2, t + 1, base + 3, t + 1))

    def reducer(self):
        a = self.a
        a("L_red:")
        a("s_sub_u32 s44, s2, %d" % RED0)
        a("s_mov_b32 s40, 0xffff0000")
        self.srd(36, 22, 2304)
        a("s_lshl_b32 s45, s44, 13\ns_add_u32 s45, s45, 0x%x" % WS_M2)
        a("s_add_u32 s46, s45, 4096")
        a("v_lshlrev_b32 v4, 4, v0")
        a("v_lshlrev_b32 v56, 16, v60\nv_and_b32 v57, s40, v60\nv_lshlrev_b32 v58, 16, v61\nv_and_b32 v59, s40, v61")
        G = 64
        self.poll_begin("L_r1_poll")
        for i in range(8):
            a("buffer_load_dwordx4 v[%d:%d], v4, s[28:31], s%d offen offset:%d sc1" % (G + 4 * i, G + 4 * i + 3, 45 + i // 4, (i % 4) * 1024))
        self.poll_end("L_r1_poll", range(G, G + 32), 14)
        self.stamp(5)
        self.sum_gathered(G, 8)
        self.round4(G, 14)
        for r in range(4):
            a("v_add_f32 v%d, v%d, v%d" % (56 + r, 56 + r, G + r))
        self.round4(56, 14)
        a("s_lshl_b32 s45, s44, 7\ns_add_u32 s45, s45, 0x%x" % WS_M3)
        a("s_mov_b64 exec, 0xff")
        a("buffer_store_dwordx4 v[56:59], v4, s[28:31], s45 offen sc1")
        a("s_mov_b64 exec, -1")
        self.stamp(6)
        a("s_mul_i32 s45, s44, %d\ns_add_u32 s45, s45, 0x%x" % (144 * 128, WS_M4))
        for i in range(1, 5):
            a("s_add_u32 s%d, s45, %d" % (45 + i, 4096 * i))
        self.poll_begin("L_r2_poll")
        for i in range(18):
            a("buffer_load_dwordx4 v[%d:%d], v4, s[28:31], s%d offen offset:%d sc1" % (G + 4 * i, G + 4 * i + 3, 45 + i // 4, (i % 4) * 1024))
        self.poll_end("L_r2_poll", range(G, G + 72), 14)
        self.stamp(7)
        self.sum_gathered(G, 18)
        self.round4(G, 14)
        for r in range(4):
            a("v_add_f32 v%d, v%d, v%d" % (56 + r, 56 + r, G + r))
        a("v_cvt_pk_bf16_f32 v14, v56, v57\nv_cvt_pk_bf16_f32 v15, v58, v59")
        a("s_mov_b64 exec, 0xff")
        a("buffer_store_dwordx2 v[14:15], v62, s[36:39], 0 offen")
        a("s_cmp_lg_u32 s44, 0\ns_cbranch_scc1 L_red_end")
        a("s_mov_b64 exec, 1\nv_mov_b32 v16, s61\nv_mov_b32 v17, 0")
        a("buffer_store_dword v16, v17, s[28:31], 0 offen offset:%d sc1" % WS_EPOCH)
        a("L_red_end:")
        self.stamp(11)
        self.flush_stamps([0, 1, 2, 3, 4, 5, 6, 7, 11])
        a("s_endpgm")

    def ffn(self):
        a = self.a
        a("L_ffn:")
        a("s_and_b32 s44, s2, 7\ns_mul_i32 s44, s44, 18\ns_lshr_b32 s45, s2, 3\ns_add_u32 s44, s44, s45")
        a("s_cmp_eq_u32 s3, 0\ns_cbranch_scc1 L_ffn_c")
        a("s_cmp_eq_u32 s3, 3\ns_cbranch_scc1 L_ffn_dn")
        a("s_cmp_eq_u32 s3, 1\ns_cselect_b32 s36, s16, s18\ns_cselect_b32 s37, s17, s19\ns_mov_b32 s38, %d\ns_mov_b32 s39, 0x20000" % (576 * 9216))
        a("s_cselect_b32 s46, 0, 36864\ns_add_u32 s46, s46, %d" % L_WB)
        a("s_lshl_b32 s45, s44, 6\ns_mov_b32 s47, %d" % (16 * 9216))
        a("v_lshrrev_b32 v4, 2, v0\nv_mul_u32_u24 v4, 9216, v4\nv_and_b32 v5, 3, v0\nv_lshl_add_u32 v4, v5, 4, v4")
        a("s_branch L_ffn_ld")
        a("L_ffn_dn:")
        self.srd(36, 20, 4608 * 1152)
        a("s_mul_i32 s45, s44, 36864\ns_mov_b32 s46, %d\ns_mov_b32 s47, 1024" % (L_WB + 73728))
        a("v_lshlrev_b32 v4, 4, v0")
        a("L_ffn_ld:")
        FW = self.o.get("ffn_win", 12)
        for n in range(36):
            if n >= FW:
                a("s_waitcnt vmcnt(%d)" % (FW - 1))
            a("s_mov_b32 m0, s46\ns_add_u32 s46, s46, 1024")
            a("buffer_load_dwordx4 v4, s[36:39], s45 offen nt lds")
            a("s_add_u32 s45, s45, s47")
        a("s_waitcnt vmcnt(0)")
        a("L_ffn_c:")
        a("s_barrier")
        self.stamp(5)
        GF, DF, HF = 64, 136, 172
        a("v_lshrrev_b32 v4, 2, v1\nv_lshl_add_u32 v4, v2, 3, v4")
        a("v_bfe_u32 v5, v0, 1, 1\nv_mul_u32_u24 v5, 36864, v5\nv_lshl_add_u32 v5, v4, 6, v5\nv_and_b32 v6, 1, v0\nv_lshl_add_u32 v5, v6, 3, v5")
        a("s_lshl_b32 s45, s3, 4\ns_add_u32 s45, s45, %d\nv_add_u32 v5, s45, v5" % L_WB)
        for ks in range(18):
            for hh in range(2):
                r = GF + 4 * ks + 2 * hh
                a("ds_read_b64_tr_b16 v[%d:%d], v5 offset:%d" % (r, r + 1, (32 * ks + 4 * hh) * 64))
            if ks % 6 == 5:
                a("s_waitcnt lgkmcnt(0)")
        a("v_mul_u32_u24 v6, 1152, v4\nv_and_b32 v7, 3, v0\nv_lshl_add_u32 v6, v7, 3, v6")
        a("s_mul_i32 s45, s3, 288\ns_add_u32 s45, s45, %d\nv_add_u32 v6, s45, v6" % (L_WB + 73728))
        for t in range(9):
            for hh in range(2):
                r = DF + 4 * t + 2 * hh
                a("ds_read_b64_tr_b16 v[%d:%d], v6 offset:%d" % (r, r + 1, 4 * hh * 1152 + t * 32))
            if t % 3 == 2:
                a("s_waitcnt lgkmcnt(0)")
        a("v_and_b32 v9, 1, v0\nv_mul_u32_u24 v9, 1152, v9\nv_lshl_add_u32 v9, v2, 4, v9")
        a("v_and_b32 v10, 1, v0\nv_lshlrev_b32 v10, 6, v10\nv_lshl_add_u32 v11, v2, 4, v10")
        a("v_lshl_add_u32 v10, v2, 3, v10\ns_lshl_b32 s45, s3, 4\nv_add_u32 v10, s45, v10")
        a("s_mul_i32 s47, s3, %d\ns_lshl_b32 s48, s44, 7\ns_add_u32 s47, s47, s48\ns_add_u32 s47, s47, 0x%x" % (9 * 144 * 128, WS_M4))
        a("s_cmp_lg_u32 s3, 0\ns_cbranch_scc1 L_ffn_d")
        a("v_bfe_u32 v3, v0, 3, 2\nv_lshlrev_b32 v3, 7, v3\nv_lshrrev_b32 v4, 5, v0\nv_lshl_add_u32 v3, v4, 6, v3\nv_and_b32 v5, 7, v0\nv_lshl_add_u32 v3, v5, 3, v3")
        a("v_mul_u32_u24 v8, 1152, v4\nv_and_b32 v5, 31, v0\nv_lshl_add_u32 v8, v5, 2, v8\nv_add_u32 v8, %d, v8" % L_XN)
        a("s_mov_b32 s45, 0x%x\ns_mov_b32 s46, 0x%x" % (WS_M3, WS_M3 + 4096))
        self.poll_begin("L_h_poll")
        for j in range(9):
            a("buffer_load_dwordx2 v[%d:%d], v3, s[28:31], s%d offen offset:%d sc1" % (16 + 2 * j, 17 + 2 * j, 45 + j // 8, (j % 8) * 512))
        self.poll_end("L_h_poll", range(16, 34), 14)
        self.stamp(6)
        self.layernorm(16, 40, 8)
        a("s_waitcnt lgkmcnt(0)")
        a("L_ffn_d:")
        a("s_barrier")
        for ks in range(18):
            a("ds_read_b128 v[%d:%d], v9 offset:%d" % (HF + 4 * ks, HF + 4 * ks + 3, L_XN + ks * 64))
            if ks % 6 == 5:
                a("s_waitcnt lgkmcnt(0)")
                for k2 in range(ks - 5, ks + 1):
                    a("v_mfma_f32_16x16x32_bf16 v[12:15], v[%d:%d], v[%d:%d], %s" % (GF + 4 * k2, GF + 4 * k2 + 3, HF + 4 * k2, HF + 4 * k2 + 3, "0" if k2 == 0 else "v[12:15]"))
        a("s_mov_b32 s40, 0xffff0000")
        a("s_mov_b32 s41, 0x%x\ns_mov_b32 s42, 0x%x" % (f32(0.044715), f32(-2.0 * math.sqrt(2.0 / math.pi) * LOG2E)))
        a("s_nop 7")
        self.round4(12, 20)
        for r in range(4):
            a("v_mov_b32 v%d, v%d" % (16 + r, 12 + r))
        a("s_nop 0")
        for r in range(4):
            a("v_permlane32_swap_b32 v%d, v%d" % (12 + r, 16 + r))
        for r in range(4):
            a("v_mul_f32 v%d, v%d, v%d" % (20 + r, 12 + r, 12 + r))
        for r in range(4):
            a("v_fma_f32 v%d, v%d, s41, 1.0" % (20 + r, 20 + r))
        for r in range(4):
            a("v_mul_f32 v%d, v%d, v%d" % (20 + r, 20 + r, 12 + r))
        for r in range(4):
            a("v_mul_f32 v%d, s42, v%d" % (20 + r, 20 + r))
        for r in range(4):
            a("v_exp_f32 v%d, v%d" % (20 + r, 20 + r))
        a("s_nop 0")
        for r in range(4):
            a("v_add_f32 v%d, 1.0, v%d" % (20 + r, 20 + r))
        for r in range(4):
            a("v_rcp_f32 v%d, v%d" % (20 + r, 20 + r))
        a("s_nop 0")
        for r in range(4):
            a("v_mul_f32 v%d, v%d, v%d" % (12 + r, 12 + r, 20 + r))
        self.round4(12, 20)
        for r in range(4):
            a("v_mul_f32 v%d, v%d, v%d" % (12 + r, 12 + r, 16 + r))
        a("v_cvt_pk_bf16_f32 v20, v12, v13\nv_cvt_pk_bf16_f32 v21, v14, v15")
        a("s_mov_b64 exec, 0x30003")
        a("ds_write_b64 v10, v[20:21] offset:%d" % L_ACT)
        a("s_mov_b64 exec, -1")
        a("s_waitcnt lgkmcnt(0)")
        a("s_barrier")
        a("ds_read_b128 v[20:23], v11 offset:%d" % L_ACT)
        a("s_waitcnt lgkmcnt(0)")
        D = 24
        for t in range(9):
            a("v_mfma_f32_16x16x32_bf16 v[%d:%d], v[%d:%d], v[20:23], 0" % (D + 4 * t, D + 4 * t + 3, DF + 4 * t, DF + 4 * t + 3))
        a("s_mov_b32 s48, 0x00030003\ns_mov_b32 s49, 0x00030003\ns_mov_b64 exec, s[48:49]")
        for t in range(9):
            if t == 8:
                a("s_nop 7")
            a("buffer_store_dwordx4 v[%d:%d], v11, s[28:31], s47 offen sc1" % (D + 4 * t, D + 4 * t + 3))
            a("s_add_u32 s47, s47, %d" % (144 * 128))
        self.stamp(7)
        if self.diag:
            a("s_cmp_lg_u32 s3, 0\ns_cbranch_scc1 L_end")
            self.flush_stamps([0, 1, 2, 3, 4, 5, 6, 7])
        a("s_endpgm")

    def build(self):
        a = self.a
        a("s_cmp_ge_u32 s2, 256\ns_cbranch_scc1 L_end")
        a("s_load_dwordx16 s[4:19], s[0:1], 0\ns_load_dwordx8 s[20:27], s[0:1], 64")
        if self.diag:
            for k in range(NSTAMP):
                a("s_mov_b64 s[%d:%d], 0" % (64 + 2 * k, 65 + 2 * k))
        self.stamp(0)
        a("v_lshrrev_b32 v1, 6, v0\nv_and_b32 v0, 63, v0")
        a("v_readfirstlane_b32 s3, v1\ns_nop 3")
        a("s_cmp_ge_u32 s3, 4\ns_cbranch_scc1 L_stream")
        self.service()
        self.streaming()
        a("L_end:\ns_endpgm")
        return wrap(a.text(), 256, 512, LDS_BYTES, 256, 100, accum=256)


if __name__ == "__main__":
    import argparse
    ap = argparse.ArgumentParser()
    ap.add_argument("out")
    ap.add_argument("--diag", action="store_true")
    args = ap.parse_args()
    open(args.out, "w").write(Gen(diag=args.diag).build())
```

```python
import sys, struct, math
from asmlib import *

def f32(x):
    return struct.unpack("<I", struct.pack("<f", x))[0]

WS_EPOCH = 0x0
WS_CTR = 0x1000
WS_MQ = 0x180000
SB = 0x10000
WS_M1 = SB + 0x0
WS_M2 = SB + 0x60000
WS_M3 = SB + 0xA8000
WS_M4 = SB + 0xC0000
RESET_PER_WG = 3072
WS_STAMP = 0x8000000
NSTAMP = 16
L_Q = 0x0
L_XN = 0x200
L_ACT = 0xB00
L_PML = 0xB80
L_FLAG = 0xBC0
L_PACC = 0xC00
L_WQ = 0x2000
L_WB = 0x6800
L_UP = L_WB + 36864 + 32
L_DN = L_WB + 73728 + 64
L_HB = L_DN + 37888
LDS_BYTES = L_HB + 4 * 3456 + 128
N_FFN, N_OP, N_RED = 144, 64, 36
OP0 = N_FFN
RED0 = N_FFN + N_OP
SPIN = 200000
LOG2E = 1.4426950408889634
EPOCH_INC = 0x9E3779B9


class Gen:
    def __init__(self, diag=False, nback=4, win=8, opts=None):
        self.a = Asm()
        self.diag = diag
        self.nback = nback
        self.win = win
        self.o = opts or {}

    def stamp(self, k):
        if self.diag:
            self.a("s_memrealtime s[%d:%d]" % (64 + 2 * k, 65 + 2 * k))

    def flush_stamps(self, ks):
        if not self.diag:
            return
        a = self.a
        a("s_waitcnt lgkmcnt(0)")
        a("s_mov_b64 exec, 1")
        a("s_mul_i32 s96, s2, %d\ns_add_u32 s96, s96, 0x%x" % (NSTAMP * 8, WS_STAMP))
        a("v_mov_b32 v252, 0")
        for k in ks:
            a("v_mov_b32 v250, s%d\nv_mov_b32 v251, s%d" % (64 + 2 * k, 65 + 2 * k))
            a("buffer_store_dwordx2 v[250:251], v252, s[28:31], s96 offen offset:%d" % (8 * k))
            a("s_nop 1")

    def srd(self, d, lo, size, add=None):
        a = self.a
        if add is None:
            a("s_mov_b32 s%d, s%d\ns_mov_b32 s%d, s%d" % (d, lo, d + 1, lo + 1))
        else:
            a("s_add_u32 s%d, s%d, %s\ns_addc_u32 s%d, s%d, 0" % (d, lo, add, d + 1, lo + 1))
        a("s_mov_b32 s%d, 0x%x\ns_mov_b32 s%d, 0x20000" % (d + 2, size, d + 3))

    def xrow(self, op, x, t, halves=True, rows=True):
        a = self.a
        if rows:
            a("v_mov_b32 v%d, v%d\ns_nop 1\nv_permlane16_swap_b32 v%d, v%d\ns_nop 0\n%s v%d, v%d, v%d" % (t, x, x, t, op, x, x, t))
        if halves:
            a("v_mov_b32 v%d, v%d\ns_nop 1\nv_permlane32_swap_b32 v%d, v%d\ns_nop 0\n%s v%d, v%d, v%d" % (t, x, x, t, op, x, x, t))

    def dpp(self, op, d, s0, s1, ctrl, bank=0xf):
        self.a("%s_dpp v%d, v%d, v%d %s row_mask:0xf bank_mask:0x%x" % (op, d, s0, s1, ctrl, bank))

    def row_reduce(self, op, regs):
        for ctrl in ("row_ror:8", "row_ror:4", "row_ror:2", "row_ror:1"):
            if len(regs) < 3:
                self.a("s_nop 1")
            for r in regs:
                self.dpp(op, r, r, r, ctrl)

    def oct_reduce(self, op, regs):
        for ctrl in ("row_half_mirror", "quad_perm:[1,0,3,2]", "quad_perm:[2,3,0,1]"):
            if len(regs) < 3:
                self.a("s_nop 1")
            for r in regs:
                self.dpp(op, r, r, r, ctrl)

    def layernorm(self, X, T, ldsaddr):
        a = self.a
        s, t, m, r = T, T + 1, T + 2, T + 3
        D = T + 4
        a("v_add_f32 v%d, v%d, v%d" % (s, X, X + 1))
        a("v_add_f32 v%d, v%d, v%d" % (t, X + 2, X + 3))
        for i in range(4, 18, 2):
            a("v_add_f32 v%d, v%d, v%d\nv_add_f32 v%d, v%d, v%d" % (s, s, X + i, t, t, X + i + 1))
        a("v_add_f32 v%d, v%d, v%d" % (s, s, t))
        self.row_reduce("v_add_f32", [s])
        self.xrow("v_add_f32", s, t, halves=False)
        a("v_mul_f32 v%d, 0x%x, v%d" % (m, f32(1.0 / 576), s))
        for i in range(18):
            a("v_sub_f32 v%d, v%d, v%d" % (D + i, X + i, m))
        a("v_mul_f32 v%d, v%d, v%d\nv_mul_f32 v%d, v%d, v%d" % (s, D, D, t, D + 1, D + 1))
        for i in range(2, 18, 2):
            a("v_fmac_f32 v%d, v%d, v%d\nv_fmac_f32 v%d, v%d, v%d" % (s, D + i, D + i, t, D + i + 1, D + i + 1))
        a("v_add_f32 v%d, v%d, v%d" % (s, s, t))
        self.row_reduce("v_add_f32", [s])
        self.xrow("v_add_f32", s, t, halves=False)
        a("v_mul_f32 v%d, 0x%x, v%d" % (s, f32(1.0 / 576), s))
        a("v_cvt_pk_bf16_f32 v%d, v%d, v%d" % (t, m, s))
        a("s_mov_b32 s40, 0xffff0000")
        a("v_lshlrev_b32 v%d, 16, v%d\nv_and_b32 v%d, s40, v%d" % (m, t, s, t))
        a("v_add_f32 v%d, 0x%x, v%d" % (s, f32(1e-5), s))
        a("v_cvt_pk_bf16_f32 v%d, v%d, v%d" % (s, s, s))
        a("v_and_b32 v%d, s40, v%d" % (s, s))
        a("v_sqrt_f32 v%d, v%d\ns_nop 0" % (s, s))
        a("v_cvt_pk_bf16_f32 v%d, v%d, v%d" % (s, s, s))
        a("v_and_b32 v%d, s40, v%d" % (s, s))
        a("v_rcp_f32 v%d, v%d" % (r, s))
        for i in range(18):
            a("v_sub_f32 v%d, v%d, v%d" % (D + i, X + i, m))
        for j in range(9):
            a("v_cvt_pk_bf16_f32 v%d, v%d, v%d" % (D + 2 * j + 1, D + 2 * j, D + 2 * j + 1))
        for j in range(9):
            a("v_lshlrev_b32 v%d, 16, v%d\nv_and_b32 v%d, s40, v%d" % (D + 2 * j, D + 2 * j + 1, D + 2 * j + 1, D + 2 * j + 1))
        for i in range(18):
            a("v_mul_f32 v%d, v%d, v%d" % (D + i, D + i, r))
        for j in range(9):
            a("v_cvt_pk_bf16_f32 v%d, v%d, v%d" % (D + 2 * j, D + 2 * j, D + 2 * j + 1))
        for j in range(9):
            a("ds_write_b32 v%d, v%d offset:%d" % (ldsaddr, D + 2 * j, j * 128))

    def poll_begin(self, name):
        self.a("s_mov_b32 s60, 0\n%s:" % name)

    def poll_end(self, name, regs, t):
        a = self.a
        a("s_waitcnt vmcnt(0)")
        regs = list(regs)
        first = True
        while regs:
            if first:
                if len(regs) >= 3:
                    a("v_max3_u32 v%d, v%d, v%d, v%d" % (t, regs[0], regs[1], regs[2])); regs = regs[3:]
                else:
                    a("v_max_u32 v%d, v%d, v%d" % (t, regs[0], regs[-1])); regs = regs[2:]
                first = False
            elif len(regs) >= 2:
                a("v_max3_u32 v%d, v%d, v%d, v%d" % (t, t, regs[0], regs[1])); regs = regs[2:]
            else:
                a("v_max_u32 v%d, v%d, v%d" % (t, t, regs[0])); regs = []
        a("v_cmp_eq_u32 vcc, -1, v%d" % t)
        a("s_add_u32 s60, s60, 1\ns_cmp_gt_u32 s60, %d\ns_cbranch_scc1 %s_x" % (SPIN, name))
        a("s_cbranch_vccnz %s\n%s_x:" % (name, name))

    def ticket(self, KR, VR, ring):
        a = self.a
        QA, QB, SA, SBR, T0, T1, MT, M, ML, LS, ACC, AF, MK = 10, 14, 18, 22, 26, 27, 28, 29, 30, 31, 32, 36, 5
        for j in range(4):
            if ring and j > 0:
                a("s_waitcnt vmcnt(8)")
            k = KR + 4 * j
            for e in range(4):
                a("v_dot2_f32_bf16 v%d, v%d, v%d, %s" % (SA + j, k + e, QA + e, "0" if e == 0 else "v%d" % (SA + j)))
                a("v_dot2_f32_bf16 v%d, v%d, v%d, %s" % (SBR + j, k + e, QB + e, "0" if e == 0 else "v%d" % (SBR + j)))
            if ring:
                a("buffer_load_dwordx4 v[%d:%d], v1, s[36:39], s45 offen offset:%d nt" % (k, k + 3, j * 1024))
        for j in range(4):
            self.dpp("v_add_f32", SA + j, SA + j, SA + j, "row_ror:8", 0x3)
        for j in range(4):
            self.dpp("v_add_f32", SA + j, SBR + j, SBR + j, "row_ror:8", 0xc)
        self.oct_reduce("v_add_f32", [SA + j for j in range(4)])
        for rnd in range(2):
            a("v_cvt_pk_bf16_f32 v%d, v%d, v%d\nv_cvt_pk_bf16_f32 v%d, v%d, v%d" % (T0, SA, SA + 1, T1, SA + 2, SA + 3))
            a("v_lshlrev_b32 v%d, 16, v%d\nv_and_b32 v%d, s46, v%d" % (SA, T0, SA + 1, T0))
            a("v_lshlrev_b32 v%d, 16, v%d\nv_and_b32 v%d, s46, v%d" % (SA + 2, T1, SA + 3, T1))
            if rnd == 0:
                for j in range(4):
                    a("v_mul_f32 v%d, s47, v%d" % (SA + j, SA + j))
        a("v_max3_f32 v%d, v%d, v%d, v%d\nv_max_f32 v%d, v%d, v%d" % (MT, SA, SA + 1, SA + 2, MT, MT, SA + 3))
        a("v_cmp_gt_f32 vcc, v%d, v%d" % (MT, M))
        lab = a.label("L_nors")
        a("s_cbranch_vccz %s\ns_call_b64 s[50:51], L_rescale\n%s:" % (lab, lab))
        for j in range(4):
            a("v_fma_f32 v%d, v%d, s48, -v%d" % (SA + j, SA + j, ML))
        for j in range(4):
            a("v_exp_f32 v%d, v%d" % (SA + j, SA + j))
        a("s_nop 0")
        for j in range(4):
            a("v_cvt_pk_bf16_f32 v%d, v%d, v%d" % (SBR + j, SA + j, SA + j))
        a("v_add_f32 v%d, v%d, v%d\nv_add_f32 v%d, v%d, v%d" % (T0, SA, SA + 1, T1, SA + 2, SA + 3))
        for j in range(4):
            for e in range(4):
                a("v_and_b32 v%d, v%d, v%d" % (AF + 4 * j + e, MK + e, SBR + j))
        a("v_add_f32 v%d, v%d, v%d\nv_add_f32 v%d, v%d, v%d" % (T0, T0, T1, LS, LS, T0))
        for j in range(4):
            if ring:
                a("s_waitcnt vmcnt(8)")
            v = VR + 4 * j
            a("v_mfma_f32_16x16x32_bf16 v[%d:%d], v[%d:%d], v[%d:%d], v[%d:%d]" % (ACC, ACC + 3, AF + 4 * j, AF + 4 * j + 3, v, v + 3, ACC, ACC + 3))
            if ring:
                a("buffer_load_dwordx4 v[%d:%d], v1, s[40:43], s45 offen offset:%d nt" % (v, v + 3, j * 1024))

    def streaming(self):
        a = self.a
        NB = self.nback
        NS = self.o.get("nstatic", 13)
        LIMF = self.o.get("limf", 512)
        assert NS >= 2 * NB and NS >= NB + 2
        RING, BACK = 52, 84
        a("L_stream:")
        a("s_sub_u32 s44, s3, 4")
        a("v_lshlrev_b32 v1, 4, v0")
        a("s_lshr_b32 s56, s2, 3\ns_lshl_b32 s46, s56, 21")
        a("s_and_b32 s45, s2, 7\ns_mul_i32 s45, s45, %d\ns_add_u32 s45, s45, s44\ns_lshl_b32 s45, s45, 12" % (NS * 4))
        a("s_waitcnt lgkmcnt(0)")
        self.srd(36, 6, 0x200000, "s46")
        self.srd(40, 8, 0x200000, "s46")
        n = 0
        for tk in range(NB + 1):
            base = BACK + 32 * tk if tk < NB else RING
            for kv in range(2):
                for j in range(4):
                    if n >= self.win:
                        a("s_waitcnt vmcnt(%d)" % (self.win - 1))
                    r = base + 16 * kv + 4 * j
                    a("buffer_load_dwordx4 v[%d:%d], v1, s[%d:%d], s45 offen offset:%d nt" % (r, r + 3, 36 + 4 * kv, 39 + 4 * kv, j * 1024))
                    n += 1
                    if n == self.o.get("qgo", (NB - 1) * 8):
                        a("ds_write_b32 v2, v3 offset:%d" % (L_FLAG + 12))
                    if n == self.win:
                        self.srd(28, 26, 0x10000000)
                        a("v_and_b32 v26, 1, v0\nv_lshlrev_b32 v26, 4, v26\nv_mov_b32 v27, 0xffff\nv_lshlrev_b32 v27, v26, v27")
                        a("v_bfe_u32 v26, v0, 1, 2")
                        for e in range(4):
                            a("v_cmp_eq_u32 vcc, %d, v26\ns_nop 1\nv_cndmask_b32 v%d, 0, v27, vcc" % (e, 5 + e))
                        a("v_mov_b32 v29, 0x%x\nv_mov_b32 v30, 0x%x\nv_mov_b32 v31, 0" % (f32(-1e38), f32(-1e38 * LOG2E)))
                        a("v_mov_b32 v32, 0\nv_mov_b32 v33, 0\nv_mov_b32 v34, 0\nv_mov_b32 v35, 0")
                        a("s_mov_b32 s46, 0xffff0000\ns_mov_b32 s47, 0x%x\ns_mov_b32 s48, 0x%x" % (f32(128 ** -0.5), f32(LOG2E)))
                        a("s_mov_b32 s52, 0\ns_mov_b32 s53, -1")
                        a("v_and_b32 v9, 15, v0\nv_lshlrev_b32 v9, 4, v9")
                        a("v_mov_b32 v2, 0\nv_mov_b32 v3, 1\nv_mov_b32 v4, 0")
                        a("s_lshl_b32 s56, s56, 8\ns_add_u32 s56, s56, 0x%x" % WS_CTR)
                        a("s_cmp_lt_u32 s58, %d\ns_cselect_b32 s59, 0, %d\ns_add_u32 s59, s59, %d" % (OP0, (512 - LIMF) * 4096, LIMF * 4096))
                        a("s_barrier")
            if tk < NB:
                a("s_add_u32 s45, s45, 0x4000")
        self.stamp(8)
        if self.o.get("abl", 0) != 1:
            self.lds_wait(L_FLAG + 20, 1, 1, t=26)
        self.stamp(9)
        a("ds_read_b128 v[10:13], v9 offset:%d\nds_read_b128 v[14:17], v9 offset:%d" % (L_Q, L_Q + 256))
        a("s_mov_b32 s49, 0")
        a("s_waitcnt lgkmcnt(0)")
        a("L_sloop:")
        a("s_waitcnt vmcnt(7)")
        a("v_readfirstlane_b32 s57, v4")
        a("s_add_u32 s45, s45, 0x4000")
        a("s_mov_b64 exec, 1\nv_mov_b32 v4, 1")
        a("s_add_u32 s57, s57, %d\ns_lshl_b32 s57, s57, 12" % (NS * 32))
        a("s_cmp_lt_u32 s49, %d\ns_cselect_b32 s45, s45, s57" % (NS - NB - 1))
        a("s_cmp_lt_u32 s45, 0x200000\ns_cselect_b32 s38, s38, 0\ns_cselect_b32 s42, s42, 0")
        a("s_cmp_lt_u32 s49, %d\ns_cbranch_scc1 L_sdummy" % (NS - NB - 2))
        a("s_cmp_ge_u32 s45, s59\ns_cbranch_scc1 L_sstop")
        a("buffer_atomic_add v4, v2, s[28:31], s56 offen sc0")
        a("s_branch L_sgo")
        a("L_sstop:")
        a("v_mov_b32 v4, 0x1000")
        a("s_cmp_lg_u32 s38, 0\ns_cbranch_scc1 L_sdummy")
        a("ds_add_u32 v2, v3 offset:%d" % (L_FLAG + 4))
        a("L_sdummy:")
        a("buffer_load_dword v9, v2, s[28:31], s56 offen offset:128")
        a("L_sgo:")
        a("s_cmp_lg_u32 s49, %d\ns_cbranch_scc1 L_sgo2" % self.o.get("rchk", 4))
        a("ds_write_b32 v2, v3 offset:%d" % (L_FLAG + 16))
        a("L_sgo2:")
        a("s_mov_b64 exec, -1")
        self.ticket(RING, RING + 16, True)
        for k in range(NB):
            a("s_cmp_eq_u32 s49, %d\ns_cbranch_scc1 L_back%d" % (k, k))
        a("L_scont:")
        a("s_add_u32 s49, s49, 1\ns_cmp_lg_u32 s38, 0\ns_cbranch_scc1 L_sloop")
        self.xrow("v_add_f32", 31, 26)
        a("s_lshl_b32 s45, s44, 10")
        a("v_add_u32 v26, s45, v1")
        a("ds_write_b128 v26, v[32:35] offset:%d" % L_PACC)
        a("s_lshl_b32 s45, s44, 4")
        a("v_add_u32 v27, s45, v0")
        a("s_mov_b64 exec, 0x101")
        a("ds_write_b64 v27, v[30:31] offset:%d" % L_PML)
        a("s_mov_b64 exec, 1")
        a("ds_add_u32 v2, v3 offset:%d" % L_FLAG)
        self.stamp(10)
        if self.diag:
            if self.o.get("abl", 0):
                a("s_cmp_lg_u32 s3, 7\ns_cbranch_scc1 L_nw7")
                a("s_waitcnt lgkmcnt(0)\ns_mov_b64 s[70:71], s[84:85]")
                self.flush_stamps([3])
                a("L_nw7:")
            a("s_cmp_lg_u32 s3, 4\ns_cbranch_scc1 L_end")
            self.flush_stamps([8, 9, 10])
        a("s_endpgm")
        for k in range(NB):
            a("L_back%d:" % k)
            self.ticket(BACK + 32 * k, BACK + 32 * k + 16, False)
            a("s_branch L_scont")
        a("L_rescale:")
        a("v_max_f32 v28, v28, v29")
        self.xrow("v_max_f32", 28, 26)
        a("v_mov_b32 v29, v28\nv_mul_f32 v27, s48, v28\nv_sub_f32 v26, v30, v27\nv_exp_f32 v26, v26\nv_mov_b32 v30, v27")
        a("v_mul_f32 v31, v31, v26")
        a("v_readlane_b32 s54, v26, 0\nv_readlane_b32 s55, v26, 8\ns_nop 1")
        a("v_mov_b32 v26, s54\nv_mov_b32 v27, s55\nv_cndmask_b32 v26, v26, v27, s[52:53]")
        for r in range(4):
            a("v_mul_f32 v%d, v%d, v26" % (32 + r, 32 + r))
        a("s_setpc_b64 s[50:51]")

    def lds_wait(self, off, val, sleep, t=5):
        a = self.a
        lab = a.label("L_lw")
        a("v_mov_b32 v%d, 0\ns_mov_b32 s60, 0\n%s:" % (t, lab))
        a("ds_read_b32 v%d, v%d offset:%d\ns_waitcnt lgkmcnt(0)" % (t + 1, t, off))
        a("v_cmp_le_u32 vcc, %d, v%d" % (val, t + 1))
        a("s_add_u32 s60, s60, 1\ns_cmp_gt_u32 s60, %d\ns_cbranch_scc1 %s_x\ns_cbranch_vccnz %s_x" % (SPIN * 20, lab, lab))
        if sleep:
            a("s_sleep %d" % sleep)
        a("s_branch %s\n%s_x:" % (lab, lab))

    def qproj(self):
        a = self.a
        a("v_lshrrev_b32 v3, 5, v0\nv_mul_u32_u24 v3, 1152, v3\nv_and_b32 v4, 31, v0\nv_lshl_add_u32 v3, v4, 2, v3")
        a("v_mov_b32 v6, 0")
        a("s_lshr_b32 s46, s2, 3\ns_and_b32 s47, s46, 15\ns_lshr_b32 s48, s46, 4")
        a("s_bfe_u32 s49, s2, 0x10002\ns_lshl_b32 s44, s48, 1\ns_add_u32 s49, s49, s44")
        a("s_and_b32 s50, s2, 3")
        a("s_waitcnt lgkmcnt(0)")
        self.srd(36, 4, 2304)
        self.srd(28, 26, 0x10000000)
        for j in range(9):
            a("buffer_load_dword v%d, v3, s[36:39], 0 offen offset:%d" % (16 + 2 * j + 1, j * 128))
        a("buffer_load_dword v7, v6, s[28:31], 0 offen offset:%d sc1" % WS_EPOCH)
        self.srd(32, 24, 256)
        a("s_and_b32 s44, s2, 7\ns_cmp_eq_u32 s44, 0\ns_cselect_b64 exec, 1, 0")
        a("s_lshl_b32 s44, s46, 8\ns_add_u32 s44, s44, 0x%x" % WS_CTR)
        a("buffer_store_dword v6, v6, s[28:31], s44 offen sc1")
        a("s_mov_b64 exec, -1")
        a("s_mov_b32 s40, 0xffff0000")
        a("s_barrier")
        a("s_waitcnt vmcnt(0)")
        self.stamp(12)
        for j in range(9):
            a("v_lshlrev_b32 v%d, 16, v%d\nv_and_b32 v%d, s40, v%d" % (16 + 2 * j, 16 + 2 * j + 1, 16 + 2 * j + 1, 16 + 2 * j + 1))
        a("v_add_u32 v7, 0x%x, v7" % EPOCH_INC)
        a("v_add_u32 v8, %d, v3" % L_XN)
        self.layernorm(16, 40, 8)
        a("v_and_b32 v9, 1, v0\nv_mul_u32_u24 v9, 1152, v9\nv_lshl_add_u32 v9, v2, 3, v9\ns_mul_i32 s44, s50, 288\nv_add_u32 v9, s44, v9")
        a("v_lshrrev_b32 v10, 2, v0\nv_lshlrev_b32 v10, 7, v10\nv_and_b32 v11, 3, v0\nv_lshl_add_u32 v10, v11, 3, v10")
        self.stamp(13)
        a("s_waitcnt lgkmcnt(0)")
        FB, FA, D = 64, 84, 160
        for ks in range(9):
            a("ds_read_b64 v[%d:%d], v9 offset:%d" % (FB + 2 * ks, FB + 2 * ks + 1, L_XN + ks * 32))
        self.lds_wait(L_FLAG + 8, 3, 0, t=12)
        self.stamp(14)
        for ks in range(9):
            for t in range(4):
                r = FA + 8 * ks + 2 * t
                a("ds_read_b64_tr_b16 v[%d:%d], v10 offset:%d" % (r, r + 1, L_WQ + ks * 2048 + t * 32))
            if ks % 3 == 2:
                a("s_waitcnt lgkmcnt(0)")
                for k2 in range(ks - 2, ks + 1):
                    for t in range(4):
                        r = FA + 8 * k2 + 2 * t
                        a("v_mfma_f32_16x16x16_bf16 v[%d:%d], v[%d:%d], v[%d:%d], %s" % (D + 4 * t, D + 4 * t + 3, r, r + 1, FB + 2 * k2, FB + 2 * k2 + 1, "0" if k2 == 0 else "v[%d:%d]" % (D + 4 * t, D + 4 * t + 3)))
        a("s_lshl_b32 s45, s47, 14\ns_lshl_b32 s44, s50, 11\ns_add_u32 s45, s45, s44\ns_lshl_b32 s44, s49, 9\ns_add_u32 s45, s45, s44\ns_add_u32 s45, s45, 0x%x" % WS_MQ)
        a("v_and_b32 v10, 1, v0\nv_lshlrev_b32 v10, 13, v10\nv_lshl_add_u32 v10, v2, 5, v10\nv_bfe_u32 v11, v0, 1, 1\nv_lshl_add_u32 v10, v11, 4, v10")
        a("v_cmp_eq_u32 vcc, 1, v11")
        a("s_mov_b32 s52, 0x000f000f\ns_mov_b32 s53, 0x000f000f")
        for t in range(4):
            a("v_mov_b32 v%d, v7\nv_mov_b32 v%d, v7" % (17 + 4 * t, 19 + 4 * t))
        for t in range(4):
            a("v_cndmask_b32 v%d, v%d, v%d, vcc\nv_cndmask_b32 v%d, v%d, v%d, vcc" % (16 + 4 * t, D + 4 * t, D + 4 * t + 2, 18 + 4 * t, D + 4 * t + 1, D + 4 * t + 3))
        a("s_mov_b64 exec, s[52:53]")
        for t in range(4):
            a("buffer_store_dwordx4 v[%d:%d], v10, s[28:31], s45 offen offset:%d sc1" % (16 + 4 * t, 19 + 4 * t, t * 128))
        a("s_mov_b64 exec, -1")
        self.stamp(1)
        a("s_lshl_b32 s44, s47, 1\ns_add_u32 s44, s44, s48\ns_lshl_b32 s44, s44, 13\ns_add_u32 s44, s44, 0x%x\ns_add_u32 s45, s44, 4096" % WS_MQ)
        a("v_lshlrev_b32 v10, 4, v0\nv_lshlrev_b32 v11, 2, v0")
        G = 64
        self.lds_wait(L_FLAG + 12, 1, 2, t=12)
        a("s_mov_b32 s60, 0\nL_qpoll:")
        for i in range(8):
            a("buffer_load_dwordx4 v[%d:%d], v10, s[28:31], s%d offen offset:%d sc1" % (G + 4 * i, G + 4 * i + 3, 44 + i // 4, (i % 4) * 1024))
        a("s_waitcnt vmcnt(0)")
        for i in range(8):
            a("v_xor_b32 v%d, v%d, v7\nv_xor_b32 v%d, v%d, v7" % (G + 4 * i + 1, G + 4 * i + 1, G + 4 * i + 3, G + 4 * i + 3))
        a("v_or_b32 v12, v%d, v%d" % (G + 1, G + 3))
        for i in range(1, 8):
            a("v_or3_b32 v12, v12, v%d, v%d" % (G + 4 * i + 1, G + 4 * i + 3))
        a("v_cmp_ne_u32 vcc, 0, v12")
        a("s_add_u32 s60, s60, 1\ns_cmp_gt_u32 s60, %d\ns_cbranch_scc1 L_qpoll_x\ns_cbranch_vccnz L_qpoll\nL_qpoll_x:" % SPIN)
        for hf in range(2):
            for c in (0, 2):
                b0 = G + 4 * hf + c
                a("v_add_f32 v%d, v%d, v%d\nv_add_f32 v%d, v%d, v%d" % (b0, b0, b0 + 8, b0 + 16, b0 + 16, b0 + 24))
        for hf in range(2):
            for c in (0, 2):
                b0 = G + 4 * hf + c
                a("v_add_f32 v%d, v%d, v%d" % (b0, b0, b0 + 16))
        a("v_cvt_pk_bf16_f32 v12, v%d, v%d\nv_cvt_pk_bf16_f32 v13, v%d, v%d" % (G, G + 2, G + 4, G + 6))
        a("ds_write_b32 v11, v12 offset:%d\nds_write_b32 v11, v13 offset:%d" % (L_Q, L_Q + 256))
        a("v_mov_b32 v12, 1\nds_write_b32 v6, v12 offset:%d" % (L_FLAG + 20))
        a("v_readfirstlane_b32 s61, v7")
        a("s_waitcnt lgkmcnt(0)")
        self.stamp(2)

    def finish_attn(self):
        a = self.a
        a("L_finish:")
        self.lds_wait(L_FLAG + 16, 1, 8, t=4)
        a("v_mov_b32 v4, 0\ns_mov_b32 s60, 0\nL_rpoll:")
        a("buffer_load_dword v5, v4, s[32:35], 0 offen sc1\ns_waitcnt vmcnt(0)")
        a("v_cmp_gt_u32 vcc, 256, v5")
        a("s_add_u32 s60, s60, 1\ns_cmp_gt_u32 s60, %d\ns_cbranch_scc1 L_rpoll_x\ns_cbranch_vccz L_rpoll_x\ns_sleep 64\ns_branch L_rpoll\nL_rpoll_x:" % SPIN)
        a("v_mov_b32 v5, 1\ns_mov_b64 exec, 1\nds_add_u32 v4, v5 offset:%d\ns_mov_b64 exec, -1" % L_FLAG)
        a("s_lshr_b32 s44, s2, 3\ns_and_b32 s45, s44, 15\ns_lshr_b32 s44, s44, 4\ns_lshl_b32 s44, s44, 3\ns_and_b32 s46, s2, 7\ns_add_u32 s44, s44, s46")
        a("v_lshrrev_b32 v6, 5, v0\nv_lshlrev_b32 v6, 1, v6\nv_bfe_u32 v7, v0, 3, 1\nv_add_u32 v6, v6, v7\ns_lshl_b32 s45, s45, 2\nv_add_u32 v6, s45, v6")
        a("v_and_b32 v7, 7, v0\nv_lshlrev_b32 v7, 5, v7\nv_bfe_u32 v8, v0, 4, 1\nv_lshl_add_u32 v7, v8, 4, v7")
        a("v_mul_u32_u24 v6, 6144, v6\nv_add_u32 v8, v6, v7\nv_and_b32 v9, 7, v0\nv_lshl_add_u32 v9, v9, 4, v6")
        a("s_mul_i32 s46, s44, 384\ns_add_u32 s46, s46, 0x%x" % WS_M1)
        a("v_lshlrev_b32 v10, 4, v0\nv_lshrrev_b32 v11, 5, v0\nv_lshlrev_b32 v11, 3, v11")
        a("s_mov_b32 s48, 0xffff\ns_mov_b32 s49, 0xffff")
        self.lds_wait(L_FLAG, 5, 1, t=4)
        self.stamp(3)
        for wv in range(4):
            a("ds_read_b64 v[%d:%d], v11 offset:%d" % (12 + 2 * wv, 13 + 2 * wv, L_PML + 16 * wv))
        for wv in range(4):
            a("ds_read_b128 v[%d:%d], v10 offset:%d" % (20 + 4 * wv, 23 + 4 * wv, L_PACC + 1024 * wv))
        a("s_waitcnt lgkmcnt(0)")
        a("v_max3_f32 v36, v12, v14, v16\nv_max_f32 v36, v36, v18")
        for wv in range(4):
            a("v_sub_f32 v%d, v%d, v36" % (12 + 2 * wv, 12 + 2 * wv))
        for wv in range(4):
            a("v_exp_f32 v%d, v%d" % (12 + 2 * wv, 12 + 2 * wv))
        a("s_nop 0")
        for r in range(4):
            a("v_mul_f32 v%d, v12, v%d" % (40 + r, 20 + r))
        for wv in range(1, 4):
            for r in range(4):
                a("v_fmac_f32 v%d, v%d, v%d" % (40 + r, 12 + 2 * wv, 20 + 4 * wv + r))
        a("buffer_store_dwordx4 v[40:43], v8, s[28:31], s46 offen sc1")
        a("v_mul_f32 v37, v12, v13")
        for wv in range(1, 4):
            a("v_fmac_f32 v37, v%d, v%d" % (12 + 2 * wv, 13 + 2 * wv))
        a("v_mov_b32 v38, v36\nv_mov_b32 v39, v37")
        a("s_mov_b64 exec, s[48:49]")
        a("buffer_store_dwordx4 v[36:39], v9, s[28:31], s46 offen offset:256 sc1")
        a("s_mov_b64 exec, 1\nv_mov_b32 v5, 1\nds_add_u32 v4, v5 offset:%d" % L_FLAG)
        a("s_mov_b64 exec, -1")
        self.stamp(4)
        a("s_setpc_b64 s[50:51]")

    def service(self):
        a = self.a
        a("s_setprio 2")
        if self.o.get("abl", 0) == 1:
            a("s_waitcnt lgkmcnt(0)")
            self.srd(28, 26, 0x10000000)
            a("s_barrier")
            a("s_cmp_lg_u32 s3, 0\ns_cbranch_scc1 L_end")
            self.flush_stamps([0])
            a("s_endpgm")
        a("v_and_b32 v1, 15, v0\nv_lshrrev_b32 v2, 4, v0")
        a("s_cmp_lg_u32 s3, 0\ns_cbranch_scc1 L_svc_other")
        self.qproj()
        a("s_branch L_svc_a")
        a("L_svc_other:")
        a("v_lshrrev_b32 v4, 3, v0\nv_lshlrev_b32 v4, 13, v4\nv_and_b32 v5, 7, v0\nv_lshl_add_u32 v4, v5, 4, v4")
        a("s_bfe_u32 s47, s2, 0x40003\ns_lshr_b32 s48, s2, 7\ns_bfe_u32 s49, s2, 0x10002\ns_lshl_b32 s44, s48, 1\ns_add_u32 s49, s49, s44\ns_and_b32 s50, s2, 3")
        a("s_lshl_b32 s45, s47, 2\ns_add_u32 s45, s45, s49\ns_lshl_b32 s45, s45, 7\ns_mul_i32 s44, s50, 3\ns_add_u32 s44, s44, s3\ns_sub_u32 s44, s44, 1\ns_mul_i32 s44, s44, %d\ns_add_u32 s45, s45, s44" % (48 * 8192))
        a("s_mul_i32 s46, s3, 6144\ns_add_u32 s46, s46, %d" % (L_WQ - 6144))
        a("s_waitcnt lgkmcnt(0)")
        self.srd(40, 10, 576 * 8192)
        for i in range(6):
            a("s_mov_b32 m0, s46\ns_add_u32 s46, s46, 1024")
            a("buffer_load_dwordx4 v4, s[40:43], s45 offen nt lds")
            a("s_add_u32 s45, s45, %d" % (8 * 8192))
        self.srd(28, 26, 0x10000000)
        self.srd(32, 24, 256)
        a("s_mov_b32 s61, 0")
        a("v_mov_b32 v6, 0\nv_mov_b32 v7, 1")
        a("s_barrier")
        a("s_waitcnt vmcnt(0)")
        a("s_mov_b64 exec, 1\nds_add_u32 v6, v7 offset:%d\ns_mov_b64 exec, -1" % (L_FLAG + 8))
        self.lds_wait(L_FLAG + self.o.get("bgflag", 20), 1, 4, t=12)
        a("L_svc_a:")
        if self.o.get("abl", 0) == 2:
            a("s_cmp_lg_u32 s3, 0\ns_cbranch_scc1 L_end")
            self.flush_stamps([0, 1, 2, 12, 13, 14])
            a("s_endpgm")
        a("s_cmp_lg_u32 s3, 1\ns_cbranch_scc1 L_svc_r")
        a("v_mov_b32 v10, 0")
        a("v_mov_b32 v4, -1\nv_mov_b32 v5, -1\nv_mov_b32 v6, -1\nv_mov_b32 v7, -1\nv_lshlrev_b32 v8, 4, v0")
        a("s_mul_i32 s44, s2, %d\ns_add_u32 s44, s44, 0x%x" % (RESET_PER_WG, SB))
        for i in range(RESET_PER_WG // 1024):
            if i == 4:
                a("s_add_u32 s44, s44, 4096")
            if not self.o.get("noreset", 0):
                a("buffer_store_dwordx4 v[4:7], v8, s[28:31], s44 offen offset:%d sc1" % ((i % 4) * 1024))
        a("v_mov_b32 v9, 1")
        a("s_waitcnt vmcnt(0) lgkmcnt(0)")
        a("s_mov_b64 exec, 1")
        a("buffer_atomic_add v9, v10, s[32:35], 0 offen")
        a("s_mov_b64 exec, -1")
        a("L_svc_r:")
        a("s_cmp_lt_u32 s58, %d\ns_cbranch_scc1 L_ffn" % OP0)
        a("s_cmp_lt_u32 s58, %d\ns_cbranch_scc1 L_oproj" % RED0)
        a("s_cmp_lt_u32 s58, %d\ns_cbranch_scc1 L_red" % (RED0 + N_RED))
        a("s_cmp_lg_u32 s3, 0\ns_cbranch_scc1 L_end")
        a("s_call_b64 s[50:51], L_finish")
        self.flush_stamps([0, 1, 2, 3, 4, 12, 13, 14])
        a("s_endpgm")
        self.finish_attn()
        self.oproj()
        self.reducer()
        self.ffn()

    def oproj(self):
        a = self.a
        WF = 64
        a("L_oproj:")
        a("s_sub_u32 s59, s58, %d" % OP0)
        self.srd(36, 12, 4096 * 1152)
        a("s_mul_i32 s45, s59, 73728\ns_mul_i32 s46, s3, 288\ns_add_u32 s45, s45, s46")
        a("s_mul_i32 s46, s3, 18432\ns_add_u32 s46, s46, %d" % L_WB)
        a("v_mul_u32_u24 v4, 3641, v0\nv_lshrrev_b32 v4, 16, v4")
        a("v_mul_u32_u24 v5, 18, v4\nv_sub_u32 v5, v0, v5")
        a("v_mul_u32_u24 v4, 1152, v4\nv_lshl_add_u32 v4, v5, 4, v4")
        a("v_mov_b32 v7, 864")
        OW = self.o.get("op_win", 3)
        for n in range(18):
            if n >= OW:
                a("s_waitcnt vmcnt(%d)" % (OW - 1))
            a("s_mov_b32 m0, s46\ns_add_u32 s46, s46, 1024")
            a("buffer_load_dwordx4 v4, s[36:39], s45 offen nt lds")
            if n < 17:
                a("v_add_u32 v5, 10, v5\nv_cmp_le_u32 vcc, 18, v5\nv_add_u32 v4, 3616, v4\nv_subrev_u32 v6, 18, v5")
                a("v_cndmask_b32 v5, v5, v6, vcc\nv_cndmask_b32 v6, 0, v7, vcc\nv_add_u32 v4, v4, v6")
        a("v_lshrrev_b32 v4, 2, v1\nv_lshl_add_u32 v4, v2, 3, v4\nv_mul_u32_u24 v4, 288, v4\nv_and_b32 v5, 3, v0\nv_lshl_add_u32 v4, v5, 3, v4")
        a("s_mul_i32 s46, s3, 18432\ns_add_u32 s46, s46, %d\nv_add_u32 v4, s46, v4" % L_WB)
        a("s_waitcnt vmcnt(0)")
        for tt in range(9):
            for ks in range(2):
                for hh in range(2):
                    r = WF + tt * 8 + ks * 4 + hh * 2
                    a("ds_read_b64_tr_b16 v[%d:%d], v4 offset:%d" % (r, r + 1, (32 * ks + 4 * hh) * 288 + tt * 32))
            if tt % 3 == 2:
                a("s_waitcnt lgkmcnt(0)")
        a("v_mul_u32_u24 v51, 384, v1\nv_lshl_add_u32 v50, v2, 5, v51")
        a("v_bfe_u32 v52, v0, 3, 1\nv_lshlrev_b32 v52, 6, v52\nv_lshl_add_u32 v52, v2, 4, v52")
        a("s_mul_i32 s52, s59, 6144\ns_add_u32 s52, s52, 0x%x" % WS_M1)
        a("s_mul_i32 s54, s3, %d\ns_lshl_b32 s55, s59, 7\ns_add_u32 s54, s54, s55\ns_add_u32 s54, s54, 0x%x" % (9 * 8192, WS_M2))
        a("s_mov_b32 s56, 0x01010101\ns_mov_b32 s57, 0x01010101")
        a("s_cmp_lg_u32 s3, 0\ns_cbranch_scc1 L_op_w")
        a("s_call_b64 s[50:51], L_finish")
        a("s_branch L_op_go")
        a("L_op_w:")
        self.lds_wait(L_FLAG, 5, 2)
        a("L_op_go:")
        self.poll_begin("L_op_poll")
        a("buffer_load_dwordx2 v[12:13], v51, s[28:31], s52 offen offset:256 sc1")
        for ks in range(2):
            for hh in range(2):
                r = 16 + 8 * ks + 4 * hh
                a("buffer_load_dwordx4 v[%d:%d], v50, s[28:31], s52 offen offset:%d sc1" % (r, r + 3, ks * 128 + hh * 16))
        self.poll_end("L_op_poll", [12, 13] + list(range(16, 32)), 14)
        self.stamp(5)
        a("v_mov_b32 v14, v12")
        self.oct_reduce("v_max_f32", [14])
        a("v_sub_f32 v12, v12, v14\nv_exp_f32 v12, v12\ns_nop 0\nv_mul_f32 v13, v12, v13")
        self.oct_reduce("v_add_f32", [13])
        a("v_rcp_f32 v13, v13\ns_nop 0\nv_mul_f32 v12, v12, v13")
        for r in range(16, 32):
            a("v_mul_f32 v%d, v12, v%d" % (r, r))
        self.oct_reduce("v_add_f32", list(range(16, 32)))
        for i in range(8):
            a("v_cvt_pk_bf16_f32 v%d, v%d, v%d" % (32 + i, 16 + 2 * i, 17 + 2 * i))
        a("s_nop 1")
        D = 140
        for tt in range(9):
            a("v_mfma_f32_16x16x32_bf16 v[%d:%d], v[%d:%d], v[32:35], 0" % (D + 4 * tt, D + 4 * tt + 3, WF + 8 * tt, WF + 8 * tt + 3))
        for tt in range(9):
            a("v_mfma_f32_16x16x32_bf16 v[%d:%d], v[%d:%d], v[36:39], v[%d:%d]" % (D + 4 * tt, D + 4 * tt + 3, WF + 8 * tt + 4, WF + 8 * tt + 7, D + 4 * tt, D + 4 * tt + 3))
        a("s_mov_b64 exec, s[56:57]")
        for tt in range(9):
            if tt == 8:
                a("s_nop 7")
            a("buffer_store_dwordx4 v[%d:%d], v52, s[28:31], s54 offen sc1" % (D + 4 * tt, D + 4 * tt + 3))
            a("s_add_u32 s54, s54, 8192")
        self.stamp(6)
        if self.diag:
            a("s_cmp_lg_u32 s3, 0\ns_cbranch_scc1 L_end")
            self.flush_stamps([0, 1, 2, 3, 4, 5, 6, 12, 13, 14])
        a("s_endpgm")

    def gather_sum(self, name, G, n, sbase):
        a = self.a
        self.poll_begin(name)
        for i in range(n):
            a("buffer_load_dwordx4 v[%d:%d], v50, s[28:31], s%d offen offset:%d sc1" % (G + 4 * i, G + 4 * i + 3, sbase + i // 4, (i % 4) * 1024))
        for i in range(1, n):
            a("s_waitcnt vmcnt(%d)" % (n - 1 - i))
            a("v_pk_add_f32 v[%d:%d], v[%d:%d], v[%d:%d]" % (G, G + 1, G, G + 1, G + 4 * i, G + 4 * i + 1))
            a("v_pk_add_f32 v[%d:%d], v[%d:%d], v[%d:%d]" % (G + 2, G + 3, G + 2, G + 3, G + 4 * i + 2, G + 4 * i + 3))
        a("s_nop 1")
        a("v_permlane32_swap_b32 v%d, v%d\nv_permlane32_swap_b32 v%d, v%d" % (G, G + 2, G + 1, G + 3))
        a("v_add_f32 v%d, v%d, v%d\nv_add_f32 v%d, v%d, v%d" % (G, G, G + 2, G + 1, G + 1, G + 3))
        a("s_nop 1")
        a("v_permlane16_swap_b32 v%d, v%d" % (G, G + 1))
        a("v_add_f32 v%d, v%d, v%d" % (G, G, G + 1))
        a("s_nop 1")
        self.dpp("v_add_f32", G, G, G, "row_ror:8")
        a("v_cmp_u_f32 vcc, v%d, v%d" % (G, G))
        a("s_add_u32 s60, s60, 1\ns_cmp_gt_u32 s60, %d\ns_cbranch_scc1 %s_x" % (SPIN, name))
        a("s_cbranch_vccnz %s\n%s_x:" % (name, name))

    def round4(self, base, t):
        a = self.a
        a("v_cvt_pk_bf16_f32 v%d, v%d, v%d\nv_cvt_pk_bf16_f32 v%d, v%d, v%d" % (t, base, base + 1, t + 1, base + 2, base + 3))
        a("v_lshlrev_b32 v%d, 16, v%d\nv_and_b32 v%d, s40, v%d" % (base, t, base + 1, t))
        a("v_lshlrev_b32 v%d, 16, v%d\nv_and_b32 v%d, s40, v%d" % (base + 2, t + 1, base + 3, t + 1))

    def reducer(self):
        a = self.a
        a("L_red:")
        a("s_sub_u32 s59, s58, %d" % RED0)
        a("s_cmp_eq_u32 s3, 0\ns_cbranch_scc1 L_red0")
        a("s_cmp_lg_u32 s3, 1\ns_cbranch_scc1 L_end")
        a("s_mul_i32 s52, s59, %d\ns_add_u32 s52, s52, 0x%x" % (144 * 128, WS_M4))
        a("v_mov_b32 v12, -1\nv_mov_b32 v13, -1\nv_mov_b32 v14, -1\nv_mov_b32 v15, -1\nv_lshlrev_b32 v8, 4, v0")
        self.lds_wait(L_FLAG + self.o.get("m4flag", 4), self.o.get("m4cnt", 4), 2)
        for i in range(18):
            a("buffer_store_dwordx4 v[12:15], v8, s[28:31], s52 offen offset:%d sc1" % ((i % 4) * 1024))
            if i % 4 == 3:
                a("s_add_u32 s52, s52, 4096")
        a("v_mov_b32 v9, 0\nv_mov_b32 v10, 1\ns_waitcnt vmcnt(0)")
        a("ds_write_b32 v9, v10 offset:%d" % (L_FLAG + 28))
        a("s_endpgm")
        a("L_red0:")
        self.srd(36, 4, 2304)
        a("v_bfe_u32 v51, v0, 2, 1\nv_mul_u32_u24 v51, 1152, v51\nv_and_b32 v4, 3, v0\nv_lshl_add_u32 v51, v4, 3, v51\nv_lshl_add_u32 v51, v2, 1, v51")
        a("s_lshl_b32 s45, s59, 5\nv_add_u32 v51, s45, v51")
        a("buffer_load_ushort v53, v51, s[36:39], 0 offen")
        a("v_lshlrev_b32 v50, 4, v0")
        a("v_and_b32 v52, 7, v0\nv_lshlrev_b32 v52, 3, v52\nv_bfe_u32 v5, v0, 2, 1\nv_lshlrev_b32 v5, 3, v5\nv_lshl_add_u32 v5, v4, 4, v5\nv_add_u32 v5, 64, v5")
        a("s_mov_b32 s62, 0xffff0000\ns_mov_b32 s63, 0xffff0000")
        a("v_cndmask_b32 v52, v52, v5, s[62:63]\nv_lshrrev_b32 v5, 5, v0\nv_lshl_add_u32 v52, v5, 2, v52")
        a("s_waitcnt vmcnt(0)")
        a("v_lshlrev_b32 v53, 16, v53")
        self.srd(36, 22, 2304)
        a("s_call_b64 s[50:51], L_finish")
        a("s_mov_b32 s40, 0xffff0000")
        a("s_lshl_b32 s52, s59, 13\ns_add_u32 s52, s52, 0x%x\ns_add_u32 s53, s52, 4096" % WS_M2)
        a("s_lshl_b32 s41, s59, 7\ns_add_u32 s41, s41, 0x%x" % WS_M3)
        a("s_mov_b32 s42, 0x00ff00ff\ns_mov_b32 s43, 0x00ff00ff")
        self.lds_wait(L_FLAG + 28, 1, 1, t=12)
        G = 64
        self.gather_sum("L_r1_poll", G, 8, 52)
        self.stamp(5)
        a("v_cvt_pk_bf16_f32 v%d, v%d, v%d\nv_and_b32 v%d, s40, v%d" % (G, G, G, G, G))
        a("v_add_f32 v53, v53, v%d" % G)
        a("v_cvt_pk_bf16_f32 v53, v53, v53\nv_and_b32 v53, s40, v53")
        a("v_mov_b32 v12, v53\nv_mov_b32 v13, v53\ns_nop 1\nv_permlane16_swap_b32 v12, v13")
        a("v_add_f32 v14, v12, v13\nv_mul_f32 v15, v12, v12\nv_fmac_f32 v15, v13, v13")
        a("v_cvt_pk_bf16_f32 v16, v12, v13\ns_nop 0\nv_permlane32_swap_b32 v14, v15")
        a("v_add_f32 v14, v14, v15\ns_nop 1")
        self.dpp("v_add_f32", 14, 14, 14, "quad_perm:[1,0,3,2]")
        a("s_nop 1")
        self.dpp("v_add_f32", 14, 14, 14, "quad_perm:[2,3,0,1]")
        a("v_cndmask_b32 v16, v16, v14, s[62:63]")
        a("s_mov_b64 exec, s[42:43]")
        a("buffer_store_dword v16, v52, s[28:31], s41 offen sc1")
        a("s_mov_b64 exec, -1")
        self.stamp(6)
        a("s_mul_i32 s52, s59, %d\ns_add_u32 s52, s52, 0x%x" % (144 * 128, WS_M4))
        for i in range(1, 5):
            a("s_add_u32 s%d, s52, %d" % (52 + i, 4096 * i))
        a("s_mov_b32 s42, 0x00ff00ff\ns_mov_b32 s43, 0x00ff00ff")
        self.gather_sum("L_r2_poll", G, 18, 52)
        self.stamp(7)
        a("v_cvt_pk_bf16_f32 v%d, v%d, v%d\nv_and_b32 v%d, s40, v%d" % (G, G, G, G, G))
        a("v_add_f32 v53, v53, v%d" % G)
        a("v_cvt_pk_bf16_f32 v53, v53, v53")
        a("s_mov_b64 exec, s[42:43]")
        a("buffer_store_short v53, v51, s[36:39], 0 offen")
        a("s_cmp_lg_u32 s59, 0\ns_cbranch_scc1 L_red_end")
        a("s_mov_b64 exec, 1\nv_mov_b32 v16, s61\nv_mov_b32 v17, 0")
        a("buffer_store_dword v16, v17, s[28:31], 0 offen offset:%d sc1" % WS_EPOCH)
        a("L_red_end:")
        self.stamp(11)
        self.flush_stamps([0, 1, 2, 3, 4, 5, 6, 7, 11, 12, 13, 14])
        a("s_endpgm")

    def ffn(self):
        a = self.a
        GF, DF, HF = 64, 136, 172
        EN = self.o.get("early", 24)
        assert EN % 2 == 0
        EK = EN // 2
        FW = self.o.get("ffn_win", 12)
        EW = self.o.get("early_win", 3)
        def gu_reads(k0, k1):
            n = 0
            for ks in range(k0, k1):
                for hh in range(2):
                    r = GF + 4 * ks + 2 * hh
                    a("ds_read_b64_tr_b16 v[%d:%d], v56 offset:%d" % (r, r + 1, (32 * ks + 4 * hh) * 64))
                if ks % 3 == 2:
                    a("s_waitcnt lgkmcnt(6)")
        a("L_ffn:")
        a("s_mul_i32 s59, s3, 3456\ns_add_u32 s59, s59, %d" % L_HB)
        a("v_mov_b32 v4, 0x3f803f80\nv_mov_b32 v5, v4\nv_mov_b32 v6, v4\nv_mov_b32 v7, v4\nv_lshlrev_b32 v8, 4, v0\nv_add_u32 v8, s59, v8")
        a("ds_write_b128 v8, v[4:7] offset:2304\nds_write_b128 v8, v[4:7] offset:%d" % (2304 + 128))
        a("v_lshrrev_b32 v4, 2, v0\nv_and_b32 v5, 3, v0\nv_lshlrev_b32 v50, 7, v4\nv_lshl_add_u32 v50, v5, 4, v50")
        a("v_add_u32 v51, 4096, v50\nv_subrev_u32 v6, 16, v0\nv_lshlrev_b32 v6, 7, v6\nv_add_u32 v6, 64, v6\nv_cmp_gt_u32 vcc, 16, v0\ns_nop 1\nv_cndmask_b32 v51, v6, v51, vcc")
        a("v_bfe_u32 v52, v0, 1, 1\nv_mul_u32_u24 v52, 1152, v52\nv_lshl_add_u32 v52, v4, 5, v52\nv_and_b32 v6, 1, v0\nv_lshl_add_u32 v52, v6, 4, v52\nv_add_u32 v52, s59, v52")
        a("v_bfe_u32 v53, v0, 2, 1\nv_cmp_eq_u32 vcc, 1, v6\ns_nop 1\nv_cndmask_b32 v53, v53, 2, vcc")
        a("v_mul_u32_u24 v53, 1152, v53\nv_lshl_add_u32 v53, v2, 4, v53\nv_add_u32 v53, s59, v53")
        a("s_lshl_b32 s45, s3, 3\nv_add_u32 v7, s45, v1\nv_bfe_u32 v54, v7, 2, 2\nv_lshlrev_b32 v54, 4, v54\nv_bfe_u32 v8, v7, 4, 1\nv_lshl_add_u32 v54, v8, 3, v54")
        a("v_lshl_add_u32 v54, v5, 1, v54\nv_and_b32 v8, 1, v2\nv_lshl_add_u32 v54, v8, 6, v54")
        a("v_lshlrev_b32 v55, 6, v6\nv_lshl_add_u32 v55, v2, 4, v55")
        a("v_lshrrev_b32 v7, 2, v1\nv_lshl_add_u32 v7, v2, 3, v7")
        a("v_bfe_u32 v56, v0, 1, 1\nv_mul_u32_u24 v56, %d, v56\nv_lshl_add_u32 v56, v7, 6, v56\nv_lshl_add_u32 v56, v6, 3, v56" % (L_UP - L_WB))
        a("v_xor_b32 v8, s3, v8\nv_lshl_add_u32 v56, v8, 4, v56\nv_add_u32 v56, %d, v56" % L_WB)
        a("v_mul_u32_u24 v57, 1184, v4\nv_lshl_add_u32 v57, v5, 3, v57")
        a("s_mul_i32 s45, s3, 288\ns_add_u32 s45, s45, %d\nv_add_u32 v57, s45, v57" % L_DN)
        a("s_mul_i32 s54, s3, %d\ns_lshl_b32 s55, s58, 7\ns_add_u32 s54, s54, s55\ns_add_u32 s54, s54, 0x%x" % (9 * 144 * 128, WS_M4))
        a("s_cmp_lg_u32 s3, 0\ns_cbranch_scc1 L_ffn_w")
        a("s_call_b64 s[50:51], L_finish")
        if EK:
            a("s_call_b64 s[50:51], L_ffn_er")
        a("s_branch L_ffn_c")
        if EK:
            a("L_ffn_er:")
            self.lds_wait(L_FLAG + 24, 2, 2, t=12)
            gu_reads(0, EK)
            a("s_waitcnt lgkmcnt(0)")
            a("s_setpc_b64 s[50:51]")
        a("L_ffn_w:")
        a("s_setprio 0")
        a("s_cmp_eq_u32 s3, 3\ns_cbranch_scc1 L_ffn_dn")
        a("s_cmp_eq_u32 s3, 1\ns_cselect_b32 s36, s16, s18\ns_cselect_b32 s37, s17, s19\ns_mov_b32 s38, %d\ns_mov_b32 s39, 0x20000" % (576 * 9216))
        a("s_cselect_b32 s46, 0, %d\ns_add_u32 s46, s46, %d" % (L_UP - L_WB, L_WB))
        a("s_lshl_b32 s45, s58, 6")
        a("v_mul_u32_u24 v4, 9216, v4\nv_lshrrev_b32 v7, 5, v0\nv_xor_b32 v5, v5, v7\nv_lshl_add_u32 v4, v5, 4, v4")
        a("s_mov_b32 s48, 0")
        if EN:
            a("L_ffn_lde:")
            a("s_mov_b32 m0, s46\ns_add_u32 s46, s46, 1024")
            a("buffer_load_dwordx4 v4, s[36:39], s45 offen nt lds")
            a("s_add_u32 s45, s45, %d\ns_add_u32 s48, s48, 1" % (16 * 9216))
            a("s_waitcnt vmcnt(%d)" % (EW - 1))
            a("s_cmp_lt_u32 s48, %d\ns_cbranch_scc1 L_ffn_lde" % EN)
            a("v_mov_b32 v8, 0\nv_mov_b32 v9, 1\ns_waitcnt vmcnt(0)")
            a("s_mov_b64 exec, 1\nds_add_u32 v8, v9 offset:%d\ns_mov_b64 exec, -1" % (L_FLAG + 24))
            a("s_call_b64 s[50:51], L_ffn_er")
        if EN < 36:
            self.lds_wait(L_FLAG, 6, 1, t=12)
            a("L_ffn_ldl:")
            a("s_mov_b32 m0, s46\ns_add_u32 s46, s46, 1024")
            a("buffer_load_dwordx4 v4, s[36:39], s45 offen nt lds")
            a("s_add_u32 s45, s45, %d\ns_add_u32 s48, s48, 1" % (16 * 9216))
            a("s_waitcnt vmcnt(%d)" % (FW - 1))
            a("s_cmp_lt_u32 s48, 36\ns_cbranch_scc1 L_ffn_ldl")
            a("s_waitcnt vmcnt(0)")
        a("s_branch L_ffn_c")
        a("L_ffn_dn:")
        self.srd(36, 20, 4608 * 1152)
        a("s_mul_i32 s45, s58, 36864\ns_mov_b32 s46, %d\ns_mov_b32 s48, 0" % L_DN)
        a("v_lshlrev_b32 v4, 4, v0\nv_mov_b32 v5, v0\nv_mov_b32 v7, 32")
        if EK:
            a("s_call_b64 s[50:51], L_ffn_er")
        self.lds_wait(L_FLAG, 6, 1, t=12)
        a("L_ffn_ldd:")
        a("s_mov_b32 m0, s46\ns_add_u32 s46, s46, 1024")
        a("buffer_load_dwordx4 v4, s[36:39], s45 offen nt lds")
        a("v_add_u32 v5, 64, v5\nv_cmp_le_u32 vcc, 74, v5\nv_add_u32 v4, 1024, v4\nv_subrev_u32 v6, 74, v5\ns_add_u32 s48, s48, 1")
        a("v_cndmask_b32 v5, v5, v6, vcc\nv_cndmask_b32 v6, 0, v7, vcc\nv_sub_u32 v4, v4, v6")
        a("s_waitcnt vmcnt(%d)" % (self.o.get("dn_win", 12) - 1))
        a("s_cmp_lt_u32 s48, 37\ns_cbranch_scc1 L_ffn_ldd")
        a("s_waitcnt vmcnt(0)")
        a("L_ffn_c:")
        a("s_mov_b32 s40, 0xffff0000")
        a("s_mov_b32 s41, 0x%x\ns_mov_b32 s42, 0x%x" % (f32(0.044715), f32(-2.0 * math.sqrt(2.0 / math.pi) * LOG2E)))
        a("s_mov_b32 s45, 0x%x" % WS_M3)
        a("s_mov_b32 s46, -1\ns_mov_b32 s47, 0x000fffff")
        a("s_mov_b32 s52, 0xffff0000\ns_mov_b32 s53, -1")
        a("s_mov_b32 s56, 0x00030003\ns_mov_b32 s57, 0x00030003")
        a("v_mov_b32 v24, 0\nv_mov_b32 v25, 0\nv_mov_b32 v26, 0\nv_mov_b32 v27, 0")
        a("s_barrier")
        self.stamp(5)
        def h_loads():
            a("buffer_load_dwordx4 v[16:19], v50, s[28:31], s45 offen sc1")
            a("buffer_load_dwordx4 v[20:23], v50, s[28:31], s45 offen offset:2048 sc1")
            a("s_mov_b64 exec, s[46:47]")
            a("buffer_load_dwordx4 v[24:27], v51, s[28:31], s45 offen sc1")
            a("s_mov_b64 exec, -1")
        h_loads()
        gu_reads(EK, 18)
        for t in range(9):
            for hh in range(2):
                r = DF + 4 * t + 2 * hh
                a("ds_read_b64_tr_b16 v[%d:%d], v57 offset:%d" % (r, r + 1, 16 * hh * 1184 + t * 32))
            if t % 3 == 0:
                a("s_waitcnt lgkmcnt(6)")
        a("s_mov_b32 s60, 0\ns_branch L_h_chk")
        a("L_h_poll:")
        h_loads()
        a("L_h_chk:")
        self.poll_end("L_h_poll", range(16, 28), 14)
        self.stamp(6)
        a("ds_write_b128 v52, v[16:19]\nds_write_b128 v52, v[20:23] offset:512")
        a("s_mov_b64 exec, 0xffff")
        a("ds_write_b128 v52, v[24:27] offset:1024")
        a("s_mov_b64 exec, -1")
        for r in range(4):
            a("v_cndmask_b32 v%d, 0, v%d, s[52:53]" % (28 + r, 24 + r))
        a("s_waitcnt lgkmcnt(0)")
        for ks in range(12):
            a("ds_read_b128 v[%d:%d], v53 offset:%d" % (HF + 4 * ks, HF + 4 * ks + 3, ks * 64))
        stats = [
            "v_permlane32_swap_b32 v28, v29\nv_permlane32_swap_b32 v30, v31",
            "v_add_f32 v28, v28, v29\nv_add_f32 v30, v30, v31",
            "v_permlane16_swap_b32 v28, v30\nv_add_f32 v28, v28, v30",
            "v_add_f32_dpp v28, v28, v28 row_ror:8 row_mask:0xf bank_mask:0xf",
            "v_add_f32_dpp v28, v28, v28 row_ror:4 row_mask:0xf bank_mask:0xf",
            "v_add_f32_dpp v28, v28, v28 row_ror:2 row_mask:0xf bank_mask:0xf",
            "v_add_f32_dpp v28, v28, v28 row_ror:1 row_mask:0xf bank_mask:0xf",
            "v_mul_f32 v28, 0x%x, v28\nv_mov_b32 v30, v28" % f32(1.0 / 576),
            "v_permlane32_swap_b32 v28, v30",
            "v_fma_f32 v30, -v28, v28, v30\nv_max_f32 v30, 0, v30",
            "v_cvt_pk_bf16_f32 v29, v28, v30\nv_and_b32 v30, s40, v29",
            "v_add_f32 v30, 0x%x, v30\nv_lshlrev_b32 v28, 16, v29" % f32(1e-5),
            "v_cvt_pk_bf16_f32 v30, v30, v30\nv_and_b32 v30, s40, v30",
            "v_sqrt_f32 v30, v30",
            "v_cvt_pk_bf16_f32 v30, v30, v30\nv_and_b32 v30, s40, v30",
            "v_rcp_f32 v30, v30",
            "", "",
        ]
        for ks in range(18):
            out = min(18, ks + 12) - ks - 1
            a("s_waitcnt lgkmcnt(%d)" % out)
            a("v_mfma_f32_16x16x32_bf16 v[12:15], v[%d:%d], v[%d:%d], %s" % (HF + 4 * ks, HF + 4 * ks + 3, GF + 4 * ks, GF + 4 * ks + 3, "0" if ks == 0 else "v[12:15]"))
            if ks + 12 < 18:
                k2 = ks + 12
                a("ds_read_b128 v[%d:%d], v53 offset:%d" % (HF + 4 * k2, HF + 4 * k2 + 3, k2 * 64))
            if stats[ks]:
                a(stats[ks])
        a("s_nop 7")
        a("v_fma_f32 v12, -v28, v13, v12\nv_mul_f32 v12, v12, v30")
        a("v_cvt_pk_bf16_f32 v12, v12, v12\nv_and_b32 v12, s40, v12")
        a("v_mul_f32 v13, v12, v12\nv_fma_f32 v13, v13, s41, 1.0\nv_mul_f32 v14, s42, v12\nv_mul_f32 v13, v13, v14")
        a("v_exp_f32 v13, v13\ns_nop 0\nv_add_f32 v13, 1.0, v13\nv_rcp_f32 v13, v13\ns_nop 0\nv_mul_f32 v13, v12, v13")
        a("v_cvt_pk_bf16_f32 v13, v13, v13\nv_and_b32 v13, s40, v13")
        a("v_mul_f32_dpp v13, v12, v13 row_ror:8 row_mask:0xf bank_mask:0xf")
        a("v_cvt_pk_bf16_f32 v13, v13, v13")
        a("s_mov_b64 exec, 0x00ff00ff")
        a("ds_write_b16 v54, v13 offset:%d" % L_ACT)
        a("s_mov_b64 exec, -1")
        a("s_waitcnt lgkmcnt(0)")
        a("s_barrier")
        a("ds_read_b128 v[20:23], v55 offset:%d" % L_ACT)
        a("s_waitcnt lgkmcnt(0)")
        D = 64
        for t in range(9):
            a("v_mfma_f32_16x16x32_bf16 v[%d:%d], v[%d:%d], v[20:23], 0" % (D + 4 * t, D + 4 * t + 3, DF + 4 * t, DF + 4 * t + 3))
        a("s_mov_b64 exec, s[56:57]")
        for t in range(9):
            a("buffer_store_dwordx4 v[%d:%d], v55, s[28:31], s54 offen sc1" % (D + 4 * t, D + 4 * t + 3))
            a("s_add_u32 s54, s54, %d" % (144 * 128))
        self.stamp(7)
        if self.diag:
            a("s_cmp_lg_u32 s3, 0\ns_cbranch_scc1 L_end")
            self.flush_stamps([0, 1, 2, 3, 4, 5, 6, 7, 12, 13, 14])
        a("s_endpgm")

    def build(self):
        a = self.a
        a("s_cmp_ge_u32 s2, 256\ns_cbranch_scc1 L_end")
        a("s_load_dwordx16 s[4:19], s[0:1], 0\ns_load_dwordx8 s[20:27], s[0:1], 64")
        if self.diag:
            for k in range(NSTAMP):
                a("s_mov_b64 s[%d:%d], 0" % (64 + 2 * k, 65 + 2 * k))
        self.stamp(0)
        a("v_lshrrev_b32 v1, 6, v0\nv_and_b32 v0, 63, v0")
        a("v_readfirstlane_b32 s3, v1")
        a("v_mov_b32 v4, 0\nv_mov_b32 v5, 0\nv_mov_b32 v6, 0\nv_mov_b32 v7, 0")
        a("ds_write_b128 v4, v[4:7] offset:%d\nds_write_b128 v4, v[4:7] offset:%d" % (L_FLAG, L_FLAG + 16))
        a("s_and_b32 s44, s2, 7\ns_lshr_b32 s45, s2, 3\ns_add_u32 s46, s44, s45\ns_and_b32 s46, s46, 7\ns_lshr_b32 s47, s45, 3")
        a("s_mul_i32 s48, s44, 18\ns_lshl_b32 s49, s46, 2\ns_add_u32 s58, s48, s49\ns_add_u32 s58, s58, s47\ns_sub_u32 s58, s58, 12")
        a("s_add_u32 s48, s44, %d\ns_cmp_lt_u32 s44, 4\ns_cselect_b32 s48, s48, 255\ns_cmp_eq_u32 s47, 2\ns_cselect_b32 s48, s48, 255" % (RED0 + 32))
        a("s_cmp_lt_u32 s47, 2\ns_cselect_b32 s48, s58, s48\ns_cmp_eq_u32 s46, 7\ns_cselect_b32 s58, s48, s58")
        a("s_add_u32 s48, s45, %d\ns_cmp_eq_u32 s46, 2\ns_cselect_b32 s58, s48, s58" % RED0)
        a("s_lshl_b32 s48, s45, 1\ns_add_u32 s48, s48, s46\ns_add_u32 s48, s48, %d\ns_cmp_lt_u32 s46, 2\ns_cselect_b32 s58, s48, s58" % OP0)
        a("s_cmp_ge_u32 s3, 4\ns_cbranch_scc1 L_stream")
        self.service()
        self.streaming()
        a("L_end:\ns_endpgm")
        return wrap(a.text(), 256, 512, LDS_BYTES, 256, 100, accum=256)


if __name__ == "__main__":
    import argparse
    ap = argparse.ArgumentParser()
    ap.add_argument("out")
    ap.add_argument("--diag", action="store_true")
    ap.add_argument("--opt", action="append", default=[])
    args = ap.parse_args()
    opts = {}
    for o in args.opt:
        k, v = o.split("=", 1)
        try: v = int(v)
        except ValueError: pass
        opts[k] = v
    open(args.out, "w").write(Gen(diag=args.diag, nback=opts.get('nback', 5), win=opts.get('win', 8), opts=opts).build())
```

```python
import sys, struct, math
from asmlib import *

def f32(x):
    return struct.unpack("<I", struct.pack("<f", x))[0]

WS_EPOCH = 0x0
WS_CTR = 0x1000
WS_MQ = 0x180000
SB = 0x10000
WS_M1 = SB + 0x0
WS_M2 = SB + 0x60000
WS_M3 = SB + 0xA8000
WS_M4 = SB + 0xC0000
RESET_PER_WG = 3072
WS_STAMP = 0x8000000
NSTAMP = 16
L_Q = 0x0
L_XN = 0x200
L_ACT = 0xB00
L_PML = 0xB80
L_FLAG = 0xBC0
L_PACC = 0xC00
L_WQ = 0x2000
L_WB = 0x6800
L_UP = L_WB + 36864 + 32
L_DN = L_WB + 73728 + 64
L_HB = L_DN + 37888
LDS_BYTES = L_HB + 4 * 3456 + 128
N_FFN, N_OP, N_RED = 144, 64, 36
OP0 = N_FFN
RED0 = N_FFN + N_OP
SPIN = 200000
LOG2E = 1.4426950408889634
EPOCH_INC = 0x9E3779B9


class Gen:
    def __init__(self, diag=False, nback=4, win=8, opts=None):
        self.a = Asm()
        self.diag = diag
        self.nback = nback
        self.win = win
        self.o = opts or {}

    def stamp(self, k):
        if self.diag:
            self.a("s_memrealtime s[%d:%d]" % (64 + 2 * k, 65 + 2 * k))

    def flush_stamps(self, ks):
        if not self.diag:
            return
        a = self.a
        a("s_waitcnt lgkmcnt(0)")
        a("s_mov_b64 exec, 1")
        a("s_mul_i32 s96, s2, %d\ns_add_u32 s96, s96, 0x%x" % (NSTAMP * 8, WS_STAMP))
        a("v_mov_b32 v252, 0")
        for k in ks:
            a("v_mov_b32 v250, s%d\nv_mov_b32 v251, s%d" % (64 + 2 * k, 65 + 2 * k))
            a("buffer_store_dwordx2 v[250:251], v252, s[28:31], s96 offen offset:%d" % (8 * k))
            a("s_nop 1")

    def srd(self, d, lo, size, add=None):
        a = self.a
        if add is None:
            a("s_mov_b32 s%d, s%d\ns_mov_b32 s%d, s%d" % (d, lo, d + 1, lo + 1))
        else:
            a("s_add_u32 s%d, s%d, %s\ns_addc_u32 s%d, s%d, 0" % (d, lo, add, d + 1, lo + 1))
        a("s_mov_b32 s%d, 0x%x\ns_mov_b32 s%d, 0x20000" % (d + 2, size, d + 3))

    def xrow(self, op, x, t, halves=True, rows=True):
        a = self.a
        if rows:
            a("v_mov_b32 v%d, v%d\ns_nop 1\nv_permlane16_swap_b32 v%d, v%d\ns_nop 0\n%s v%d, v%d, v%d" % (t, x, x, t, op, x, x, t))
        if halves:
            a("v_mov_b32 v%d, v%d\ns_nop 1\nv_permlane32_swap_b32 v%d, v%d\ns_nop 0\n%s v%d, v%d, v%d" % (t, x, x, t, op, x, x, t))

    def dpp(self, op, d, s0, s1, ctrl, bank=0xf):
        self.a("%s_dpp v%d, v%d, v%d %s row_mask:0xf bank_mask:0x%x" % (op, d, s0, s1, ctrl, bank))

    def row_reduce(self, op, regs):
        for ctrl in ("row_ror:8", "row_ror:4", "row_ror:2", "row_ror:1"):
            if len(regs) < 3:
                self.a("s_nop 1")
            for r in regs:
                self.dpp(op, r, r, r, ctrl)

    def oct_reduce(self, op, regs):
        for ctrl in ("row_half_mirror", "quad_perm:[1,0,3,2]", "quad_perm:[2,3,0,1]"):
            if len(regs) < 3:
                self.a("s_nop 1")
            for r in regs:
                self.dpp(op, r, r, r, ctrl)

    def layernorm(self, X, T, ldsaddr):
        a = self.a
        s, t, m, r = T, T + 1, T + 2, T + 3
        D = T + 4
        a("v_add_f32 v%d, v%d, v%d" % (s, X, X + 1))
        a("v_add_f32 v%d, v%d, v%d" % (t, X + 2, X + 3))
        for i in range(4, 18, 2):
            a("v_add_f32 v%d, v%d, v%d\nv_add_f32 v%d, v%d, v%d" % (s, s, X + i, t, t, X + i + 1))
        a("v_add_f32 v%d, v%d, v%d" % (s, s, t))
        self.row_reduce("v_add_f32", [s])
        self.xrow("v_add_f32", s, t, halves=False)
        a("v_mul_f32 v%d, 0x%x, v%d" % (m, f32(1.0 / 576), s))
        for i in range(18):
            a("v_sub_f32 v%d, v%d, v%d" % (D + i, X + i, m))
        a("v_mul_f32 v%d, v%d, v%d\nv_mul_f32 v%d, v%d, v%d" % (s, D, D, t, D + 1, D + 1))
        for i in range(2, 18, 2):
            a("v_fmac_f32 v%d, v%d, v%d\nv_fmac_f32 v%d, v%d, v%d" % (s, D + i, D + i, t, D + i + 1, D + i + 1))
        a("v_add_f32 v%d, v%d, v%d" % (s, s, t))
        self.row_reduce("v_add_f32", [s])
        self.xrow("v_add_f32", s, t, halves=False)
        a("v_mul_f32 v%d, 0x%x, v%d" % (s, f32(1.0 / 576), s))
        a("v_cvt_pk_bf16_f32 v%d, v%d, v%d" % (t, m, s))
        a("s_mov_b32 s40, 0xffff0000")
        a("v_lshlrev_b32 v%d, 16, v%d\nv_and_b32 v%d, s40, v%d" % (m, t, s, t))
        a("v_add_f32 v%d, 0x%x, v%d" % (s, f32(1e-5), s))
        a("v_cvt_pk_bf16_f32 v%d, v%d, v%d" % (s, s, s))
        a("v_and_b32 v%d, s40, v%d" % (s, s))
        a("v_sqrt_f32 v%d, v%d\ns_nop 0" % (s, s))
        a("v_cvt_pk_bf16_f32 v%d, v%d, v%d" % (s, s, s))
        a("v_and_b32 v%d, s40, v%d" % (s, s))
        a("v_rcp_f32 v%d, v%d" % (r, s))
        for i in range(18):
            a("v_sub_f32 v%d, v%d, v%d" % (D + i, X + i, m))
        for j in range(9):
            a("v_cvt_pk_bf16_f32 v%d, v%d, v%d" % (D + 2 * j + 1, D + 2 * j, D + 2 * j + 1))
        for j in range(9):
            a("v_lshlrev_b32 v%d, 16, v%d\nv_and_b32 v%d, s40, v%d" % (D + 2 * j, D + 2 * j + 1, D + 2 * j + 1, D + 2 * j + 1))
        for i in range(18):
            a("v_mul_f32 v%d, v%d, v%d" % (D + i, D + i, r))
        for j in range(9):
            a("v_cvt_pk_bf16_f32 v%d, v%d, v%d" % (D + 2 * j, D + 2 * j, D + 2 * j + 1))
        for j in range(9):
            a("ds_write_b32 v%d, v%d offset:%d" % (ldsaddr, D + 2 * j, j * 128))

    def poll_begin(self, name):
        self.a("s_mov_b32 s60, 0\n%s:" % name)

    def poll_end(self, name, regs, t):
        a = self.a
        a("s_waitcnt vmcnt(0)")
        regs = list(regs)
        first = True
        while regs:
            if first:
                if len(regs) >= 3:
                    a("v_max3_u32 v%d, v%d, v%d, v%d" % (t, regs[0], regs[1], regs[2])); regs = regs[3:]
                else:
                    a("v_max_u32 v%d, v%d, v%d" % (t, regs[0], regs[-1])); regs = regs[2:]
                first = False
            elif len(regs) >= 2:
                a("v_max3_u32 v%d, v%d, v%d, v%d" % (t, t, regs[0], regs[1])); regs = regs[2:]
            else:
                a("v_max_u32 v%d, v%d, v%d" % (t, t, regs[0])); regs = []
        a("v_cmp_eq_u32 vcc, -1, v%d" % t)
        a("s_add_u32 s60, s60, 1\ns_cmp_gt_u32 s60, %d\ns_cbranch_scc1 %s_x" % (SPIN, name))
        a("s_cbranch_vccnz %s\n%s_x:" % (name, name))

    def ticket(self, KR, VR, ring):
        a = self.a
        QA, QB, SA, SBR, T0, T1, MT, M, ML, LS, ACC, AF, MK = 10, 14, 18, 22, 26, 27, 28, 29, 30, 31, 32, 36, 5
        for j in range(4):
            if ring and j > 0:
                a("s_waitcnt vmcnt(8)")
            k = KR + 4 * j
            for e in range(4):
                a("v_dot2_f32_bf16 v%d, v%d, v%d, %s" % (SA + j, k + e, QA + e, "0" if e == 0 else "v%d" % (SA + j)))
                a("v_dot2_f32_bf16 v%d, v%d, v%d, %s" % (SBR + j, k + e, QB + e, "0" if e == 0 else "v%d" % (SBR + j)))
            if ring:
                a("buffer_load_dwordx4 v[%d:%d], v1, s[36:39], s45 offen offset:%d nt" % (k, k + 3, j * 1024))
        for j in range(4):
            self.dpp("v_add_f32", SA + j, SA + j, SA + j, "row_ror:8", 0x3)
        for j in range(4):
            self.dpp("v_add_f32", SA + j, SBR + j, SBR + j, "row_ror:8", 0xc)
        self.oct_reduce("v_add_f32", [SA + j for j in range(4)])
        for rnd in range(2):
            a("v_cvt_pk_bf16_f32 v%d, v%d, v%d\nv_cvt_pk_bf16_f32 v%d, v%d, v%d" % (T0, SA, SA + 1, T1, SA + 2, SA + 3))
            a("v_lshlrev_b32 v%d, 16, v%d\nv_and_b32 v%d, s46, v%d" % (SA, T0, SA + 1, T0))
            a("v_lshlrev_b32 v%d, 16, v%d\nv_and_b32 v%d, s46, v%d" % (SA + 2, T1, SA + 3, T1))
            if rnd == 0:
                for j in range(4):
                    a("v_mul_f32 v%d, s47, v%d" % (SA + j, SA + j))
        a("v_max3_f32 v%d, v%d, v%d, v%d\nv_max_f32 v%d, v%d, v%d" % (MT, SA, SA + 1, SA + 2, MT, MT, SA + 3))
        a("v_cmp_gt_f32 vcc, v%d, v%d" % (MT, M))
        lab = a.label("L_nors")
        a("s_cbranch_vccz %s\ns_call_b64 s[50:51], L_rescale\n%s:" % (lab, lab))
        for j in range(4):
            a("v_fma_f32 v%d, v%d, s48, -v%d" % (SA + j, SA + j, ML))
        for j in range(4):
            a("v_exp_f32 v%d, v%d" % (SA + j, SA + j))
        a("s_nop 0")
        for j in range(4):
            a("v_cvt_pk_bf16_f32 v%d, v%d, v%d" % (SBR + j, SA + j, SA + j))
        a("v_add_f32 v%d, v%d, v%d\nv_add_f32 v%d, v%d, v%d" % (T0, SA, SA + 1, T1, SA + 2, SA + 3))
        for j in range(4):
            for e in range(4):
                a("v_and_b32 v%d, v%d, v%d" % (AF + 4 * j + e, MK + e, SBR + j))
        a("v_add_f32 v%d, v%d, v%d\nv_add_f32 v%d, v%d, v%d" % (T0, T0, T1, LS, LS, T0))
        for j in range(4):
            if ring:
                a("s_waitcnt vmcnt(8)")
            v = VR + 4 * j
            a("v_mfma_f32_16x16x32_bf16 v[%d:%d], v[%d:%d], v[%d:%d], v[%d:%d]" % (ACC, ACC + 3, AF + 4 * j, AF + 4 * j + 3, v, v + 3, ACC, ACC + 3))
            if ring:
                a("buffer_load_dwordx4 v[%d:%d], v1, s[40:43], s45 offen offset:%d nt" % (v, v + 3, j * 1024))

    def streaming(self):
        a = self.a
        NB = self.nback
        NS = self.o.get("nstatic", 11)
        LIMF = self.o.get("limf", 512)
        assert NS >= 2 * NB + 1 and NS >= NB + 2
        RING, BACK = 52, 84
        a("L_stream:")
        a("s_sub_u32 s44, s3, 4")
        a("v_lshlrev_b32 v1, 4, v0")
        a("s_lshr_b32 s56, s2, 3\ns_lshl_b32 s46, s56, 21")
        a("s_and_b32 s45, s2, 7\ns_mul_i32 s45, s45, %d\ns_add_u32 s45, s45, s44\ns_lshl_b32 s45, s45, 12" % (NS * 4))
        a("s_waitcnt lgkmcnt(0)")
        self.srd(36, 6, 0x200000, "s46")
        self.srd(40, 8, 0x200000, "s46")
        n = 0
        for tk in range(NB + 1):
            base = BACK + 32 * tk if tk < NB else RING
            for kv in range(2):
                for j in range(4):
                    if n >= self.win:
                        a("s_waitcnt vmcnt(%d)" % (self.win - 1))
                    r = base + 16 * kv + 4 * j
                    a("buffer_load_dwordx4 v[%d:%d], v1, s[%d:%d], s45 offen offset:%d nt" % (r, r + 3, 36 + 4 * kv, 39 + 4 * kv, j * 1024))
                    n += 1
                    if n == self.o.get("qgo", (NB - 1) * 8):
                        a("ds_write_b32 v2, v3 offset:%d" % (L_FLAG + 12))
                    if n == self.win:
                        self.stamp(15)
                        self.srd(28, 26, 0x10000000)
                        a("v_and_b32 v26, 1, v0\nv_lshlrev_b32 v26, 4, v26\nv_mov_b32 v27, 0xffff\nv_lshlrev_b32 v27, v26, v27")
                        a("v_bfe_u32 v26, v0, 1, 2")
                        for e in range(4):
                            a("v_cmp_eq_u32 vcc, %d, v26\ns_nop 1\nv_cndmask_b32 v%d, 0, v27, vcc" % (e, 5 + e))
                        a("v_mov_b32 v29, 0x%x\nv_mov_b32 v30, 0x%x\nv_mov_b32 v31, 0" % (f32(-1e38), f32(-1e38 * LOG2E)))
                        a("v_mov_b32 v32, 0\nv_mov_b32 v33, 0\nv_mov_b32 v34, 0\nv_mov_b32 v35, 0")
                        a("s_mov_b32 s46, 0xffff0000\ns_mov_b32 s47, 0x%x\ns_mov_b32 s48, 0x%x" % (f32(128 ** -0.5), f32(LOG2E)))
                        a("s_mov_b32 s52, 0\ns_mov_b32 s53, -1")
                        a("v_and_b32 v9, 15, v0\nv_lshlrev_b32 v9, 4, v9")
                        a("v_mov_b32 v2, 0\nv_mov_b32 v3, 1\nv_mov_b32 v4, 0")
                        a("s_lshl_b32 s56, s56, 8\ns_add_u32 s56, s56, 0x%x" % WS_CTR)
                        a("s_barrier")
            if tk < NB:
                a("s_add_u32 s45, s45, 0x4000")
        self.stamp(8)
        if self.o.get("abl", 0) != 1:
            self.lds_wait(L_FLAG + 20, 1, 1, t=26)
        self.stamp(9)
        a("ds_read_b128 v[10:13], v9 offset:%d\nds_read_b128 v[14:17], v9 offset:%d" % (L_Q, L_Q + 256))
        a("s_mov_b32 s49, 0")
        a("s_waitcnt lgkmcnt(0)")
        a("L_sloop:")
        a("s_waitcnt vmcnt(7)")
        a("v_readfirstlane_b32 s57, v4")
        a("s_add_u32 s45, s45, 0x4000")
        a("s_mov_b64 exec, 1\nv_mov_b32 v4, 1")
        a("s_add_u32 s57, s57, %d\ns_lshl_b32 s57, s57, 12" % (NS * 32))
        a("s_cmp_lt_u32 s49, %d\ns_cselect_b32 s45, s45, s57" % (NS - NB - 1))
        EG = self.o.get("endgame", 32)
        a("s_cmp_lt_u32 s49, %d\ns_cbranch_scc1 L_sdummy" % (NS - NB - 2))
        a("s_cmp_ge_u32 s45, 0x%x\ns_cbranch_scc1 L_sstop" % ((512 - EG) * 4096))
        a("buffer_atomic_add v4, v2, s[28:31], s56 offen sc0")
        a("s_branch L_sgo")
        a("L_sstop:")
        a("s_mov_b64 exec, -1")
        a("s_cmp_ge_u32 s45, 0x200000\ns_cbranch_scc1 L_sst2")
        for kv in range(2):
            for j in range(4):
                r = BACK + 16 * kv + 4 * j
                a("buffer_load_dwordx4 v[%d:%d], v1, s[%d:%d], s45 offen offset:%d nt" % (r, r + 3, 36 + 4 * kv, 39 + 4 * kv, j * 1024))
        a("s_mov_b32 s49, 0")
        a("L_sst2:")
        a("s_mov_b32 s38, 0\ns_mov_b32 s42, 0")
        a("s_mov_b64 exec, 1")
        a("ds_add_u32 v2, v3 offset:%d" % (L_FLAG + 4))
        a("L_sdummy:")
        a("buffer_load_dword v9, v2, s[28:31], s56 offen offset:128")
        a("L_sgo:")
        a("s_cmp_lg_u32 s49, %d\ns_cbranch_scc1 L_sgo2" % self.o.get("rchk", 4))
        a("ds_write_b32 v2, v3 offset:%d" % (L_FLAG + 16))
        a("L_sgo2:")
        a("s_mov_b64 exec, -1")
        self.ticket(RING, RING + 16, True)
        for k in range(NB):
            a("s_cmp_eq_u32 s49, %d\ns_cbranch_scc1 L_back%d" % (k, k))
        a("L_scont:")
        a("s_add_u32 s49, s49, 1\ns_cmp_lg_u32 s38, 0\ns_cbranch_scc1 L_sloop")
        self.xrow("v_add_f32", 31, 26)
        a("s_lshl_b32 s45, s44, 10")
        a("v_add_u32 v26, s45, v1")
        a("ds_write_b128 v26, v[32:35] offset:%d" % L_PACC)
        a("s_lshl_b32 s45, s44, 4")
        a("v_add_u32 v27, s45, v0")
        a("s_mov_b64 exec, 0x101")
        a("ds_write_b64 v27, v[30:31] offset:%d" % L_PML)
        a("s_mov_b64 exec, 1")
        a("ds_add_u32 v2, v3 offset:%d" % L_FLAG)
        self.stamp(10)
        if self.diag:
            if self.o.get("abl", 0):
                a("s_cmp_lg_u32 s3, 7\ns_cbranch_scc1 L_nw7")
                a("s_waitcnt lgkmcnt(0)\ns_mov_b64 s[70:71], s[84:85]")
                self.flush_stamps([3])
                a("L_nw7:")
            a("s_cmp_lg_u32 s3, 4\ns_cbranch_scc1 L_end")
            self.flush_stamps([8, 9, 10, 15])
        a("s_endpgm")
        for k in range(NB):
            a("L_back%d:" % k)
            if k == 0:
                a("s_waitcnt vmcnt(8)")
            self.ticket(BACK + 32 * k, BACK + 32 * k + 16, False)
            a("s_branch L_scont")
        a("L_rescale:")
        a("v_max_f32 v28, v28, v29")
        self.xrow("v_max_f32", 28, 26)
        a("v_mov_b32 v29, v28\nv_mul_f32 v27, s48, v28\nv_sub_f32 v26, v30, v27\nv_exp_f32 v26, v26\nv_mov_b32 v30, v27")
        a("v_mul_f32 v31, v31, v26")
        a("v_readlane_b32 s54, v26, 0\nv_readlane_b32 s55, v26, 8\ns_nop 1")
        a("v_mov_b32 v26, s54\nv_mov_b32 v27, s55\nv_cndmask_b32 v26, v26, v27, s[52:53]")
        for r in range(4):
            a("v_mul_f32 v%d, v%d, v26" % (32 + r, 32 + r))
        a("s_setpc_b64 s[50:51]")

    def lds_wait(self, off, val, sleep, t=5):
        a = self.a
        lab = a.label("L_lw")
        a("v_mov_b32 v%d, 0\ns_mov_b32 s60, 0\n%s:" % (t, lab))
        a("ds_read_b32 v%d, v%d offset:%d\ns_waitcnt lgkmcnt(0)" % (t + 1, t, off))
        a("v_cmp_le_u32 vcc, %d, v%d" % (val, t + 1))
        a("s_add_u32 s60, s60, 1\ns_cmp_gt_u32 s60, %d\ns_cbranch_scc1 %s_x\ns_cbranch_vccnz %s_x" % (SPIN * 20, lab, lab))
        if sleep:
            a("s_sleep %d" % sleep)
        a("s_branch %s\n%s_x:" % (lab, lab))

    def qproj(self):
        a = self.a
        a("v_lshrrev_b32 v3, 5, v0\nv_mul_u32_u24 v3, 1152, v3\nv_and_b32 v4, 31, v0\nv_lshl_add_u32 v3, v4, 2, v3")
        a("v_mov_b32 v6, 0")
        a("s_lshr_b32 s46, s2, 3\ns_and_b32 s47, s46, 15\ns_lshr_b32 s48, s46, 4")
        a("s_bfe_u32 s49, s2, 0x10002\ns_lshl_b32 s44, s48, 1\ns_add_u32 s49, s49, s44")
        a("s_and_b32 s50, s2, 3")
        a("s_waitcnt lgkmcnt(0)")
        self.srd(36, 4, 2304)
        self.srd(28, 26, 0x10000000)
        for j in range(9):
            a("buffer_load_dword v%d, v3, s[36:39], 0 offen offset:%d" % (16 + 2 * j + 1, j * 128))
        a("buffer_load_dword v7, v6, s[28:31], 0 offen offset:%d sc1" % WS_EPOCH)
        self.srd(32, 24, 256)
        a("s_and_b32 s44, s2, 7\ns_cmp_eq_u32 s44, 0\ns_cselect_b64 exec, 1, 0")
        a("s_lshl_b32 s44, s46, 8\ns_add_u32 s44, s44, 0x%x" % WS_CTR)
        a("buffer_store_dword v6, v6, s[28:31], s44 offen sc1")
        a("s_mov_b64 exec, -1")
        a("s_mov_b32 s40, 0xffff0000")
        a("s_barrier")
        a("s_waitcnt vmcnt(0)")
        self.stamp(12)
        for j in range(9):
            a("v_lshlrev_b32 v%d, 16, v%d\nv_and_b32 v%d, s40, v%d" % (16 + 2 * j, 16 + 2 * j + 1, 16 + 2 * j + 1, 16 + 2 * j + 1))
        a("v_add_u32 v7, 0x%x, v7" % EPOCH_INC)
        a("v_add_u32 v8, %d, v3" % L_XN)
        self.layernorm(16, 40, 8)
        a("v_and_b32 v9, 1, v0\nv_mul_u32_u24 v9, 1152, v9\nv_lshl_add_u32 v9, v2, 3, v9\ns_mul_i32 s44, s50, 288\nv_add_u32 v9, s44, v9")
        a("v_lshrrev_b32 v10, 2, v0\nv_lshlrev_b32 v10, 7, v10\nv_and_b32 v11, 3, v0\nv_lshl_add_u32 v10, v11, 3, v10")
        self.stamp(13)
        a("s_waitcnt lgkmcnt(0)")
        FB, FA, D = 64, 84, 160
        for ks in range(9):
            a("ds_read_b64 v[%d:%d], v9 offset:%d" % (FB + 2 * ks, FB + 2 * ks + 1, L_XN + ks * 32))
        self.lds_wait(L_FLAG + 8, 3, 0, t=12)
        self.stamp(14)
        for ks in range(9):
            for t in range(4):
                r = FA + 8 * ks + 2 * t
                a("ds_read_b64_tr_b16 v[%d:%d], v10 offset:%d" % (r, r + 1, L_WQ + ks * 2048 + t * 32))
            if ks % 3 == 2:
                a("s_waitcnt lgkmcnt(0)")
                for k2 in range(ks - 2, ks + 1):
                    for t in range(4):
                        r = FA + 8 * k2 + 2 * t
                        a("v_mfma_f32_16x16x16_bf16 v[%d:%d], v[%d:%d], v[%d:%d], %s" % (D + 4 * t, D + 4 * t + 3, r, r + 1, FB + 2 * k2, FB + 2 * k2 + 1, "0" if k2 == 0 else "v[%d:%d]" % (D + 4 * t, D + 4 * t + 3)))
        a("s_lshl_b32 s45, s47, 14\ns_lshl_b32 s44, s50, 11\ns_add_u32 s45, s45, s44\ns_lshl_b32 s44, s49, 9\ns_add_u32 s45, s45, s44\ns_add_u32 s45, s45, 0x%x" % WS_MQ)
        a("v_and_b32 v10, 1, v0\nv_lshlrev_b32 v10, 13, v10\nv_lshl_add_u32 v10, v2, 5, v10\nv_bfe_u32 v11, v0, 1, 1\nv_lshl_add_u32 v10, v11, 4, v10")
        a("v_cmp_eq_u32 vcc, 1, v11")
        a("s_mov_b32 s52, 0x000f000f\ns_mov_b32 s53, 0x000f000f")
        for t in range(4):
            a("v_mov_b32 v%d, v7\nv_mov_b32 v%d, v7" % (17 + 4 * t, 19 + 4 * t))
        for t in range(4):
            a("v_cndmask_b32 v%d, v%d, v%d, vcc\nv_cndmask_b32 v%d, v%d, v%d, vcc" % (16 + 4 * t, D + 4 * t, D + 4 * t + 2, 18 + 4 * t, D + 4 * t + 1, D + 4 * t + 3))
        a("s_mov_b64 exec, s[52:53]")
        for t in range(4):
            a("buffer_store_dwordx4 v[%d:%d], v10, s[28:31], s45 offen offset:%d sc1" % (16 + 4 * t, 19 + 4 * t, t * 128))
        a("s_mov_b64 exec, -1")
        self.stamp(1)
        a("s_lshl_b32 s44, s47, 1\ns_add_u32 s44, s44, s48\ns_lshl_b32 s44, s44, 13\ns_add_u32 s44, s44, 0x%x\ns_add_u32 s45, s44, 4096" % WS_MQ)
        a("v_lshlrev_b32 v10, 4, v0\nv_lshlrev_b32 v11, 2, v0")
        G = 64
        self.lds_wait(L_FLAG + 12, 1, 2, t=12)
        a("s_mov_b32 s60, 0\nL_qpoll:")
        for i in range(8):
            a("buffer_load_dwordx4 v[%d:%d], v10, s[28:31], s%d offen offset:%d sc1" % (G + 4 * i, G + 4 * i + 3, 44 + i // 4, (i % 4) * 1024))
        a("s_waitcnt vmcnt(0)")
        for i in range(8):
            a("v_xor_b32 v%d, v%d, v7\nv_xor_b32 v%d, v%d, v7" % (G + 4 * i + 1, G + 4 * i + 1, G + 4 * i + 3, G + 4 * i + 3))
        a("v_or_b32 v12, v%d, v%d" % (G + 1, G + 3))
        for i in range(1, 8):
            a("v_or3_b32 v12, v12, v%d, v%d" % (G + 4 * i + 1, G + 4 * i + 3))
        a("v_cmp_ne_u32 vcc, 0, v12")
        a("s_add_u32 s60, s60, 1\ns_cmp_gt_u32 s60, %d\ns_cbranch_scc1 L_qpoll_x\ns_cbranch_vccnz L_qpoll\nL_qpoll_x:" % SPIN)
        for hf in range(2):
            for c in (0, 2):
                b0 = G + 4 * hf + c
                a("v_add_f32 v%d, v%d, v%d\nv_add_f32 v%d, v%d, v%d" % (b0, b0, b0 + 8, b0 + 16, b0 + 16, b0 + 24))
        for hf in range(2):
            for c in (0, 2):
                b0 = G + 4 * hf + c
                a("v_add_f32 v%d, v%d, v%d" % (b0, b0, b0 + 16))
        a("v_cvt_pk_bf16_f32 v12, v%d, v%d\nv_cvt_pk_bf16_f32 v13, v%d, v%d" % (G, G + 2, G + 4, G + 6))
        a("ds_write_b32 v11, v12 offset:%d\nds_write_b32 v11, v13 offset:%d" % (L_Q, L_Q + 256))
        a("v_mov_b32 v12, 1\nds_write_b32 v6, v12 offset:%d" % (L_FLAG + 20))
        a("v_readfirstlane_b32 s61, v7")
        a("s_waitcnt lgkmcnt(0)")
        self.stamp(2)

    def finish_attn(self):
        a = self.a
        a("L_finish:")
        self.lds_wait(L_FLAG + 16, 1, 8, t=4)
        a("v_mov_b32 v4, 0\ns_mov_b32 s60, 0\nL_rpoll:")
        a("buffer_load_dword v5, v4, s[32:35], 0 offen sc1\ns_waitcnt vmcnt(0)")
        a("v_cmp_gt_u32 vcc, 256, v5")
        a("s_add_u32 s60, s60, 1\ns_cmp_gt_u32 s60, %d\ns_cbranch_scc1 L_rpoll_x\ns_cbranch_vccz L_rpoll_x\ns_sleep 64\ns_branch L_rpoll\nL_rpoll_x:" % SPIN)
        a("v_mov_b32 v5, 1\ns_mov_b64 exec, 1\nds_add_u32 v4, v5 offset:%d\ns_mov_b64 exec, -1" % L_FLAG)
        a("s_lshr_b32 s44, s2, 3\ns_and_b32 s45, s44, 15\ns_lshr_b32 s44, s44, 4\ns_lshl_b32 s44, s44, 3\ns_and_b32 s46, s2, 7\ns_add_u32 s44, s44, s46")
        a("v_lshrrev_b32 v6, 5, v0\nv_lshlrev_b32 v6, 1, v6\nv_bfe_u32 v7, v0, 3, 1\nv_add_u32 v6, v6, v7\ns_lshl_b32 s45, s45, 2\nv_add_u32 v6, s45, v6")
        a("v_and_b32 v7, 7, v0\nv_lshlrev_b32 v7, 5, v7\nv_bfe_u32 v8, v0, 4, 1\nv_lshl_add_u32 v7, v8, 4, v7")
        a("v_mul_u32_u24 v6, 6144, v6\nv_add_u32 v8, v6, v7\nv_and_b32 v9, 7, v0\nv_lshl_add_u32 v9, v9, 4, v6")
        a("s_mul_i32 s46, s44, 384\ns_add_u32 s46, s46, 0x%x" % WS_M1)
        a("v_lshlrev_b32 v10, 4, v0\nv_lshrrev_b32 v11, 5, v0\nv_lshlrev_b32 v11, 3, v11")
        a("s_mov_b32 s48, 0xffff\ns_mov_b32 s49, 0xffff")
        self.lds_wait(L_FLAG, 5, 1, t=4)
        self.stamp(3)
        for wv in range(4):
            a("ds_read_b64 v[%d:%d], v11 offset:%d" % (12 + 2 * wv, 13 + 2 * wv, L_PML + 16 * wv))
        for wv in range(4):
            a("ds_read_b128 v[%d:%d], v10 offset:%d" % (20 + 4 * wv, 23 + 4 * wv, L_PACC + 1024 * wv))
        a("s_waitcnt lgkmcnt(0)")
        a("v_max3_f32 v36, v12, v14, v16\nv_max_f32 v36, v36, v18")
        for wv in range(4):
            a("v_sub_f32 v%d, v%d, v36" % (12 + 2 * wv, 12 + 2 * wv))
        for wv in range(4):
            a("v_exp_f32 v%d, v%d" % (12 + 2 * wv, 12 + 2 * wv))
        a("s_nop 0")
        for r in range(4):
            a("v_mul_f32 v%d, v12, v%d" % (40 + r, 20 + r))
        for wv in range(1, 4):
            for r in range(4):
                a("v_fmac_f32 v%d, v%d, v%d" % (40 + r, 12 + 2 * wv, 20 + 4 * wv + r))
        a("buffer_store_dwordx4 v[40:43], v8, s[28:31], s46 offen sc1")
        a("v_mul_f32 v37, v12, v13")
        for wv in range(1, 4):
            a("v_fmac_f32 v37, v%d, v%d" % (12 + 2 * wv, 13 + 2 * wv))
        a("v_mov_b32 v38, v36\nv_mov_b32 v39, v37")
        a("s_mov_b64 exec, s[48:49]")
        a("buffer_store_dwordx4 v[36:39], v9, s[28:31], s46 offen offset:256 sc1")
        a("s_mov_b64 exec, 1\nv_mov_b32 v5, 1\nds_add_u32 v4, v5 offset:%d" % L_FLAG)
        a("s_mov_b64 exec, -1")
        self.stamp(4)
        a("s_setpc_b64 s[50:51]")

    def service(self):
        a = self.a
        a("s_setprio 2")
        if self.o.get("abl", 0) == 1:
            a("s_waitcnt lgkmcnt(0)")
            self.srd(28, 26, 0x10000000)
            a("s_barrier")
            a("s_cmp_lg_u32 s3, 0\ns_cbranch_scc1 L_end")
            self.flush_stamps([0])
            a("s_endpgm")
        a("v_and_b32 v1, 15, v0\nv_lshrrev_b32 v2, 4, v0")
        a("s_cmp_lg_u32 s3, 0\ns_cbranch_scc1 L_svc_other")
        self.qproj()
        a("s_branch L_svc_a")
        a("L_svc_other:")
        a("v_lshrrev_b32 v4, 3, v0\nv_lshlrev_b32 v4, 13, v4\nv_and_b32 v5, 7, v0\nv_lshl_add_u32 v4, v5, 4, v4")
        a("s_bfe_u32 s47, s2, 0x40003\ns_lshr_b32 s48, s2, 7\ns_bfe_u32 s49, s2, 0x10002\ns_lshl_b32 s44, s48, 1\ns_add_u32 s49, s49, s44\ns_and_b32 s50, s2, 3")
        a("s_lshl_b32 s45, s47, 2\ns_add_u32 s45, s45, s49\ns_lshl_b32 s45, s45, 7\ns_mul_i32 s44, s50, 3\ns_add_u32 s44, s44, s3\ns_sub_u32 s44, s44, 1\ns_mul_i32 s44, s44, %d\ns_add_u32 s45, s45, s44" % (48 * 8192))
        a("s_mul_i32 s46, s3, 6144\ns_add_u32 s46, s46, %d" % (L_WQ - 6144))
        a("s_waitcnt lgkmcnt(0)")
        self.srd(40, 10, 576 * 8192)
        for i in range(6):
            a("s_mov_b32 m0, s46\ns_add_u32 s46, s46, 1024")
            a("buffer_load_dwordx4 v4, s[40:43], s45 offen nt lds")
            a("s_add_u32 s45, s45, %d" % (8 * 8192))
        self.srd(28, 26, 0x10000000)
        self.srd(32, 24, 256)
        a("s_mov_b32 s61, 0")
        a("v_mov_b32 v6, 0\nv_mov_b32 v7, 1")
        a("s_barrier")
        a("s_waitcnt vmcnt(0)")
        a("s_mov_b64 exec, 1\nds_add_u32 v6, v7 offset:%d\ns_mov_b64 exec, -1" % (L_FLAG + 8))
        self.lds_wait(L_FLAG + self.o.get("bgflag", 20), 1, 4, t=12)
        a("L_svc_a:")
        if self.o.get("abl", 0) == 2:
            a("s_cmp_lg_u32 s3, 0\ns_cbranch_scc1 L_end")
            self.flush_stamps([0, 1, 2, 12, 13, 14])
            a("s_endpgm")
        a("s_cmp_lg_u32 s3, 1\ns_cbranch_scc1 L_svc_r")
        a("v_mov_b32 v10, 0")
        a("v_mov_b32 v4, -1\nv_mov_b32 v5, -1\nv_mov_b32 v6, -1\nv_mov_b32 v7, -1\nv_lshlrev_b32 v8, 4, v0")
        a("s_mul_i32 s44, s2, %d\ns_add_u32 s44, s44, 0x%x" % (RESET_PER_WG, SB))
        for i in range(RESET_PER_WG // 1024):
            if i == 4:
                a("s_add_u32 s44, s44, 4096")
            if not self.o.get("noreset", 0):
                a("buffer_store_dwordx4 v[4:7], v8, s[28:31], s44 offen offset:%d sc1" % ((i % 4) * 1024))
        a("v_mov_b32 v9, 1")
        a("s_waitcnt vmcnt(0) lgkmcnt(0)")
        a("s_mov_b64 exec, 1")
        a("buffer_atomic_add v9, v10, s[32:35], 0 offen")
        a("s_mov_b64 exec, -1")
        a("L_svc_r:")
        a("s_and_b32 s44, s2, 7\ns_lshr_b32 s45, s2, 3\ns_add_u32 s46, s44, s45\ns_and_b32 s46, s46, 7\ns_lshr_b32 s47, s45, 3")
        a("s_mul_i32 s48, s44, 18\ns_lshl_b32 s49, s46, 2\ns_add_u32 s58, s48, s49\ns_add_u32 s58, s58, s47\ns_sub_u32 s58, s58, 12")
        a("s_add_u32 s48, s44, %d\ns_cmp_lt_u32 s44, 4\ns_cselect_b32 s48, s48, 255\ns_cmp_eq_u32 s47, 2\ns_cselect_b32 s48, s48, 255" % (RED0 + 32))
        a("s_cmp_lt_u32 s47, 2\ns_cselect_b32 s48, s58, s48\ns_cmp_eq_u32 s46, 7\ns_cselect_b32 s58, s48, s58")
        a("s_add_u32 s48, s45, %d\ns_cmp_eq_u32 s46, 2\ns_cselect_b32 s58, s48, s58" % RED0)
        a("s_lshl_b32 s48, s45, 1\ns_add_u32 s48, s48, s46\ns_add_u32 s48, s48, %d\ns_cmp_lt_u32 s46, 2\ns_cselect_b32 s58, s48, s58" % OP0)
        a("s_cmp_lt_u32 s58, %d\ns_cbranch_scc1 L_ffn" % OP0)
        a("s_cmp_lt_u32 s58, %d\ns_cbranch_scc1 L_oproj" % RED0)
        a("s_cmp_lt_u32 s58, %d\ns_cbranch_scc1 L_red" % (RED0 + N_RED))
        a("s_cmp_lg_u32 s3, 0\ns_cbranch_scc1 L_end")
        a("s_call_b64 s[50:51], L_finish")
        self.flush_stamps([0, 1, 2, 3, 4, 12, 13, 14])
        a("s_endpgm")
        self.finish_attn()
        self.oproj()
        self.reducer()
        self.ffn()

    def oproj(self):
        a = self.a
        WF = 64
        a("L_oproj:")
        a("s_sub_u32 s59, s58, %d" % OP0)
        self.srd(36, 12, 4096 * 1152)
        a("s_mul_i32 s45, s59, 73728\ns_mul_i32 s46, s3, 288\ns_add_u32 s45, s45, s46")
        a("s_mul_i32 s46, s3, 18432\ns_add_u32 s46, s46, %d" % L_WB)
        a("v_mul_u32_u24 v4, 3641, v0\nv_lshrrev_b32 v4, 16, v4")
        a("v_mul_u32_u24 v5, 18, v4\nv_sub_u32 v5, v0, v5")
        a("v_mul_u32_u24 v4, 1152, v4\nv_lshl_add_u32 v4, v5, 4, v4")
        a("v_mov_b32 v7, 864")
        OW = self.o.get("op_win", 3)
        for n in range(18):
            if n >= OW:
                a("s_waitcnt vmcnt(%d)" % (OW - 1))
            a("s_mov_b32 m0, s46\ns_add_u32 s46, s46, 1024")
            a("buffer_load_dwordx4 v4, s[36:39], s45 offen nt lds")
            if n < 17:
                a("v_add_u32 v5, 10, v5\nv_cmp_le_u32 vcc, 18, v5\nv_add_u32 v4, 3616, v4\nv_subrev_u32 v6, 18, v5")
                a("v_cndmask_b32 v5, v5, v6, vcc\nv_cndmask_b32 v6, 0, v7, vcc\nv_add_u32 v4, v4, v6")
        a("v_lshrrev_b32 v4, 2, v1\nv_lshl_add_u32 v4, v2, 3, v4\nv_mul_u32_u24 v4, 288, v4\nv_and_b32 v5, 3, v0\nv_lshl_add_u32 v4, v5, 3, v4")
        a("s_mul_i32 s46, s3, 18432\ns_add_u32 s46, s46, %d\nv_add_u32 v4, s46, v4" % L_WB)
        a("s_waitcnt vmcnt(0)")
        for tt in range(9):
            for ks in range(2):
                for hh in range(2):
                    r = WF + tt * 8 + ks * 4 + hh * 2
                    a("ds_read_b64_tr_b16 v[%d:%d], v4 offset:%d" % (r, r + 1, (32 * ks + 4 * hh) * 288 + tt * 32))
            if tt % 3 == 2:
                a("s_waitcnt lgkmcnt(0)")
        a("v_mul_u32_u24 v51, 384, v1\nv_lshl_add_u32 v50, v2, 5, v51")
        a("v_bfe_u32 v52, v0, 3, 1\nv_lshlrev_b32 v52, 6, v52\nv_lshl_add_u32 v52, v2, 4, v52")
        a("s_mul_i32 s52, s59, 6144\ns_add_u32 s52, s52, 0x%x" % WS_M1)
        a("s_mul_i32 s54, s3, %d\ns_lshl_b32 s55, s59, 7\ns_add_u32 s54, s54, s55\ns_add_u32 s54, s54, 0x%x" % (9 * 8192, WS_M2))
        a("s_mov_b32 s56, 0x01010101\ns_mov_b32 s57, 0x01010101")
        a("s_cmp_lg_u32 s3, 0\ns_cbranch_scc1 L_op_w")
        a("s_call_b64 s[50:51], L_finish")
        a("s_branch L_op_go")
        a("L_op_w:")
        self.lds_wait(L_FLAG, 5, 2)
        a("L_op_go:")
        self.poll_begin("L_op_poll")
        a("buffer_load_dwordx2 v[12:13], v51, s[28:31], s52 offen offset:256 sc1")
        for ks in range(2):
            for hh in range(2):
                r = 16 + 8 * ks + 4 * hh
                a("buffer_load_dwordx4 v[%d:%d], v50, s[28:31], s52 offen offset:%d sc1" % (r, r + 3, ks * 128 + hh * 16))
        self.poll_end("L_op_poll", [12, 13] + list(range(16, 32)), 14)
        self.stamp(5)
        a("v_mov_b32 v14, v12")
        self.oct_reduce("v_max_f32", [14])
        a("v_sub_f32 v12, v12, v14\nv_exp_f32 v12, v12\ns_nop 0\nv_mul_f32 v13, v12, v13")
        self.oct_reduce("v_add_f32", [13])
        a("v_rcp_f32 v13, v13\ns_nop 0\nv_mul_f32 v12, v12, v13")
        for r in range(16, 32):
            a("v_mul_f32 v%d, v12, v%d" % (r, r))
        self.oct_reduce("v_add_f32", list(range(16, 32)))
        for i in range(8):
            a("v_cvt_pk_bf16_f32 v%d, v%d, v%d" % (32 + i, 16 + 2 * i, 17 + 2 * i))
        a("s_nop 1")
        D = 140
        for tt in range(9):
            a("v_mfma_f32_16x16x32_bf16 v[%d:%d], v[%d:%d], v[32:35], 0" % (D + 4 * tt, D + 4 * tt + 3, WF + 8 * tt, WF + 8 * tt + 3))
        for tt in range(9):
            a("v_mfma_f32_16x16x32_bf16 v[%d:%d], v[%d:%d], v[36:39], v[%d:%d]" % (D + 4 * tt, D + 4 * tt + 3, WF + 8 * tt + 4, WF + 8 * tt + 7, D + 4 * tt, D + 4 * tt + 3))
        a("s_mov_b64 exec, s[56:57]")
        for tt in range(9):
            if tt == 8:
                a("s_nop 7")
            a("buffer_store_dwordx4 v[%d:%d], v52, s[28:31], s54 offen sc1" % (D + 4 * tt, D + 4 * tt + 3))
            a("s_add_u32 s54, s54, 8192")
        self.stamp(6)
        if self.diag:
            a("s_cmp_lg_u32 s3, 0\ns_cbranch_scc1 L_end")
            self.flush_stamps([0, 1, 2, 3, 4, 5, 6, 12, 13, 14])
        a("s_endpgm")

    def gather_sum(self, name, G, n, sbase):
        a = self.a
        self.poll_begin(name)
        for i in range(n):
            a("buffer_load_dwordx4 v[%d:%d], v50, s[28:31], s%d offen offset:%d sc1" % (G + 4 * i, G + 4 * i + 3, sbase + i // 4, (i % 4) * 1024))
        for i in range(1, n):
            a("s_waitcnt vmcnt(%d)" % (n - 1 - i))
            a("v_pk_add_f32 v[%d:%d], v[%d:%d], v[%d:%d]" % (G, G + 1, G, G + 1, G + 4 * i, G + 4 * i + 1))
            a("v_pk_add_f32 v[%d:%d], v[%d:%d], v[%d:%d]" % (G + 2, G + 3, G + 2, G + 3, G + 4 * i + 2, G + 4 * i + 3))
        a("s_nop 1")
        a("v_permlane32_swap_b32 v%d, v%d\nv_permlane32_swap_b32 v%d, v%d" % (G, G + 2, G + 1, G + 3))
        a("v_add_f32 v%d, v%d, v%d\nv_add_f32 v%d, v%d, v%d" % (G, G, G + 2, G + 1, G + 1, G + 3))
        a("s_nop 1")
        a("v_permlane16_swap_b32 v%d, v%d" % (G, G + 1))
        a("v_add_f32 v%d, v%d, v%d" % (G, G, G + 1))
        a("s_nop 1")
        self.dpp("v_add_f32", G, G, G, "row_ror:8")
        a("v_cmp_u_f32 vcc, v%d, v%d" % (G, G))
        a("s_add_u32 s60, s60, 1\ns_cmp_gt_u32 s60, %d\ns_cbranch_scc1 %s_x" % (SPIN, name))
        a("s_cbranch_vccnz %s\n%s_x:" % (name, name))

    def round4(self, base, t):
        a = self.a
        a("v_cvt_pk_bf16_f32 v%d, v%d, v%d\nv_cvt_pk_bf16_f32 v%d, v%d, v%d" % (t, base, base + 1, t + 1, base + 2, base + 3))
        a("v_lshlrev_b32 v%d, 16, v%d\nv_and_b32 v%d, s40, v%d" % (base, t, base + 1, t))
        a("v_lshlrev_b32 v%d, 16, v%d\nv_and_b32 v%d, s40, v%d" % (base + 2, t + 1, base + 3, t + 1))

    def reducer(self):
        a = self.a
        a("L_red:")
        a("s_sub_u32 s59, s58, %d" % RED0)
        a("s_cmp_eq_u32 s3, 0\ns_cbranch_scc1 L_red0")
        a("s_cmp_lg_u32 s3, 1\ns_cbranch_scc1 L_end")
        a("s_mul_i32 s52, s59, %d\ns_add_u32 s52, s52, 0x%x" % (144 * 128, WS_M4))
        a("v_mov_b32 v12, -1\nv_mov_b32 v13, -1\nv_mov_b32 v14, -1\nv_mov_b32 v15, -1\nv_lshlrev_b32 v8, 4, v0")
        self.lds_wait(L_FLAG + self.o.get("m4flag", 4), self.o.get("m4cnt", 4), 2)
        for i in range(18):
            a("buffer_store_dwordx4 v[12:15], v8, s[28:31], s52 offen offset:%d sc1" % ((i % 4) * 1024))
            if i % 4 == 3:
                a("s_add_u32 s52, s52, 4096")
        a("v_mov_b32 v9, 0\nv_mov_b32 v10, 1\ns_waitcnt vmcnt(0)")
        a("ds_write_b32 v9, v10 offset:%d" % (L_FLAG + 28))
        a("s_endpgm")
        a("L_red0:")
        self.srd(36, 4, 2304)
        a("v_bfe_u32 v51, v0, 2, 1\nv_mul_u32_u24 v51, 1152, v51\nv_and_b32 v4, 3, v0\nv_lshl_add_u32 v51, v4, 3, v51\nv_lshl_add_u32 v51, v2, 1, v51")
        a("s_lshl_b32 s45, s59, 5\nv_add_u32 v51, s45, v51")
        a("buffer_load_ushort v53, v51, s[36:39], 0 offen")
        a("v_lshlrev_b32 v50, 4, v0")
        a("v_and_b32 v52, 7, v0\nv_lshlrev_b32 v52, 3, v52\nv_bfe_u32 v5, v0, 2, 1\nv_lshlrev_b32 v5, 3, v5\nv_lshl_add_u32 v5, v4, 4, v5\nv_add_u32 v5, 64, v5")
        a("s_mov_b32 s62, 0xffff0000\ns_mov_b32 s63, 0xffff0000")
        a("v_cndmask_b32 v52, v52, v5, s[62:63]\nv_lshrrev_b32 v5, 5, v0\nv_lshl_add_u32 v52, v5, 2, v52")
        a("s_waitcnt vmcnt(0)")
        a("v_lshlrev_b32 v53, 16, v53")
        self.srd(36, 22, 2304)
        a("s_call_b64 s[50:51], L_finish")
        a("s_mov_b32 s40, 0xffff0000")
        a("s_lshl_b32 s52, s59, 13\ns_add_u32 s52, s52, 0x%x\ns_add_u32 s53, s52, 4096" % WS_M2)
        a("s_lshl_b32 s41, s59, 7\ns_add_u32 s41, s41, 0x%x" % WS_M3)
        a("s_mov_b32 s42, 0x00ff00ff\ns_mov_b32 s43, 0x00ff00ff")
        self.lds_wait(L_FLAG + 28, 1, 1, t=12)
        G = 64
        self.gather_sum("L_r1_poll", G, 8, 52)
        self.stamp(5)
        a("v_cvt_pk_bf16_f32 v%d, v%d, v%d\nv_and_b32 v%d, s40, v%d" % (G, G, G, G, G))
        a("v_add_f32 v53, v53, v%d" % G)
        a("v_cvt_pk_bf16_f32 v53, v53, v53\nv_and_b32 v53, s40, v53")
        a("v_mov_b32 v12, v53\nv_mov_b32 v13, v53\ns_nop 1\nv_permlane16_swap_b32 v12, v13")
        a("v_add_f32 v14, v12, v13\nv_mul_f32 v15, v12, v12\nv_fmac_f32 v15, v13, v13")
        a("v_cvt_pk_bf16_f32 v16, v12, v13\ns_nop 0\nv_permlane32_swap_b32 v14, v15")
        a("v_add_f32 v14, v14, v15\ns_nop 1")
        self.dpp("v_add_f32", 14, 14, 14, "quad_perm:[1,0,3,2]")
        a("s_nop 1")
        self.dpp("v_add_f32", 14, 14, 14, "quad_perm:[2,3,0,1]")
        a("v_cndmask_b32 v16, v16, v14, s[62:63]")
        a("s_mov_b64 exec, s[42:43]")
        a("buffer_store_dword v16, v52, s[28:31], s41 offen sc1")
        a("s_mov_b64 exec, -1")
        self.stamp(6)
        a("s_mul_i32 s52, s59, %d\ns_add_u32 s52, s52, 0x%x" % (144 * 128, WS_M4))
        for i in range(1, 5):
            a("s_add_u32 s%d, s52, %d" % (52 + i, 4096 * i))
        a("s_mov_b32 s42, 0x00ff00ff\ns_mov_b32 s43, 0x00ff00ff")
        self.gather_sum("L_r2_poll", G, 18, 52)
        self.stamp(7)
        a("v_cvt_pk_bf16_f32 v%d, v%d, v%d\nv_and_b32 v%d, s40, v%d" % (G, G, G, G, G))
        a("v_add_f32 v53, v53, v%d" % G)
        a("v_cvt_pk_bf16_f32 v53, v53, v53")
        a("s_mov_b64 exec, s[42:43]")
        a("buffer_store_short v53, v51, s[36:39], 0 offen")
        a("s_cmp_lg_u32 s59, 0\ns_cbranch_scc1 L_red_end")
        a("s_mov_b64 exec, 1\nv_mov_b32 v16, s61\nv_mov_b32 v17, 0")
        a("buffer_store_dword v16, v17, s[28:31], 0 offen offset:%d sc1" % WS_EPOCH)
        a("L_red_end:")
        if self.o.get("dbgtime", 0):
            a("s_memrealtime s[92:93]\ns_waitcnt lgkmcnt(0)\ns_sub_u32 s92, s92, s90\ns_mov_b64 exec, 1\nv_mov_b32 v16, s92\nv_mov_b32 v17, 0")
            a("buffer_atomic_umax v16, v17, s[32:35], 0 offen offset:8")
        if self.o.get("padto", 0):
            a("L_pad:\ns_memrealtime s[92:93]\ns_waitcnt lgkmcnt(0)\ns_sub_u32 s92, s92, s90\ns_cmp_lt_u32 s92, %d\ns_cbranch_scc1 L_pad" % (self.o["padto"] * 100))
        self.stamp(11)
        self.flush_stamps([0, 1, 2, 3, 4, 5, 6, 7, 11, 12, 13, 14])
        a("s_endpgm")

    def ffn(self):
        a = self.a
        GF, DF, HF = 64, 136, 172
        EN = self.o.get("early", 18)
        assert EN % 2 == 0
        EK = EN // 2
        FW = self.o.get("ffn_win", 40)
        EW = self.o.get("early_win", 3)
        def gu_reads(k0, k1):
            n = 0
            for ks in range(k0, k1):
                for hh in range(2):
                    r = GF + 4 * ks + 2 * hh
                    a("ds_read_b64_tr_b16 v[%d:%d], v56 offset:%d" % (r, r + 1, (32 * ks + 4 * hh) * 64))
                if ks % 3 == 2:
                    a("s_waitcnt lgkmcnt(6)")
        a("L_ffn:")
        a("s_mul_i32 s59, s3, 3456\ns_add_u32 s59, s59, %d" % L_HB)
        a("v_mov_b32 v4, 0x3f803f80\nv_mov_b32 v5, v4\nv_mov_b32 v6, v4\nv_mov_b32 v7, v4\nv_lshlrev_b32 v8, 4, v0\nv_add_u32 v8, s59, v8")
        a("ds_write_b128 v8, v[4:7] offset:2304\nds_write_b128 v8, v[4:7] offset:%d" % (2304 + 128))
        a("v_lshrrev_b32 v4, 2, v0\nv_and_b32 v5, 3, v0\nv_lshlrev_b32 v50, 7, v4\nv_lshl_add_u32 v50, v5, 4, v50")
        a("v_add_u32 v51, 4096, v50\nv_subrev_u32 v6, 16, v0\nv_lshlrev_b32 v6, 7, v6\nv_add_u32 v6, 64, v6\nv_cmp_gt_u32 vcc, 16, v0\ns_nop 1\nv_cndmask_b32 v51, v6, v51, vcc")
        a("v_bfe_u32 v52, v0, 1, 1\nv_mul_u32_u24 v52, 1152, v52\nv_lshl_add_u32 v52, v4, 5, v52\nv_and_b32 v6, 1, v0\nv_lshl_add_u32 v52, v6, 4, v52\nv_add_u32 v52, s59, v52")
        a("v_bfe_u32 v53, v0, 2, 1\nv_cmp_eq_u32 vcc, 1, v6\ns_nop 1\nv_cndmask_b32 v53, v53, 2, vcc")
        a("v_mul_u32_u24 v53, 1152, v53\nv_lshl_add_u32 v53, v2, 4, v53\nv_add_u32 v53, s59, v53")
        a("s_lshl_b32 s45, s3, 3\nv_add_u32 v7, s45, v1\nv_bfe_u32 v54, v7, 2, 2\nv_lshlrev_b32 v54, 4, v54\nv_bfe_u32 v8, v7, 4, 1\nv_lshl_add_u32 v54, v8, 3, v54")
        a("v_lshl_add_u32 v54, v5, 1, v54\nv_and_b32 v8, 1, v2\nv_lshl_add_u32 v54, v8, 6, v54")
        a("v_lshlrev_b32 v55, 6, v6\nv_lshl_add_u32 v55, v2, 4, v55")
        a("v_lshrrev_b32 v7, 2, v1\nv_lshl_add_u32 v7, v2, 3, v7")
        a("v_bfe_u32 v56, v0, 1, 1\nv_mul_u32_u24 v56, %d, v56\nv_lshl_add_u32 v56, v7, 6, v56\nv_lshl_add_u32 v56, v6, 3, v56" % (L_UP - L_WB))
        a("v_xor_b32 v8, s3, v8\nv_lshl_add_u32 v56, v8, 4, v56\nv_add_u32 v56, %d, v56" % L_WB)
        a("v_mul_u32_u24 v57, 1184, v4\nv_lshl_add_u32 v57, v5, 3, v57")
        a("s_mul_i32 s45, s3, 288\ns_add_u32 s45, s45, %d\nv_add_u32 v57, s45, v57" % L_DN)
        a("s_mul_i32 s54, s3, %d\ns_lshl_b32 s55, s58, 7\ns_add_u32 s54, s54, s55\ns_add_u32 s54, s54, 0x%x" % (9 * 144 * 128, WS_M4))
        a("s_cmp_lg_u32 s3, 0\ns_cbranch_scc1 L_ffn_w")
        a("s_call_b64 s[50:51], L_finish")
        if EK:
            a("s_call_b64 s[50:51], L_ffn_er")
        a("s_branch L_ffn_c")
        if EK:
            a("L_ffn_er:")
            self.lds_wait(L_FLAG + 24, 2, 2, t=12)
            gu_reads(0, EK)
            a("s_waitcnt lgkmcnt(0)")
            a("s_setpc_b64 s[50:51]")
        a("L_ffn_w:")
        a("s_setprio 0")
        a("s_cmp_eq_u32 s3, 3\ns_cbranch_scc1 L_ffn_dn")
        a("s_cmp_eq_u32 s3, 1\ns_cselect_b32 s36, s16, s18\ns_cselect_b32 s37, s17, s19\ns_mov_b32 s38, %d\ns_mov_b32 s39, 0x20000" % (576 * 9216))
        a("s_cselect_b32 s46, 0, %d\ns_add_u32 s46, s46, %d" % (L_UP - L_WB, L_WB))
        a("s_lshl_b32 s45, s58, 6")
        a("v_mul_u32_u24 v4, 9216, v4\nv_lshrrev_b32 v7, 5, v0\nv_xor_b32 v5, v5, v7\nv_lshl_add_u32 v4, v5, 4, v4")
        a("s_mov_b32 s48, 0")
        if EN:
            a("L_ffn_lde:")
            a("s_mov_b32 m0, s46\ns_add_u32 s46, s46, 1024")
            a("buffer_load_dwordx4 v4, s[36:39], s45 offen nt lds")
            a("s_add_u32 s45, s45, %d\ns_add_u32 s48, s48, 1" % (16 * 9216))
            a("s_waitcnt vmcnt(%d)" % (EW - 1))
            a("s_cmp_lt_u32 s48, %d\ns_cbranch_scc1 L_ffn_lde" % EN)
            a("v_mov_b32 v8, 0\nv_mov_b32 v9, 1\ns_waitcnt vmcnt(0)")
            a("s_mov_b64 exec, 1\nds_add_u32 v8, v9 offset:%d\ns_mov_b64 exec, -1" % (L_FLAG + 24))
            a("s_call_b64 s[50:51], L_ffn_er")
        if EN < 36:
            self.lds_wait(L_FLAG, 6, 1, t=12)
            a("L_ffn_ldl:")
            a("s_mov_b32 m0, s46\ns_add_u32 s46, s46, 1024")
            a("buffer_load_dwordx4 v4, s[36:39], s45 offen nt lds")
            a("s_add_u32 s45, s45, %d\ns_add_u32 s48, s48, 1" % (16 * 9216))
            a("s_waitcnt vmcnt(%d)" % (FW - 1))
            a("s_cmp_lt_u32 s48, 36\ns_cbranch_scc1 L_ffn_ldl")
            a("s_waitcnt vmcnt(0)")
        a("s_branch L_ffn_c")
        a("L_ffn_dn:")
        self.srd(36, 20, 4608 * 1152)
        a("s_mul_i32 s45, s58, 36864\ns_mov_b32 s46, %d\ns_mov_b32 s48, 0" % L_DN)
        a("v_lshlrev_b32 v4, 4, v0\nv_mov_b32 v5, v0\nv_mov_b32 v7, 32")
        if EK:
            a("s_call_b64 s[50:51], L_ffn_er")
        self.lds_wait(L_FLAG, 6, 1, t=12)
        a("L_ffn_ldd:")
        a("s_mov_b32 m0, s46\ns_add_u32 s46, s46, 1024")
        a("buffer_load_dwordx4 v4, s[36:39], s45 offen nt lds")
        a("v_add_u32 v5, 64, v5\nv_cmp_le_u32 vcc, 74, v5\nv_add_u32 v4, 1024, v4\nv_subrev_u32 v6, 74, v5\ns_add_u32 s48, s48, 1")
        a("v_cndmask_b32 v5, v5, v6, vcc\nv_cndmask_b32 v6, 0, v7, vcc\nv_sub_u32 v4, v4, v6")
        a("s_waitcnt vmcnt(%d)" % (self.o.get("dn_win", 40) - 1))
        a("s_cmp_lt_u32 s48, 37\ns_cbranch_scc1 L_ffn_ldd")
        a("s_waitcnt vmcnt(0)")
        a("L_ffn_c:")
        a("s_mov_b32 s40, 0xffff0000")
        a("s_mov_b32 s41, 0x%x\ns_mov_b32 s42, 0x%x" % (f32(0.044715), f32(-2.0 * math.sqrt(2.0 / math.pi) * LOG2E)))
        a("s_mov_b32 s45, 0x%x" % WS_M3)
        a("s_mov_b32 s46, -1\ns_mov_b32 s47, 0x000fffff")
        a("s_mov_b32 s52, 0xffff0000\ns_mov_b32 s53, -1")
        a("s_mov_b32 s56, 0x00030003\ns_mov_b32 s57, 0x00030003")
        a("v_mov_b32 v24, 0\nv_mov_b32 v25, 0\nv_mov_b32 v26, 0\nv_mov_b32 v27, 0")
        a("s_barrier")
        self.stamp(5)
        def h_loads():
            a("buffer_load_dwordx4 v[16:19], v50, s[28:31], s45 offen sc1")
            a("buffer_load_dwordx4 v[20:23], v50, s[28:31], s45 offen offset:2048 sc1")
            a("s_mov_b64 exec, s[46:47]")
            a("buffer_load_dwordx4 v[24:27], v51, s[28:31], s45 offen sc1")
            a("s_mov_b64 exec, -1")
        h_loads()
        gu_reads(EK, 18)
        for t in range(9):
            for hh in range(2):
                r = DF + 4 * t + 2 * hh
                a("ds_read_b64_tr_b16 v[%d:%d], v57 offset:%d" % (r, r + 1, 16 * hh * 1184 + t * 32))
            if t % 3 == 0:
                a("s_waitcnt lgkmcnt(6)")
        a("s_mov_b32 s60, 0\ns_branch L_h_chk")
        a("L_h_poll:")
        h_loads()
        a("L_h_chk:")
        self.poll_end("L_h_poll", range(16, 28), 14)
        self.stamp(6)
        a("ds_write_b128 v52, v[16:19]\nds_write_b128 v52, v[20:23] offset:512")
        a("s_mov_b64 exec, 0xffff")
        a("ds_write_b128 v52, v[24:27] offset:1024")
        a("s_mov_b64 exec, -1")
        for r in range(4):
            a("v_cndmask_b32 v%d, 0, v%d, s[52:53]" % (28 + r, 24 + r))
        a("s_waitcnt lgkmcnt(0)")
        for ks in range(12):
            a("ds_read_b128 v[%d:%d], v53 offset:%d" % (HF + 4 * ks, HF + 4 * ks + 3, ks * 64))
        stats = [
            "v_permlane32_swap_b32 v28, v29\nv_permlane32_swap_b32 v30, v31",
            "v_add_f32 v28, v28, v29\nv_add_f32 v30, v30, v31",
            "v_permlane16_swap_b32 v28, v30\nv_add_f32 v28, v28, v30",
            "v_add_f32_dpp v28, v28, v28 row_ror:8 row_mask:0xf bank_mask:0xf",
            "v_add_f32_dpp v28, v28, v28 row_ror:4 row_mask:0xf bank_mask:0xf",
            "v_add_f32_dpp v28, v28, v28 row_ror:2 row_mask:0xf bank_mask:0xf",
            "v_add_f32_dpp v28, v28, v28 row_ror:1 row_mask:0xf bank_mask:0xf",
            "v_mul_f32 v28, 0x%x, v28\nv_mov_b32 v30, v28" % f32(1.0 / 576),
            "v_permlane32_swap_b32 v28, v30",
            "v_fma_f32 v30, -v28, v28, v30\nv_max_f32 v30, 0, v30",
            "v_cvt_pk_bf16_f32 v29, v28, v30\nv_and_b32 v30, s40, v29",
            "v_add_f32 v30, 0x%x, v30\nv_lshlrev_b32 v28, 16, v29" % f32(1e-5),
            "v_cvt_pk_bf16_f32 v30, v30, v30\nv_and_b32 v30, s40, v30",
            "v_sqrt_f32 v30, v30",
            "v_cvt_pk_bf16_f32 v30, v30, v30\nv_and_b32 v30, s40, v30",
            "v_rcp_f32 v30, v30",
            "", "",
        ]
        for ks in range(18):
            out = min(18, ks + 12) - ks - 1
            a("s_waitcnt lgkmcnt(%d)" % out)
            a("v_mfma_f32_16x16x32_bf16 v[12:15], v[%d:%d], v[%d:%d], %s" % (HF + 4 * ks, HF + 4 * ks + 3, GF + 4 * ks, GF + 4 * ks + 3, "0" if ks == 0 else "v[12:15]"))
            if ks + 12 < 18:
                k2 = ks + 12
                a("ds_read_b128 v[%d:%d], v53 offset:%d" % (HF + 4 * k2, HF + 4 * k2 + 3, k2 * 64))
            if stats[ks]:
                a(stats[ks])
        a("s_nop 7")
        a("v_fma_f32 v12, -v28, v13, v12\nv_mul_f32 v12, v12, v30")
        a("v_cvt_pk_bf16_f32 v12, v12, v12\nv_and_b32 v12, s40, v12")
        a("v_mul_f32 v13, v12, v12\nv_fma_f32 v13, v13, s41, 1.0\nv_mul_f32 v14, s42, v12\nv_mul_f32 v13, v13, v14")
        a("v_exp_f32 v13, v13\ns_nop 0\nv_add_f32 v13, 1.0, v13\nv_rcp_f32 v13, v13\ns_nop 0\nv_mul_f32 v13, v12, v13")
        a("v_cvt_pk_bf16_f32 v13, v13, v13\nv_and_b32 v13, s40, v13")
        a("v_mul_f32_dpp v13, v12, v13 row_ror:8 row_mask:0xf bank_mask:0xf")
        a("v_cvt_pk_bf16_f32 v13, v13, v13")
        a("s_mov_b64 exec, 0x00ff00ff")
        a("ds_write_b16 v54, v13 offset:%d" % L_ACT)
        a("s_mov_b64 exec, -1")
        a("s_waitcnt lgkmcnt(0)")
        a("s_barrier")
        a("ds_read_b128 v[20:23], v55 offset:%d" % L_ACT)
        a("s_waitcnt lgkmcnt(0)")
        D = 64
        for t in range(9):
            a("v_mfma_f32_16x16x32_bf16 v[%d:%d], v[%d:%d], v[20:23], 0" % (D + 4 * t, D + 4 * t + 3, DF + 4 * t, DF + 4 * t + 3))
        a("s_mov_b64 exec, s[56:57]")
        for t in range(9):
            a("buffer_store_dwordx4 v[%d:%d], v55, s[28:31], s54 offen sc1" % (D + 4 * t, D + 4 * t + 3))
            a("s_add_u32 s54, s54, %d" % (144 * 128))
        self.stamp(7)
        if self.diag:
            a("s_cmp_lg_u32 s3, 0\ns_cbranch_scc1 L_end")
            self.flush_stamps([0, 1, 2, 3, 4, 5, 6, 7, 12, 13, 14])
        a("s_endpgm")

    def build(self):
        a = self.a
        a("s_load_dwordx16 s[4:19], s[0:1], 0\ns_load_dwordx8 s[20:27], s[0:1], 64")
        a("s_cmp_ge_u32 s2, 256\ns_cbranch_scc1 L_end")
        if self.diag:
            for k in range(NSTAMP):
                a("s_mov_b64 s[%d:%d], 0" % (64 + 2 * k, 65 + 2 * k))
        self.stamp(0)
        if self.o.get("padto", 0) or self.o.get("dbgtime", 0):
            a("s_memrealtime s[90:91]")
        a("v_lshrrev_b32 v1, 6, v0\nv_and_b32 v0, 63, v0")
        a("v_readfirstlane_b32 s3, v1")
        a("v_mov_b32 v4, 0\nv_mov_b32 v5, 0\nv_mov_b32 v6, 0\nv_mov_b32 v7, 0")
        a("ds_write_b128 v4, v[4:7] offset:%d\nds_write_b128 v4, v[4:7] offset:%d" % (L_FLAG, L_FLAG + 16))
        if self.o.get("order", 1) == 1:
            a("s_cmp_lt_u32 s3, 4\ns_cbranch_scc1 L_service")
            self.streaming()
            a("L_service:")
            self.service()
        else:
            a("s_cmp_ge_u32 s3, 4\ns_cbranch_scc1 L_stream")
            self.service()
            self.streaming()
        a("L_end:\ns_endpgm")
        return wrap(a.text(), 256, 512, LDS_BYTES, 256, 100, accum=256)


if __name__ == "__main__":
    import argparse
    ap = argparse.ArgumentParser()
    ap.add_argument("out")
    ap.add_argument("--diag", action="store_true")
    ap.add_argument("--opt", action="append", default=[])
    args = ap.parse_args()
    opts = {}
    for o in args.opt:
        k, v = o.split("=", 1)
        try: v = int(v)
        except ValueError: pass
        opts[k] = v
    open(args.out, "w").write(Gen(diag=args.diag, nback=opts.get('nback', 5), win=opts.get('win', 8), opts=opts).build())
```

```python
import sys, struct, math
from asmlib import *

def f32(x):
    return struct.unpack("<I", struct.pack("<f", x))[0]

WS_EPOCH = 0x0
WS_CTR = 0x1000
WS_MQ = 0x180000
SB = 0x10000
WS_M1 = SB + 0x0
WS_M2 = SB + 0x60000
WS_M3 = SB + 0xA8000
WS_M4 = SB + 0xC0000
RESET_PER_WG = 3072
WS_STAMP = 0x8000000
NSTAMP = 16
L_Q = 0x0
L_XN = 0x200
L_ACT = 0xB00
L_PML = 0xB80
L_FLAG = 0xBC0
L_PACC = 0xC00
L_WQ = 0x2000
L_WB = 0x6800
L_UP = L_WB + 36864 + 32
L_DN = L_WB + 73728 + 64
L_HB = L_DN + 37888
LDS_BYTES = L_HB + 4 * 3456 + 128
N_FFN, N_OP, N_RED = 144, 64, 36
OP0 = N_FFN
RED0 = N_FFN + N_OP
SPIN = 200000
LOG2E = 1.4426950408889634
EPOCH_INC = 0x9E3779B9


class Gen:
    def __init__(self, diag=False, nback=4, win=8, opts=None):
        self.a = Asm()
        self.diag = diag
        self.nback = nback
        self.win = win
        self.o = opts or {}

    def stamp(self, k):
        if self.diag:
            self.a("s_memrealtime s[%d:%d]" % (64 + 2 * k, 65 + 2 * k))

    def flush_stamps(self, ks):
        if not self.diag:
            return
        a = self.a
        a("s_waitcnt lgkmcnt(0)")
        a("s_mov_b64 exec, 1")
        a("s_mul_i32 s96, s2, %d\ns_add_u32 s96, s96, 0x%x" % (NSTAMP * 8, WS_STAMP))
        a("v_mov_b32 v252, 0")
        for k in ks:
            a("v_mov_b32 v250, s%d\nv_mov_b32 v251, s%d" % (64 + 2 * k, 65 + 2 * k))
            a("buffer_store_dwordx2 v[250:251], v252, s[28:31], s96 offen offset:%d" % (8 * k))
            a("s_nop 1")

    def srd(self, d, lo, size, add=None):
        a = self.a
        if add is None:
            a("s_mov_b32 s%d, s%d\ns_mov_b32 s%d, s%d" % (d, lo, d + 1, lo + 1))
        else:
            a("s_add_u32 s%d, s%d, %s\ns_addc_u32 s%d, s%d, 0" % (d, lo, add, d + 1, lo + 1))
        a("s_mov_b32 s%d, 0x%x\ns_mov_b32 s%d, 0x20000" % (d + 2, size, d + 3))

    def xrow(self, op, x, t, halves=True, rows=True):
        a = self.a
        if rows:
            a("v_mov_b32 v%d, v%d\ns_nop 1\nv_permlane16_swap_b32 v%d, v%d\ns_nop 0\n%s v%d, v%d, v%d" % (t, x, x, t, op, x, x, t))
        if halves:
            a("v_mov_b32 v%d, v%d\ns_nop 1\nv_permlane32_swap_b32 v%d, v%d\ns_nop 0\n%s v%d, v%d, v%d" % (t, x, x, t, op, x, x, t))

    def dpp(self, op, d, s0, s1, ctrl, bank=0xf):
        self.a("%s_dpp v%d, v%d, v%d %s row_mask:0xf bank_mask:0x%x" % (op, d, s0, s1, ctrl, bank))

    def row_reduce(self, op, regs):
        for ctrl in ("row_ror:8", "row_ror:4", "row_ror:2", "row_ror:1"):
            if len(regs) < 3:
                self.a("s_nop 1")
            for r in regs:
                self.dpp(op, r, r, r, ctrl)

    def oct_reduce(self, op, regs):
        for ctrl in ("row_half_mirror", "quad_perm:[1,0,3,2]", "quad_perm:[2,3,0,1]"):
            if len(regs) < 3:
                self.a("s_nop 1")
            for r in regs:
                self.dpp(op, r, r, r, ctrl)

    def layernorm(self, X, T, ldsaddr):
        a = self.a
        s, t, m, r = T, T + 1, T + 2, T + 3
        D = T + 4
        a("v_add_f32 v%d, v%d, v%d" % (s, X, X + 1))
        a("v_add_f32 v%d, v%d, v%d" % (t, X + 2, X + 3))
        for i in range(4, 18, 2):
            a("v_add_f32 v%d, v%d, v%d\nv_add_f32 v%d, v%d, v%d" % (s, s, X + i, t, t, X + i + 1))
        a("v_add_f32 v%d, v%d, v%d" % (s, s, t))
        self.row_reduce("v_add_f32", [s])
        self.xrow("v_add_f32", s, t, halves=False)
        a("v_mul_f32 v%d, 0x%x, v%d" % (m, f32(1.0 / 576), s))
        for i in range(18):
            a("v_sub_f32 v%d, v%d, v%d" % (D + i, X + i, m))
        a("v_mul_f32 v%d, v%d, v%d\nv_mul_f32 v%d, v%d, v%d" % (s, D, D, t, D + 1, D + 1))
        for i in range(2, 18, 2):
            a("v_fmac_f32 v%d, v%d, v%d\nv_fmac_f32 v%d, v%d, v%d" % (s, D + i, D + i, t, D + i + 1, D + i + 1))
        a("v_add_f32 v%d, v%d, v%d" % (s, s, t))
        self.row_reduce("v_add_f32", [s])
        self.xrow("v_add_f32", s, t, halves=False)
        a("v_mul_f32 v%d, 0x%x, v%d" % (s, f32(1.0 / 576), s))
        a("v_cvt_pk_bf16_f32 v%d, v%d, v%d" % (t, m, s))
        a("s_mov_b32 s40, 0xffff0000")
        a("v_lshlrev_b32 v%d, 16, v%d\nv_and_b32 v%d, s40, v%d" % (m, t, s, t))
        a("v_add_f32 v%d, 0x%x, v%d" % (s, f32(1e-5), s))
        a("v_cvt_pk_bf16_f32 v%d, v%d, v%d" % (s, s, s))
        a("v_and_b32 v%d, s40, v%d" % (s, s))
        a("v_sqrt_f32 v%d, v%d\ns_nop 0" % (s, s))
        a("v_cvt_pk_bf16_f32 v%d, v%d, v%d" % (s, s, s))
        a("v_and_b32 v%d, s40, v%d" % (s, s))
        a("v_rcp_f32 v%d, v%d" % (r, s))
        for i in range(18):
            a("v_sub_f32 v%d, v%d, v%d" % (D + i, X + i, m))
        for j in range(9):
            a("v_cvt_pk_bf16_f32 v%d, v%d, v%d" % (D + 2 * j + 1, D + 2 * j, D + 2 * j + 1))
        for j in range(9):
            a("v_lshlrev_b32 v%d, 16, v%d\nv_and_b32 v%d, s40, v%d" % (D + 2 * j, D + 2 * j + 1, D + 2 * j + 1, D + 2 * j + 1))
        for i in range(18):
            a("v_mul_f32 v%d, v%d, v%d" % (D + i, D + i, r))
        for j in range(9):
            a("v_cvt_pk_bf16_f32 v%d, v%d, v%d" % (D + 2 * j, D + 2 * j, D + 2 * j + 1))
        for j in range(9):
            a("ds_write_b32 v%d, v%d offset:%d" % (ldsaddr, D + 2 * j, j * 128))

    def poll_begin(self, name):
        self.a("s_mov_b32 s60, 0\n%s:" % name)

    def poll_end(self, name, regs, t):
        a = self.a
        a("s_waitcnt vmcnt(0)")
        regs = list(regs)
        first = True
        while regs:
            if first:
                if len(regs) >= 3:
                    a("v_max3_u32 v%d, v%d, v%d, v%d" % (t, regs[0], regs[1], regs[2])); regs = regs[3:]
                else:
                    a("v_max_u32 v%d, v%d, v%d" % (t, regs[0], regs[-1])); regs = regs[2:]
                first = False
            elif len(regs) >= 2:
                a("v_max3_u32 v%d, v%d, v%d, v%d" % (t, t, regs[0], regs[1])); regs = regs[2:]
            else:
                a("v_max_u32 v%d, v%d, v%d" % (t, t, regs[0])); regs = []
        a("v_cmp_eq_u32 vcc, -1, v%d" % t)
        a("s_add_u32 s60, s60, 1\ns_cmp_gt_u32 s60, %d\ns_cbranch_scc1 %s_x" % (SPIN, name))
        a("s_cbranch_vccnz %s\n%s_x:" % (name, name))

    def ticket(self, KR, VR, ring):
        a = self.a
        QA, QB, SA, SBR, T0, T1, MT, M, ML, LS, ACC, AF, MK = 10, 14, 18, 22, 26, 27, 28, 29, 30, 31, 32, 36, 5
        for j in range(4):
            if ring and j > 0:
                a("s_waitcnt vmcnt(8)")
            k = KR + 4 * j
            for e in range(4):
                a("v_dot2_f32_bf16 v%d, v%d, v%d, %s" % (SA + j, k + e, QA + e, "0" if e == 0 else "v%d" % (SA + j)))
                a("v_dot2_f32_bf16 v%d, v%d, v%d, %s" % (SBR + j, k + e, QB + e, "0" if e == 0 else "v%d" % (SBR + j)))
            if ring:
                a("buffer_load_dwordx4 v[%d:%d], v1, s[36:39], s45 offen offset:%d nt" % (k, k + 3, j * 1024))
        for j in range(4):
            self.dpp("v_add_f32", SA + j, SA + j, SA + j, "row_ror:8", 0x3)
        for j in range(4):
            self.dpp("v_add_f32", SA + j, SBR + j, SBR + j, "row_ror:8", 0xc)
        self.oct_reduce("v_add_f32", [SA + j for j in range(4)])
        for rnd in range(2):
            a("v_cvt_pk_bf16_f32 v%d, v%d, v%d\nv_cvt_pk_bf16_f32 v%d, v%d, v%d" % (T0, SA, SA + 1, T1, SA + 2, SA + 3))
            a("v_lshlrev_b32 v%d, 16, v%d\nv_and_b32 v%d, s46, v%d" % (SA, T0, SA + 1, T0))
            a("v_lshlrev_b32 v%d, 16, v%d\nv_and_b32 v%d, s46, v%d" % (SA + 2, T1, SA + 3, T1))
            if rnd == 0:
                for j in range(4):
                    a("v_mul_f32 v%d, s47, v%d" % (SA + j, SA + j))
        a("v_max3_f32 v%d, v%d, v%d, v%d\nv_max_f32 v%d, v%d, v%d" % (MT, SA, SA + 1, SA + 2, MT, MT, SA + 3))
        a("v_cmp_gt_f32 vcc, v%d, v%d" % (MT, M))
        lab = a.label("L_nors")
        a("s_cbranch_vccz %s\ns_call_b64 s[50:51], L_rescale\n%s:" % (lab, lab))
        for j in range(4):
            a("v_fma_f32 v%d, v%d, s48, -v%d" % (SA + j, SA + j, ML))
        for j in range(4):
            a("v_exp_f32 v%d, v%d" % (SA + j, SA + j))
        a("s_nop 0")
        for j in range(4):
            a("v_cvt_pk_bf16_f32 v%d, v%d, v%d" % (SBR + j, SA + j, SA + j))
        a("v_add_f32 v%d, v%d, v%d\nv_add_f32 v%d, v%d, v%d" % (T0, SA, SA + 1, T1, SA + 2, SA + 3))
        for j in range(4):
            for e in range(4):
                a("v_and_b32 v%d, v%d, v%d" % (AF + 4 * j + e, MK + e, SBR + j))
        a("v_add_f32 v%d, v%d, v%d\nv_add_f32 v%d, v%d, v%d" % (T0, T0, T1, LS, LS, T0))
        for j in range(4):
            if ring:
                a("s_waitcnt vmcnt(8)")
            v = VR + 4 * j
            a("v_mfma_f32_16x16x32_bf16 v[%d:%d], v[%d:%d], v[%d:%d], v[%d:%d]" % (ACC, ACC + 3, AF + 4 * j, AF + 4 * j + 3, v, v + 3, ACC, ACC + 3))
            if ring:
                a("buffer_load_dwordx4 v[%d:%d], v1, s[40:43], s45 offen offset:%d nt" % (v, v + 3, j * 1024))

    def streaming(self):
        a = self.a
        NB = self.nback
        NS = self.o.get("nstatic", 11)
        LIMF = self.o.get("limf", 512)
        assert NS >= 2 * NB + 1 and NS >= NB + 2
        RING, BACK = 52, 84
        a("L_stream:")
        a("s_sub_u32 s44, s3, 4")
        a("v_lshlrev_b32 v1, 4, v0")
        a("s_lshr_b32 s56, s2, 3\ns_lshl_b32 s46, s56, 21")
        a("s_and_b32 s45, s2, 7\ns_mul_i32 s45, s45, %d\ns_add_u32 s45, s45, s44\ns_lshl_b32 s45, s45, 12" % (NS * 4))
        a("s_waitcnt lgkmcnt(0)")
        self.srd(36, 6, 0x200000, "s46")
        self.srd(40, 8, 0x200000, "s46")
        n = 0
        for tk in range(NB + 1):
            base = BACK + 32 * tk if tk < NB else RING
            for kv in range(2):
                for j in range(4):
                    if n >= self.win:
                        a("s_waitcnt vmcnt(%d)" % (self.win - 1))
                    r = base + 16 * kv + 4 * j
                    a("buffer_load_dwordx4 v[%d:%d], v1, s[%d:%d], s45 offen offset:%d nt" % (r, r + 3, 36 + 4 * kv, 39 + 4 * kv, j * 1024))
                    n += 1
                    if n == self.o.get("qgo", (NB - 1) * 8):
                        a("ds_write_b32 v2, v3 offset:%d" % (L_FLAG + 12))
                    if n == self.win:
                        self.stamp(15)
                        self.srd(28, 26, 0x10000000)
                        a("v_and_b32 v26, 1, v0\nv_lshlrev_b32 v26, 4, v26\nv_mov_b32 v27, 0xffff\nv_lshlrev_b32 v27, v26, v27")
                        a("v_bfe_u32 v26, v0, 1, 2")
                        for e in range(4):
                            a("v_cmp_eq_u32 vcc, %d, v26\ns_nop 1\nv_cndmask_b32 v%d, 0, v27, vcc" % (e, 5 + e))
                        a("v_mov_b32 v29, 0x%x\nv_mov_b32 v30, 0x%x\nv_mov_b32 v31, 0" % (f32(-1e38), f32(-1e38 * LOG2E)))
                        a("v_mov_b32 v32, 0\nv_mov_b32 v33, 0\nv_mov_b32 v34, 0\nv_mov_b32 v35, 0")
                        a("s_mov_b32 s46, 0xffff0000\ns_mov_b32 s47, 0x%x\ns_mov_b32 s48, 0x%x" % (f32(128 ** -0.5), f32(LOG2E)))
                        a("s_mov_b32 s52, 0\ns_mov_b32 s53, -1")
                        a("v_and_b32 v9, 15, v0\nv_lshlrev_b32 v9, 4, v9")
                        a("v_mov_b32 v2, 0\nv_mov_b32 v3, 1\nv_mov_b32 v4, 0")
                        a("s_lshl_b32 s56, s56, 8\ns_add_u32 s56, s56, 0x%x" % WS_CTR)
                        a("s_barrier")
            if tk < NB:
                a("s_add_u32 s45, s45, 0x4000")
        self.stamp(8)
        if self.o.get("abl", 0) != 1:
            self.lds_wait(L_FLAG + 20, 1, 1, t=26)
        self.stamp(9)
        a("ds_read_b128 v[10:13], v9 offset:%d\nds_read_b128 v[14:17], v9 offset:%d" % (L_Q, L_Q + 256))
        a("s_mov_b32 s49, 0")
        a("s_waitcnt lgkmcnt(0)")
        a("L_sloop:")
        a("s_waitcnt vmcnt(7)")
        a("v_readfirstlane_b32 s57, v4")
        a("s_add_u32 s45, s45, 0x4000")
        a("s_mov_b64 exec, 1\nv_mov_b32 v4, 1")
        a("s_add_u32 s57, s57, %d\ns_lshl_b32 s57, s57, 12" % (NS * 32))
        a("s_cmp_lt_u32 s49, %d\ns_cselect_b32 s45, s45, s57" % (NS - NB - 1))
        EG = self.o.get("endgame", 32)
        a("s_cmp_lt_u32 s49, %d\ns_cbranch_scc1 L_sdummy" % (NS - NB - 2))
        a("s_cmp_ge_u32 s45, 0x%x\ns_cbranch_scc1 L_sstop" % ((512 - EG) * 4096))
        a("buffer_atomic_add v4, v2, s[28:31], s56 offen sc0")
        a("s_branch L_sgo")
        a("L_sstop:")
        a("s_mov_b64 exec, -1")
        a("s_cmp_ge_u32 s45, 0x200000\ns_cbranch_scc1 L_sst2")
        for kv in range(2):
            for j in range(4):
                r = BACK + 16 * kv + 4 * j
                a("buffer_load_dwordx4 v[%d:%d], v1, s[%d:%d], s45 offen offset:%d nt" % (r, r + 3, 36 + 4 * kv, 39 + 4 * kv, j * 1024))
        a("s_mov_b32 s49, 0")
        a("L_sst2:")
        a("s_mov_b32 s38, 0\ns_mov_b32 s42, 0")
        a("s_mov_b64 exec, 1")
        a("ds_add_u32 v2, v3 offset:%d" % (L_FLAG + 4))
        a("L_sdummy:")
        a("buffer_load_dword v9, v2, s[28:31], s56 offen offset:128")
        a("L_sgo:")
        a("s_cmp_lg_u32 s49, %d\ns_cbranch_scc1 L_sgo2" % self.o.get("rchk", 4))
        a("ds_write_b32 v2, v3 offset:%d" % (L_FLAG + 16))
        a("L_sgo2:")
        a("s_mov_b64 exec, -1")
        self.ticket(RING, RING + 16, True)
        for k in range(NB):
            a("s_cmp_eq_u32 s49, %d\ns_cbranch_scc1 L_back%d" % (k, k))
        a("L_scont:")
        a("s_add_u32 s49, s49, 1\ns_cmp_lg_u32 s38, 0\ns_cbranch_scc1 L_sloop")
        self.xrow("v_add_f32", 31, 26)
        a("s_lshl_b32 s45, s44, 10")
        a("v_add_u32 v26, s45, v1")
        a("ds_write_b128 v26, v[32:35] offset:%d" % L_PACC)
        a("s_lshl_b32 s45, s44, 4")
        a("v_add_u32 v27, s45, v0")
        a("s_mov_b64 exec, 0x101")
        a("ds_write_b64 v27, v[30:31] offset:%d" % L_PML)
        a("s_mov_b64 exec, 1")
        a("ds_add_u32 v2, v3 offset:%d" % L_FLAG)
        self.stamp(10)
        if self.diag:
            if self.o.get("abl", 0):
                a("s_cmp_lg_u32 s3, 7\ns_cbranch_scc1 L_nw7")
                a("s_waitcnt lgkmcnt(0)\ns_mov_b64 s[70:71], s[84:85]")
                self.flush_stamps([3])
                a("L_nw7:")
            a("s_cmp_lg_u32 s3, 4\ns_cbranch_scc1 L_end")
            self.flush_stamps([8, 9, 10, 15])
        a("s_endpgm")
        for k in range(NB):
            a("L_back%d:" % k)
            if k == 0:
                a("s_waitcnt vmcnt(8)")
            self.ticket(BACK + 32 * k, BACK + 32 * k + 16, False)
            a("s_branch L_scont")
        a("L_rescale:")
        a("v_max_f32 v28, v28, v29")
        self.xrow("v_max_f32", 28, 26)
        a("v_mov_b32 v29, v28\nv_mul_f32 v27, s48, v28\nv_sub_f32 v26, v30, v27\nv_exp_f32 v26, v26\nv_mov_b32 v30, v27")
        a("v_mul_f32 v31, v31, v26")
        a("v_readlane_b32 s54, v26, 0\nv_readlane_b32 s55, v26, 8\ns_nop 1")
        a("v_mov_b32 v26, s54\nv_mov_b32 v27, s55\nv_cndmask_b32 v26, v26, v27, s[52:53]")
        for r in range(4):
            a("v_mul_f32 v%d, v%d, v26" % (32 + r, 32 + r))
        a("s_setpc_b64 s[50:51]")

    def lds_wait(self, off, val, sleep, t=5):
        a = self.a
        lab = a.label("L_lw")
        a("v_mov_b32 v%d, 0\ns_mov_b32 s60, 0\n%s:" % (t, lab))
        a("ds_read_b32 v%d, v%d offset:%d\ns_waitcnt lgkmcnt(0)" % (t + 1, t, off))
        a("v_cmp_le_u32 vcc, %d, v%d" % (val, t + 1))
        a("s_add_u32 s60, s60, 1\ns_cmp_gt_u32 s60, %d\ns_cbranch_scc1 %s_x\ns_cbranch_vccnz %s_x" % (SPIN * 20, lab, lab))
        if sleep:
            a("s_sleep %d" % sleep)
        a("s_branch %s\n%s_x:" % (lab, lab))

    def qproj(self):
        a = self.a
        a("v_lshrrev_b32 v3, 5, v0\nv_mul_u32_u24 v3, 1152, v3\nv_and_b32 v4, 31, v0\nv_lshl_add_u32 v3, v4, 2, v3")
        a("v_mov_b32 v6, 0")
        a("s_lshr_b32 s46, s2, 3\ns_and_b32 s47, s46, 15\ns_lshr_b32 s48, s46, 4")
        a("s_bfe_u32 s49, s2, 0x10002\ns_lshl_b32 s44, s48, 1\ns_add_u32 s49, s49, s44")
        a("s_and_b32 s50, s2, 3")
        a("s_waitcnt lgkmcnt(0)")
        self.srd(36, 4, 2304)
        self.srd(28, 26, 0x10000000)
        for j in range(9):
            a("buffer_load_dword v%d, v3, s[36:39], 0 offen offset:%d" % (16 + 2 * j + 1, j * 128))
        a("buffer_load_dword v7, v6, s[28:31], 0 offen offset:%d sc1" % WS_EPOCH)
        self.srd(32, 24, 256)
        a("s_and_b32 s44, s2, 7\ns_cmp_eq_u32 s44, 0\ns_cselect_b64 exec, 1, 0")
        a("s_lshl_b32 s44, s46, 8\ns_add_u32 s44, s44, 0x%x" % WS_CTR)
        a("buffer_store_dword v6, v6, s[28:31], s44 offen sc1")
        a("s_mov_b64 exec, -1")
        a("s_mov_b32 s40, 0xffff0000")
        a("s_barrier")
        a("s_waitcnt vmcnt(0)")
        self.stamp(12)
        for j in range(9):
            a("v_lshlrev_b32 v%d, 16, v%d\nv_and_b32 v%d, s40, v%d" % (16 + 2 * j, 16 + 2 * j + 1, 16 + 2 * j + 1, 16 + 2 * j + 1))
        a("v_add_u32 v7, 0x%x, v7" % EPOCH_INC)
        a("v_add_u32 v8, %d, v3" % L_XN)
        self.layernorm(16, 40, 8)
        a("v_and_b32 v9, 1, v0\nv_mul_u32_u24 v9, 1152, v9\nv_lshl_add_u32 v9, v2, 3, v9\ns_mul_i32 s44, s50, 288\nv_add_u32 v9, s44, v9")
        a("v_lshrrev_b32 v10, 2, v0\nv_lshlrev_b32 v10, 7, v10\nv_and_b32 v11, 3, v0\nv_lshl_add_u32 v10, v11, 3, v10")
        self.stamp(13)
        a("s_waitcnt lgkmcnt(0)")
        FB, FA, D = 64, 84, 160
        for ks in range(9):
            a("ds_read_b64 v[%d:%d], v9 offset:%d" % (FB + 2 * ks, FB + 2 * ks + 1, L_XN + ks * 32))
        self.lds_wait(L_FLAG + 8, 3, 0, t=12)
        self.stamp(14)
        for ks in range(9):
            for t in range(4):
                r = FA + 8 * ks + 2 * t
                a("ds_read_b64_tr_b16 v[%d:%d], v10 offset:%d" % (r, r + 1, L_WQ + ks * 2048 + t * 32))
            if ks % 3 == 2:
                a("s_waitcnt lgkmcnt(0)")
                for k2 in range(ks - 2, ks + 1):
                    for t in range(4):
                        r = FA + 8 * k2 + 2 * t
                        a("v_mfma_f32_16x16x16_bf16 v[%d:%d], v[%d:%d], v[%d:%d], %s" % (D + 4 * t, D + 4 * t + 3, r, r + 1, FB + 2 * k2, FB + 2 * k2 + 1, "0" if k2 == 0 else "v[%d:%d]" % (D + 4 * t, D + 4 * t + 3)))
        a("s_lshl_b32 s45, s47, 14\ns_lshl_b32 s44, s50, 11\ns_add_u32 s45, s45, s44\ns_lshl_b32 s44, s49, 9\ns_add_u32 s45, s45, s44\ns_add_u32 s45, s45, 0x%x" % WS_MQ)
        a("v_and_b32 v10, 1, v0\nv_lshlrev_b32 v10, 13, v10\nv_lshl_add_u32 v10, v2, 5, v10\nv_bfe_u32 v11, v0, 1, 1\nv_lshl_add_u32 v10, v11, 4, v10")
        a("v_cmp_eq_u32 vcc, 1, v11")
        a("s_mov_b32 s52, 0x000f000f\ns_mov_b32 s53, 0x000f000f")
        for t in range(4):
            a("v_mov_b32 v%d, v7\nv_mov_b32 v%d, v7" % (17 + 4 * t, 19 + 4 * t))
        for t in range(4):
            a("v_cndmask_b32 v%d, v%d, v%d, vcc\nv_cndmask_b32 v%d, v%d, v%d, vcc" % (16 + 4 * t, D + 4 * t, D + 4 * t + 2, 18 + 4 * t, D + 4 * t + 1, D + 4 * t + 3))
        a("s_mov_b64 exec, s[52:53]")
        for t in range(4):
            a("buffer_store_dwordx4 v[%d:%d], v10, s[28:31], s45 offen offset:%d sc1" % (16 + 4 * t, 19 + 4 * t, t * 128))
        a("s_mov_b64 exec, -1")
        self.stamp(1)
        a("s_lshl_b32 s44, s47, 1\ns_add_u32 s44, s44, s48\ns_lshl_b32 s44, s44, 13\ns_add_u32 s44, s44, 0x%x\ns_add_u32 s45, s44, 4096" % WS_MQ)
        a("v_lshlrev_b32 v10, 4, v0\nv_lshlrev_b32 v11, 2, v0")
        G = 64
        self.lds_wait(L_FLAG + 12, 1, 2, t=12)
        a("s_mov_b32 s60, 0\nL_qpoll:")
        for i in range(8):
            a("buffer_load_dwordx4 v[%d:%d], v10, s[28:31], s%d offen offset:%d sc1" % (G + 4 * i, G + 4 * i + 3, 44 + i // 4, (i % 4) * 1024))
        a("s_waitcnt vmcnt(0)")
        for i in range(8):
            a("v_xor_b32 v%d, v%d, v7\nv_xor_b32 v%d, v%d, v7" % (G + 4 * i + 1, G + 4 * i + 1, G + 4 * i + 3, G + 4 * i + 3))
        a("v_or_b32 v12, v%d, v%d" % (G + 1, G + 3))
        for i in range(1, 8):
            a("v_or3_b32 v12, v12, v%d, v%d" % (G + 4 * i + 1, G + 4 * i + 3))
        a("v_cmp_ne_u32 vcc, 0, v12")
        a("s_add_u32 s60, s60, 1\ns_cmp_gt_u32 s60, %d\ns_cbranch_scc1 L_qpoll_x\ns_cbranch_vccnz L_qpoll\nL_qpoll_x:" % SPIN)
        for hf in range(2):
            for c in (0, 2):
                b0 = G + 4 * hf + c
                a("v_add_f32 v%d, v%d, v%d\nv_add_f32 v%d, v%d, v%d" % (b0, b0, b0 + 8, b0 + 16, b0 + 16, b0 + 24))
        for hf in range(2):
            for c in (0, 2):
                b0 = G + 4 * hf + c
                a("v_add_f32 v%d, v%d, v%d" % (b0, b0, b0 + 16))
        a("v_cvt_pk_bf16_f32 v12, v%d, v%d\nv_cvt_pk_bf16_f32 v13, v%d, v%d" % (G, G + 2, G + 4, G + 6))
        a("ds_write_b32 v11, v12 offset:%d\nds_write_b32 v11, v13 offset:%d" % (L_Q, L_Q + 256))
        a("v_mov_b32 v12, 1\nds_write_b32 v6, v12 offset:%d" % (L_FLAG + 20))
        a("v_readfirstlane_b32 s61, v7")
        a("s_waitcnt lgkmcnt(0)")
        self.stamp(2)

    def finish_attn(self):
        a = self.a
        a("L_finish:")
        self.lds_wait(L_FLAG + 16, 1, 8, t=4)
        a("v_mov_b32 v4, 0\ns_mov_b32 s60, 0\nL_rpoll:")
        a("buffer_load_dword v5, v4, s[32:35], 0 offen sc1\ns_waitcnt vmcnt(0)")
        a("v_cmp_gt_u32 vcc, 256, v5")
        a("s_add_u32 s60, s60, 1\ns_cmp_gt_u32 s60, %d\ns_cbranch_scc1 L_rpoll_x\ns_cbranch_vccz L_rpoll_x\ns_sleep 64\ns_branch L_rpoll\nL_rpoll_x:" % SPIN)
        a("v_mov_b32 v5, 1\ns_mov_b64 exec, 1\nds_add_u32 v4, v5 offset:%d\ns_mov_b64 exec, -1" % L_FLAG)
        a("s_lshr_b32 s44, s2, 3\ns_and_b32 s45, s44, 15\ns_lshr_b32 s44, s44, 4\ns_lshl_b32 s44, s44, 3\ns_and_b32 s46, s2, 7\ns_add_u32 s44, s44, s46")
        a("v_lshrrev_b32 v6, 5, v0\nv_lshlrev_b32 v6, 1, v6\nv_bfe_u32 v7, v0, 3, 1\nv_add_u32 v6, v6, v7\ns_lshl_b32 s45, s45, 2\nv_add_u32 v6, s45, v6")
        a("v_and_b32 v7, 7, v0\nv_lshlrev_b32 v7, 5, v7\nv_bfe_u32 v8, v0, 4, 1\nv_lshl_add_u32 v7, v8, 4, v7")
        a("v_mul_u32_u24 v6, 6144, v6\nv_add_u32 v8, v6, v7\nv_and_b32 v9, 7, v0\nv_lshl_add_u32 v9, v9, 4, v6")
        a("s_mul_i32 s46, s44, 384\ns_add_u32 s46, s46, 0x%x" % WS_M1)
        a("v_lshlrev_b32 v10, 4, v0\nv_lshrrev_b32 v11, 5, v0\nv_lshlrev_b32 v11, 3, v11")
        a("s_mov_b32 s48, 0xffff\ns_mov_b32 s49, 0xffff")
        self.lds_wait(L_FLAG, 5, 1, t=4)
        self.stamp(3)
        for wv in range(4):
            a("ds_read_b64 v[%d:%d], v11 offset:%d" % (12 + 2 * wv, 13 + 2 * wv, L_PML + 16 * wv))
        for wv in range(4):
            a("ds_read_b128 v[%d:%d], v10 offset:%d" % (20 + 4 * wv, 23 + 4 * wv, L_PACC + 1024 * wv))
        a("s_waitcnt lgkmcnt(0)")
        a("v_max3_f32 v36, v12, v14, v16\nv_max_f32 v36, v36, v18")
        for wv in range(4):
            a("v_sub_f32 v%d, v%d, v36" % (12 + 2 * wv, 12 + 2 * wv))
        for wv in range(4):
            a("v_exp_f32 v%d, v%d" % (12 + 2 * wv, 12 + 2 * wv))
        a("s_nop 0")
        for r in range(4):
            a("v_mul_f32 v%d, v12, v%d" % (40 + r, 20 + r))
        for wv in range(1, 4):
            for r in range(4):
                a("v_fmac_f32 v%d, v%d, v%d" % (40 + r, 12 + 2 * wv, 20 + 4 * wv + r))
        a("buffer_store_dwordx4 v[40:43], v8, s[28:31], s46 offen sc1")
        a("v_mul_f32 v37, v12, v13")
        for wv in range(1, 4):
            a("v_fmac_f32 v37, v%d, v%d" % (12 + 2 * wv, 13 + 2 * wv))
        a("v_mov_b32 v38, v36\nv_mov_b32 v39, v37")
        a("s_mov_b64 exec, s[48:49]")
        a("buffer_store_dwordx4 v[36:39], v9, s[28:31], s46 offen offset:256 sc1")
        a("s_mov_b64 exec, 1\nv_mov_b32 v5, 1\nds_add_u32 v4, v5 offset:%d" % L_FLAG)
        a("s_mov_b64 exec, -1")
        self.stamp(4)
        a("s_setpc_b64 s[50:51]")

    def service(self):
        a = self.a
        a("s_setprio 2")
        if self.o.get("abl", 0) == 1:
            a("s_waitcnt lgkmcnt(0)")
            self.srd(28, 26, 0x10000000)
            a("s_barrier")
            a("s_cmp_lg_u32 s3, 0\ns_cbranch_scc1 L_end")
            self.flush_stamps([0])
            a("s_endpgm")
        a("v_and_b32 v1, 15, v0\nv_lshrrev_b32 v2, 4, v0")
        a("s_cmp_lg_u32 s3, 0\ns_cbranch_scc1 L_svc_other")
        self.qproj()
        a("s_branch L_svc_a")
        a("L_svc_other:")
        a("v_lshrrev_b32 v4, 3, v0\nv_lshlrev_b32 v4, 13, v4\nv_and_b32 v5, 7, v0\nv_lshl_add_u32 v4, v5, 4, v4")
        a("s_bfe_u32 s47, s2, 0x40003\ns_lshr_b32 s48, s2, 7\ns_bfe_u32 s49, s2, 0x10002\ns_lshl_b32 s44, s48, 1\ns_add_u32 s49, s49, s44\ns_and_b32 s50, s2, 3")
        a("s_lshl_b32 s45, s47, 2\ns_add_u32 s45, s45, s49\ns_lshl_b32 s45, s45, 7\ns_mul_i32 s44, s50, 3\ns_add_u32 s44, s44, s3\ns_sub_u32 s44, s44, 1\ns_mul_i32 s44, s44, %d\ns_add_u32 s45, s45, s44" % (48 * 8192))
        a("s_mul_i32 s46, s3, 6144\ns_add_u32 s46, s46, %d" % (L_WQ - 6144))
        a("s_waitcnt lgkmcnt(0)")
        self.srd(40, 10, 576 * 8192)
        for i in range(6):
            a("s_mov_b32 m0, s46\ns_add_u32 s46, s46, 1024")
            a("buffer_load_dwordx4 v4, s[40:43], s45 offen nt lds")
            a("s_add_u32 s45, s45, %d" % (8 * 8192))
        self.srd(28, 26, 0x10000000)
        self.srd(32, 24, 256)
        a("s_mov_b32 s61, 0")
        a("v_mov_b32 v6, 0\nv_mov_b32 v7, 1")
        a("s_barrier")
        a("s_waitcnt vmcnt(0)")
        a("s_mov_b64 exec, 1\nds_add_u32 v6, v7 offset:%d\ns_mov_b64 exec, -1" % (L_FLAG + 8))
        self.lds_wait(L_FLAG + self.o.get("bgflag", 20), 1, 4, t=12)
        a("L_svc_a:")
        if self.o.get("abl", 0) == 2:
            a("s_cmp_lg_u32 s3, 0\ns_cbranch_scc1 L_end")
            self.flush_stamps([0, 1, 2, 12, 13, 14])
            a("s_endpgm")
        a("s_cmp_lg_u32 s3, 1\ns_cbranch_scc1 L_svc_r")
        a("v_mov_b32 v10, 0")
        a("v_mov_b32 v4, -1\nv_mov_b32 v5, -1\nv_mov_b32 v6, -1\nv_mov_b32 v7, -1\nv_lshlrev_b32 v8, 4, v0")
        a("s_mul_i32 s44, s2, %d\ns_add_u32 s44, s44, 0x%x" % (RESET_PER_WG, SB))
        for i in range(RESET_PER_WG // 1024):
            if i == 4:
                a("s_add_u32 s44, s44, 4096")
            if not self.o.get("noreset", 0):
                a("buffer_store_dwordx4 v[4:7], v8, s[28:31], s44 offen offset:%d sc1" % ((i % 4) * 1024))
        a("v_mov_b32 v9, 1")
        a("s_waitcnt vmcnt(0) lgkmcnt(0)")
        a("s_mov_b64 exec, 1")
        if self.o.get("padmin", 0):
            a("s_and_b32 s92, s90, 0x7fffffff\ns_not_b32 s92, s92\nv_mov_b32 v11, s92\nbuffer_atomic_umax v11, v10, s[32:35], 0 offen offset:16")
            a("s_and_b32 s92, s90, 0x7fffffff\nv_mov_b32 v12, s92\nbuffer_atomic_umax v12, v10, s[32:35], 0 offen offset:20\ns_waitcnt vmcnt(0)")
        a("buffer_atomic_add v9, v10, s[32:35], 0 offen")
        a("s_mov_b64 exec, -1")
        a("L_svc_r:")
        a("s_and_b32 s44, s2, 7\ns_lshr_b32 s45, s2, 3\ns_add_u32 s46, s44, s45\ns_and_b32 s46, s46, 7\ns_lshr_b32 s47, s45, 3")
        a("s_mul_i32 s48, s44, 18\ns_lshl_b32 s49, s46, 2\ns_add_u32 s58, s48, s49\ns_add_u32 s58, s58, s47\ns_sub_u32 s58, s58, 12")
        a("s_add_u32 s48, s44, %d\ns_cmp_lt_u32 s44, 4\ns_cselect_b32 s48, s48, 255\ns_cmp_eq_u32 s47, 2\ns_cselect_b32 s48, s48, 255" % (RED0 + 32))
        a("s_cmp_lt_u32 s47, 2\ns_cselect_b32 s48, s58, s48\ns_cmp_eq_u32 s46, 7\ns_cselect_b32 s58, s48, s58")
        a("s_add_u32 s48, s45, %d\ns_cmp_eq_u32 s46, 2\ns_cselect_b32 s58, s48, s58" % RED0)
        a("s_lshl_b32 s48, s45, 1\ns_add_u32 s48, s48, s46\ns_add_u32 s48, s48, %d\ns_cmp_lt_u32 s46, 2\ns_cselect_b32 s58, s48, s58" % OP0)
        a("s_cmp_lt_u32 s58, %d\ns_cbranch_scc1 L_ffn" % OP0)
        a("s_cmp_lt_u32 s58, %d\ns_cbranch_scc1 L_oproj" % RED0)
        a("s_cmp_lt_u32 s58, %d\ns_cbranch_scc1 L_red" % (RED0 + N_RED))
        a("s_cmp_lg_u32 s3, 0\ns_cbranch_scc1 L_end")
        a("s_call_b64 s[50:51], L_finish")
        self.flush_stamps([0, 1, 2, 3, 4, 12, 13, 14])
        a("s_endpgm")
        self.finish_attn()
        self.oproj()
        self.reducer()
        self.ffn()

    def oproj(self):
        a = self.a
        WF = 64
        a("L_oproj:")
        a("s_sub_u32 s59, s58, %d" % OP0)
        self.srd(36, 12, 4096 * 1152)
        a("s_mul_i32 s45, s59, 73728\ns_mul_i32 s46, s3, 288\ns_add_u32 s45, s45, s46")
        a("s_mul_i32 s46, s3, 18432\ns_add_u32 s46, s46, %d" % L_WB)
        a("v_mul_u32_u24 v4, 3641, v0\nv_lshrrev_b32 v4, 16, v4")
        a("v_mul_u32_u24 v5, 18, v4\nv_sub_u32 v5, v0, v5")
        a("v_mul_u32_u24 v4, 1152, v4\nv_lshl_add_u32 v4, v5, 4, v4")
        a("v_mov_b32 v7, 864")
        OW = self.o.get("op_win", 3)
        for n in range(18):
            if n >= OW:
                a("s_waitcnt vmcnt(%d)" % (OW - 1))
            a("s_mov_b32 m0, s46\ns_add_u32 s46, s46, 1024")
            a("buffer_load_dwordx4 v4, s[36:39], s45 offen nt lds")
            if n < 17:
                a("v_add_u32 v5, 10, v5\nv_cmp_le_u32 vcc, 18, v5\nv_add_u32 v4, 3616, v4\nv_subrev_u32 v6, 18, v5")
                a("v_cndmask_b32 v5, v5, v6, vcc\nv_cndmask_b32 v6, 0, v7, vcc\nv_add_u32 v4, v4, v6")
        a("v_lshrrev_b32 v4, 2, v1\nv_lshl_add_u32 v4, v2, 3, v4\nv_mul_u32_u24 v4, 288, v4\nv_and_b32 v5, 3, v0\nv_lshl_add_u32 v4, v5, 3, v4")
        a("s_mul_i32 s46, s3, 18432\ns_add_u32 s46, s46, %d\nv_add_u32 v4, s46, v4" % L_WB)
        a("s_waitcnt vmcnt(0)")
        for tt in range(9):
            for ks in range(2):
                for hh in range(2):
                    r = WF + tt * 8 + ks * 4 + hh * 2
                    a("ds_read_b64_tr_b16 v[%d:%d], v4 offset:%d" % (r, r + 1, (32 * ks + 4 * hh) * 288 + tt * 32))
            if tt % 3 == 2:
                a("s_waitcnt lgkmcnt(0)")
        a("v_mul_u32_u24 v51, 384, v1\nv_lshl_add_u32 v50, v2, 5, v51")
        a("v_bfe_u32 v52, v0, 3, 1\nv_lshlrev_b32 v52, 6, v52\nv_lshl_add_u32 v52, v2, 4, v52")
        a("s_mul_i32 s52, s59, 6144\ns_add_u32 s52, s52, 0x%x" % WS_M1)
        a("s_mul_i32 s54, s3, %d\ns_lshl_b32 s55, s59, 7\ns_add_u32 s54, s54, s55\ns_add_u32 s54, s54, 0x%x" % (9 * 8192, WS_M2))
        a("s_mov_b32 s56, 0x01010101\ns_mov_b32 s57, 0x01010101")
        a("s_cmp_lg_u32 s3, 0\ns_cbranch_scc1 L_op_w")
        a("s_call_b64 s[50:51], L_finish")
        a("s_branch L_op_go")
        a("L_op_w:")
        self.lds_wait(L_FLAG, 5, 2)
        a("L_op_go:")
        self.poll_begin("L_op_poll")
        a("buffer_load_dwordx2 v[12:13], v51, s[28:31], s52 offen offset:256 sc1")
        for ks in range(2):
            for hh in range(2):
                r = 16 + 8 * ks + 4 * hh
                a("buffer_load_dwordx4 v[%d:%d], v50, s[28:31], s52 offen offset:%d sc1" % (r, r + 3, ks * 128 + hh * 16))
        self.poll_end("L_op_poll", [12, 13] + list(range(16, 32)), 14)
        self.stamp(5)
        a("v_mov_b32 v14, v12")
        self.oct_reduce("v_max_f32", [14])
        a("v_sub_f32 v12, v12, v14\nv_exp_f32 v12, v12\ns_nop 0\nv_mul_f32 v13, v12, v13")
        self.oct_reduce("v_add_f32", [13])
        a("v_rcp_f32 v13, v13\ns_nop 0\nv_mul_f32 v12, v12, v13")
        for r in range(16, 32):
            a("v_mul_f32 v%d, v12, v%d" % (r, r))
        self.oct_reduce("v_add_f32", list(range(16, 32)))
        for i in range(8):
            a("v_cvt_pk_bf16_f32 v%d, v%d, v%d" % (32 + i, 16 + 2 * i, 17 + 2 * i))
        a("s_nop 1")
        D = 140
        for tt in range(9):
            a("v_mfma_f32_16x16x32_bf16 v[%d:%d], v[%d:%d], v[32:35], 0" % (D + 4 * tt, D + 4 * tt + 3, WF + 8 * tt, WF + 8 * tt + 3))
        for tt in range(9):
            a("v_mfma_f32_16x16x32_bf16 v[%d:%d], v[%d:%d], v[36:39], v[%d:%d]" % (D + 4 * tt, D + 4 * tt + 3, WF + 8 * tt + 4, WF + 8 * tt + 7, D + 4 * tt, D + 4 * tt + 3))
        a("s_mov_b64 exec, s[56:57]")
        for tt in range(9):
            if tt == 8:
                a("s_nop 7")
            a("buffer_store_dwordx4 v[%d:%d], v52, s[28:31], s54 offen sc1" % (D + 4 * tt, D + 4 * tt + 3))
            a("s_add_u32 s54, s54, 8192")
        self.stamp(6)
        if self.diag:
            a("s_cmp_lg_u32 s3, 0\ns_cbranch_scc1 L_end")
            self.flush_stamps([0, 1, 2, 3, 4, 5, 6, 12, 13, 14])
        a("s_endpgm")

    def gather_sum(self, name, G, n, sbase):
        a = self.a
        self.poll_begin(name)
        for i in range(n):
            a("buffer_load_dwordx4 v[%d:%d], v50, s[28:31], s%d offen offset:%d sc1" % (G + 4 * i, G + 4 * i + 3, sbase + i // 4, (i % 4) * 1024))
        for i in range(1, n):
            a("s_waitcnt vmcnt(%d)" % (n - 1 - i))
            a("v_pk_add_f32 v[%d:%d], v[%d:%d], v[%d:%d]" % (G, G + 1, G, G + 1, G + 4 * i, G + 4 * i + 1))
            a("v_pk_add_f32 v[%d:%d], v[%d:%d], v[%d:%d]" % (G + 2, G + 3, G + 2, G + 3, G + 4 * i + 2, G + 4 * i + 3))
        a("s_nop 1")
        a("v_permlane32_swap_b32 v%d, v%d\nv_permlane32_swap_b32 v%d, v%d" % (G, G + 2, G + 1, G + 3))
        a("v_add_f32 v%d, v%d, v%d\nv_add_f32 v%d, v%d, v%d" % (G, G, G + 2, G + 1, G + 1, G + 3))
        a("s_nop 1")
        a("v_permlane16_swap_b32 v%d, v%d" % (G, G + 1))
        a("v_add_f32 v%d, v%d, v%d" % (G, G, G + 1))
        a("s_nop 1")
        self.dpp("v_add_f32", G, G, G, "row_ror:8")
        a("v_cmp_u_f32 vcc, v%d, v%d" % (G, G))
        a("s_add_u32 s60, s60, 1\ns_cmp_gt_u32 s60, %d\ns_cbranch_scc1 %s_x" % (SPIN, name))
        a("s_cbranch_vccnz %s\n%s_x:" % (name, name))

    def round4(self, base, t):
        a = self.a
        a("v_cvt_pk_bf16_f32 v%d, v%d, v%d\nv_cvt_pk_bf16_f32 v%d, v%d, v%d" % (t, base, base + 1, t + 1, base + 2, base + 3))
        a("v_lshlrev_b32 v%d, 16, v%d\nv_and_b32 v%d, s40, v%d" % (base, t, base + 1, t))
        a("v_lshlrev_b32 v%d, 16, v%d\nv_and_b32 v%d, s40, v%d" % (base + 2, t + 1, base + 3, t + 1))

    def reducer(self):
        a = self.a
        a("L_red:")
        a("s_sub_u32 s59, s58, %d" % RED0)
        a("s_cmp_eq_u32 s3, 0\ns_cbranch_scc1 L_red0")
        a("s_cmp_lg_u32 s3, 1\ns_cbranch_scc1 L_end")
        a("s_mul_i32 s52, s59, %d\ns_add_u32 s52, s52, 0x%x" % (144 * 128, WS_M4))
        a("v_mov_b32 v12, -1\nv_mov_b32 v13, -1\nv_mov_b32 v14, -1\nv_mov_b32 v15, -1\nv_lshlrev_b32 v8, 4, v0")
        self.lds_wait(L_FLAG + self.o.get("m4flag", 4), self.o.get("m4cnt", 4), 2)
        for i in range(18):
            a("buffer_store_dwordx4 v[12:15], v8, s[28:31], s52 offen offset:%d sc1" % ((i % 4) * 1024))
            if i % 4 == 3:
                a("s_add_u32 s52, s52, 4096")
        a("v_mov_b32 v9, 0\nv_mov_b32 v10, 1\ns_waitcnt vmcnt(0)")
        a("ds_write_b32 v9, v10 offset:%d" % (L_FLAG + 28))
        a("s_endpgm")
        a("L_red0:")
        self.srd(36, 4, 2304)
        a("v_bfe_u32 v51, v0, 2, 1\nv_mul_u32_u24 v51, 1152, v51\nv_and_b32 v4, 3, v0\nv_lshl_add_u32 v51, v4, 3, v51\nv_lshl_add_u32 v51, v2, 1, v51")
        a("s_lshl_b32 s45, s59, 5\nv_add_u32 v51, s45, v51")
        a("buffer_load_ushort v53, v51, s[36:39], 0 offen")
        a("v_lshlrev_b32 v50, 4, v0")
        a("v_and_b32 v52, 7, v0\nv_lshlrev_b32 v52, 3, v52\nv_bfe_u32 v5, v0, 2, 1\nv_lshlrev_b32 v5, 3, v5\nv_lshl_add_u32 v5, v4, 4, v5\nv_add_u32 v5, 64, v5")
        a("s_mov_b32 s62, 0xffff0000\ns_mov_b32 s63, 0xffff0000")
        a("v_cndmask_b32 v52, v52, v5, s[62:63]\nv_lshrrev_b32 v5, 5, v0\nv_lshl_add_u32 v52, v5, 2, v52")
        a("s_waitcnt vmcnt(0)")
        a("v_lshlrev_b32 v53, 16, v53")
        self.srd(36, 22, 2304)
        a("s_call_b64 s[50:51], L_finish")
        a("s_mov_b32 s40, 0xffff0000")
        a("s_lshl_b32 s52, s59, 13\ns_add_u32 s52, s52, 0x%x\ns_add_u32 s53, s52, 4096" % WS_M2)
        a("s_lshl_b32 s41, s59, 7\ns_add_u32 s41, s41, 0x%x" % WS_M3)
        a("s_mov_b32 s42, 0x00ff00ff\ns_mov_b32 s43, 0x00ff00ff")
        self.lds_wait(L_FLAG + 28, 1, 1, t=12)
        G = 64
        self.gather_sum("L_r1_poll", G, 8, 52)
        self.stamp(5)
        a("v_cvt_pk_bf16_f32 v%d, v%d, v%d\nv_and_b32 v%d, s40, v%d" % (G, G, G, G, G))
        a("v_add_f32 v53, v53, v%d" % G)
        a("v_cvt_pk_bf16_f32 v53, v53, v53\nv_and_b32 v53, s40, v53")
        a("v_mov_b32 v12, v53\nv_mov_b32 v13, v53\ns_nop 1\nv_permlane16_swap_b32 v12, v13")
        a("v_add_f32 v14, v12, v13\nv_mul_f32 v15, v12, v12\nv_fmac_f32 v15, v13, v13")
        a("v_cvt_pk_bf16_f32 v16, v12, v13\ns_nop 0\nv_permlane32_swap_b32 v14, v15")
        a("v_add_f32 v14, v14, v15\ns_nop 1")
        self.dpp("v_add_f32", 14, 14, 14, "quad_perm:[1,0,3,2]")
        a("s_nop 1")
        self.dpp("v_add_f32", 14, 14, 14, "quad_perm:[2,3,0,1]")
        a("v_cndmask_b32 v16, v16, v14, s[62:63]")
        a("s_mov_b64 exec, s[42:43]")
        a("buffer_store_dword v16, v52, s[28:31], s41 offen sc1")
        a("s_mov_b64 exec, -1")
        self.stamp(6)
        a("s_mul_i32 s52, s59, %d\ns_add_u32 s52, s52, 0x%x" % (144 * 128, WS_M4))
        for i in range(1, 5):
            a("s_add_u32 s%d, s52, %d" % (52 + i, 4096 * i))
        a("s_mov_b32 s42, 0x00ff00ff\ns_mov_b32 s43, 0x00ff00ff")
        self.gather_sum("L_r2_poll", G, 18, 52)
        self.stamp(7)
        a("v_cvt_pk_bf16_f32 v%d, v%d, v%d\nv_and_b32 v%d, s40, v%d" % (G, G, G, G, G))
        a("v_add_f32 v53, v53, v%d" % G)
        a("v_cvt_pk_bf16_f32 v53, v53, v53")
        a("s_mov_b64 exec, s[42:43]")
        a("buffer_store_short v53, v51, s[36:39], 0 offen")
        a("s_cmp_lg_u32 s59, 0\ns_cbranch_scc1 L_red_end")
        a("s_mov_b64 exec, 1\nv_mov_b32 v16, s61\nv_mov_b32 v17, 0")
        a("buffer_store_dword v16, v17, s[28:31], 0 offen offset:%d sc1" % WS_EPOCH)
        a("L_red_end:")
        if self.o.get("dbgtime", 0):
            a("s_memrealtime s[92:93]\ns_waitcnt lgkmcnt(0)\ns_sub_u32 s92, s92, s90\ns_mov_b64 exec, 1\nv_mov_b32 v16, s92\nv_mov_b32 v17, 0")
            a("buffer_atomic_umax v16, v17, s[32:35], 0 offen offset:8")
        if self.o.get("padmin", 0):
            a("s_mov_b64 exec, 1\nv_mov_b32 v17, 0\nbuffer_load_dword v16, v17, s[32:35], 0 offen offset:16 sc1\ns_waitcnt vmcnt(0)\nv_readfirstlane_b32 s90, v16\ns_nop 3\ns_not_b32 s90, s90")
            a("L_pad2:\ns_memrealtime s[92:93]\ns_waitcnt lgkmcnt(0)\ns_and_b32 s92, s92, 0x7fffffff\ns_sub_u32 s92, s92, s90\ns_cmp_lt_u32 s92, %d\ns_cbranch_scc1 L_pad2" % (self.o["padmin"] * 100))
        if self.o.get("padto", 0):
            a("L_pad:\ns_memrealtime s[92:93]\ns_waitcnt lgkmcnt(0)\ns_sub_u32 s92, s92, s90\ns_cmp_lt_u32 s92, %d\ns_cbranch_scc1 L_pad" % (self.o["padto"] * 100))
        self.stamp(11)
        self.flush_stamps([0, 1, 2, 3, 4, 5, 6, 7, 11, 12, 13, 14])
        a("s_endpgm")

    def ffn(self):
        a = self.a
        GF, DF, HF = 64, 136, 172
        EN = self.o.get("early", 18)
        assert EN % 2 == 0
        EK = EN // 2
        FW = self.o.get("ffn_win", 40)
        EW = self.o.get("early_win", 3)
        def gu_reads(k0, k1):
            n = 0
            for ks in range(k0, k1):
                for hh in range(2):
                    r = GF + 4 * ks + 2 * hh
                    a("ds_read_b64_tr_b16 v[%d:%d], v56 offset:%d" % (r, r + 1, (32 * ks + 4 * hh) * 64))
                if ks % 3 == 2:
                    a("s_waitcnt lgkmcnt(6)")
        a("L_ffn:")
        a("s_mul_i32 s59, s3, 3456\ns_add_u32 s59, s59, %d" % L_HB)
        a("v_mov_b32 v4, 0x3f803f80\nv_mov_b32 v5, v4\nv_mov_b32 v6, v4\nv_mov_b32 v7, v4\nv_lshlrev_b32 v8, 4, v0\nv_add_u32 v8, s59, v8")
        a("ds_write_b128 v8, v[4:7] offset:2304\nds_write_b128 v8, v[4:7] offset:%d" % (2304 + 128))
        a("v_lshrrev_b32 v4, 2, v0\nv_and_b32 v5, 3, v0\nv_lshlrev_b32 v50, 7, v4\nv_lshl_add_u32 v50, v5, 4, v50")
        a("v_add_u32 v51, 4096, v50\nv_subrev_u32 v6, 16, v0\nv_lshlrev_b32 v6, 7, v6\nv_add_u32 v6, 64, v6\nv_cmp_gt_u32 vcc, 16, v0\ns_nop 1\nv_cndmask_b32 v51, v6, v51, vcc")
        a("v_bfe_u32 v52, v0, 1, 1\nv_mul_u32_u24 v52, 1152, v52\nv_lshl_add_u32 v52, v4, 5, v52\nv_and_b32 v6, 1, v0\nv_lshl_add_u32 v52, v6, 4, v52\nv_add_u32 v52, s59, v52")
        a("v_bfe_u32 v53, v0, 2, 1\nv_cmp_eq_u32 vcc, 1, v6\ns_nop 1\nv_cndmask_b32 v53, v53, 2, vcc")
        a("v_mul_u32_u24 v53, 1152, v53\nv_lshl_add_u32 v53, v2, 4, v53\nv_add_u32 v53, s59, v53")
        a("s_lshl_b32 s45, s3, 3\nv_add_u32 v7, s45, v1\nv_bfe_u32 v54, v7, 2, 2\nv_lshlrev_b32 v54, 4, v54\nv_bfe_u32 v8, v7, 4, 1\nv_lshl_add_u32 v54, v8, 3, v54")
        a("v_lshl_add_u32 v54, v5, 1, v54\nv_and_b32 v8, 1, v2\nv_lshl_add_u32 v54, v8, 6, v54")
        a("v_lshlrev_b32 v55, 6, v6\nv_lshl_add_u32 v55, v2, 4, v55")
        a("v_lshrrev_b32 v7, 2, v1\nv_lshl_add_u32 v7, v2, 3, v7")
        a("v_bfe_u32 v56, v0, 1, 1\nv_mul_u32_u24 v56, %d, v56\nv_lshl_add_u32 v56, v7, 6, v56\nv_lshl_add_u32 v56, v6, 3, v56" % (L_UP - L_WB))
        a("v_xor_b32 v8, s3, v8\nv_lshl_add_u32 v56, v8, 4, v56\nv_add_u32 v56, %d, v56" % L_WB)
        a("v_mul_u32_u24 v57, 1184, v4\nv_lshl_add_u32 v57, v5, 3, v57")
        a("s_mul_i32 s45, s3, 288\ns_add_u32 s45, s45, %d\nv_add_u32 v57, s45, v57" % L_DN)
        a("s_mul_i32 s54, s3, %d\ns_lshl_b32 s55, s58, 7\ns_add_u32 s54, s54, s55\ns_add_u32 s54, s54, 0x%x" % (9 * 144 * 128, WS_M4))
        a("s_cmp_lg_u32 s3, 0\ns_cbranch_scc1 L_ffn_w")
        a("s_call_b64 s[50:51], L_finish")
        if EK:
            a("s_call_b64 s[50:51], L_ffn_er")
        a("s_branch L_ffn_c")
        if EK:
            a("L_ffn_er:")
            self.lds_wait(L_FLAG + 24, 2, 2, t=12)
            gu_reads(0, EK)
            a("s_waitcnt lgkmcnt(0)")
            a("s_setpc_b64 s[50:51]")
        a("L_ffn_w:")
        a("s_setprio 0")
        a("s_cmp_eq_u32 s3, 3\ns_cbranch_scc1 L_ffn_dn")
        a("s_cmp_eq_u32 s3, 1\ns_cselect_b32 s36, s16, s18\ns_cselect_b32 s37, s17, s19\ns_mov_b32 s38, %d\ns_mov_b32 s39, 0x20000" % (576 * 9216))
        a("s_cselect_b32 s46, 0, %d\ns_add_u32 s46, s46, %d" % (L_UP - L_WB, L_WB))
        a("s_lshl_b32 s45, s58, 6")
        a("v_mul_u32_u24 v4, 9216, v4\nv_lshrrev_b32 v7, 5, v0\nv_xor_b32 v5, v5, v7\nv_lshl_add_u32 v4, v5, 4, v4")
        a("s_mov_b32 s48, 0")
        if EN:
            a("L_ffn_lde:")
            a("s_mov_b32 m0, s46\ns_add_u32 s46, s46, 1024")
            a("buffer_load_dwordx4 v4, s[36:39], s45 offen nt lds")
            a("s_add_u32 s45, s45, %d\ns_add_u32 s48, s48, 1" % (16 * 9216))
            a("s_waitcnt vmcnt(%d)" % (EW - 1))
            a("s_cmp_lt_u32 s48, %d\ns_cbranch_scc1 L_ffn_lde" % EN)
            a("v_mov_b32 v8, 0\nv_mov_b32 v9, 1\ns_waitcnt vmcnt(0)")
            a("s_mov_b64 exec, 1\nds_add_u32 v8, v9 offset:%d\ns_mov_b64 exec, -1" % (L_FLAG + 24))
            a("s_call_b64 s[50:51], L_ffn_er")
        if EN < 36:
            self.lds_wait(L_FLAG, 6, 1, t=12)
            a("L_ffn_ldl:")
            a("s_mov_b32 m0, s46\ns_add_u32 s46, s46, 1024")
            a("buffer_load_dwordx4 v4, s[36:39], s45 offen nt lds")
            a("s_add_u32 s45, s45, %d\ns_add_u32 s48, s48, 1" % (16 * 9216))
            a("s_waitcnt vmcnt(%d)" % (FW - 1))
            a("s_cmp_lt_u32 s48, 36\ns_cbranch_scc1 L_ffn_ldl")
            a("s_waitcnt vmcnt(0)")
        a("s_branch L_ffn_c")
        a("L_ffn_dn:")
        self.srd(36, 20, 4608 * 1152)
        a("s_mul_i32 s45, s58, 36864\ns_mov_b32 s46, %d\ns_mov_b32 s48, 0" % L_DN)
        a("v_lshlrev_b32 v4, 4, v0\nv_mov_b32 v5, v0\nv_mov_b32 v7, 32")
        if EK:
            a("s_call_b64 s[50:51], L_ffn_er")
        self.lds_wait(L_FLAG, 6, 1, t=12)
        a("L_ffn_ldd:")
        a("s_mov_b32 m0, s46\ns_add_u32 s46, s46, 1024")
        a("buffer_load_dwordx4 v4, s[36:39], s45 offen nt lds")
        a("v_add_u32 v5, 64, v5\nv_cmp_le_u32 vcc, 74, v5\nv_add_u32 v4, 1024, v4\nv_subrev_u32 v6, 74, v5\ns_add_u32 s48, s48, 1")
        a("v_cndmask_b32 v5, v5, v6, vcc\nv_cndmask_b32 v6, 0, v7, vcc\nv_sub_u32 v4, v4, v6")
        a("s_waitcnt vmcnt(%d)" % (self.o.get("dn_win", 40) - 1))
        a("s_cmp_lt_u32 s48, 37\ns_cbranch_scc1 L_ffn_ldd")
        a("s_waitcnt vmcnt(0)")
        a("L_ffn_c:")
        a("s_mov_b32 s40, 0xffff0000")
        a("s_mov_b32 s41, 0x%x\ns_mov_b32 s42, 0x%x" % (f32(0.044715), f32(-2.0 * math.sqrt(2.0 / math.pi) * LOG2E)))
        a("s_mov_b32 s45, 0x%x" % WS_M3)
        a("s_mov_b32 s46, -1\ns_mov_b32 s47, 0x000fffff")
        a("s_mov_b32 s52, 0xffff0000\ns_mov_b32 s53, -1")
        a("s_mov_b32 s56, 0x00030003\ns_mov_b32 s57, 0x00030003")
        a("v_mov_b32 v24, 0\nv_mov_b32 v25, 0\nv_mov_b32 v26, 0\nv_mov_b32 v27, 0")
        a("s_barrier")
        self.stamp(5)
        def h_loads():
            a("buffer_load_dwordx4 v[16:19], v50, s[28:31], s45 offen sc1")
            a("buffer_load_dwordx4 v[20:23], v50, s[28:31], s45 offen offset:2048 sc1")
            a("s_mov_b64 exec, s[46:47]")
            a("buffer_load_dwordx4 v[24:27], v51, s[28:31], s45 offen sc1")
            a("s_mov_b64 exec, -1")
        h_loads()
        gu_reads(EK, 18)
        for t in range(9):
            for hh in range(2):
                r = DF + 4 * t + 2 * hh
                a("ds_read_b64_tr_b16 v[%d:%d], v57 offset:%d" % (r, r + 1, 16 * hh * 1184 + t * 32))
            if t % 3 == 0:
                a("s_waitcnt lgkmcnt(6)")
        a("s_mov_b32 s60, 0\ns_branch L_h_chk")
        a("L_h_poll:")
        h_loads()
        a("L_h_chk:")
        self.poll_end("L_h_poll", range(16, 28), 14)
        self.stamp(6)
        a("ds_write_b128 v52, v[16:19]\nds_write_b128 v52, v[20:23] offset:512")
        a("s_mov_b64 exec, 0xffff")
        a("ds_write_b128 v52, v[24:27] offset:1024")
        a("s_mov_b64 exec, -1")
        for r in range(4):
            a("v_cndmask_b32 v%d, 0, v%d, s[52:53]" % (28 + r, 24 + r))
        a("s_waitcnt lgkmcnt(0)")
        for ks in range(12):
            a("ds_read_b128 v[%d:%d], v53 offset:%d" % (HF + 4 * ks, HF + 4 * ks + 3, ks * 64))
        stats = [
            "v_permlane32_swap_b32 v28, v29\nv_permlane32_swap_b32 v30, v31",
            "v_add_f32 v28, v28, v29\nv_add_f32 v30, v30, v31",
            "v_permlane16_swap_b32 v28, v30\nv_add_f32 v28, v28, v30",
            "v_add_f32_dpp v28, v28, v28 row_ror:8 row_mask:0xf bank_mask:0xf",
            "v_add_f32_dpp v28, v28, v28 row_ror:4 row_mask:0xf bank_mask:0xf",
            "v_add_f32_dpp v28, v28, v28 row_ror:2 row_mask:0xf bank_mask:0xf",
            "v_add_f32_dpp v28, v28, v28 row_ror:1 row_mask:0xf bank_mask:0xf",
            "v_mul_f32 v28, 0x%x, v28\nv_mov_b32 v30, v28" % f32(1.0 / 576),
            "v_permlane32_swap_b32 v28, v30",
            "v_fma_f32 v30, -v28, v28, v30\nv_max_f32 v30, 0, v30",
            "v_cvt_pk_bf16_f32 v29, v28, v30\nv_and_b32 v30, s40, v29",
            "v_add_f32 v30, 0x%x, v30\nv_lshlrev_b32 v28, 16, v29" % f32(1e-5),
            "v_cvt_pk_bf16_f32 v30, v30, v30\nv_and_b32 v30, s40, v30",
            "v_sqrt_f32 v30, v30",
            "v_cvt_pk_bf16_f32 v30, v30, v30\nv_and_b32 v30, s40, v30",
            "v_rcp_f32 v30, v30",
            "", "",
        ]
        for ks in range(18):
            out = min(18, ks + 12) - ks - 1
            a("s_waitcnt lgkmcnt(%d)" % out)
            a("v_mfma_f32_16x16x32_bf16 v[12:15], v[%d:%d], v[%d:%d], %s" % (HF + 4 * ks, HF + 4 * ks + 3, GF + 4 * ks, GF + 4 * ks + 3, "0" if ks == 0 else "v[12:15]"))
            if ks + 12 < 18:
                k2 = ks + 12
                a("ds_read_b128 v[%d:%d], v53 offset:%d" % (HF + 4 * k2, HF + 4 * k2 + 3, k2 * 64))
            if stats[ks]:
                a(stats[ks])
        a("s_nop 7")
        a("v_fma_f32 v12, -v28, v13, v12\nv_mul_f32 v12, v12, v30")
        a("v_cvt_pk_bf16_f32 v12, v12, v12\nv_and_b32 v12, s40, v12")
        a("v_mul_f32 v13, v12, v12\nv_fma_f32 v13, v13, s41, 1.0\nv_mul_f32 v14, s42, v12\nv_mul_f32 v13, v13, v14")
        a("v_exp_f32 v13, v13\ns_nop 0\nv_add_f32 v13, 1.0, v13\nv_rcp_f32 v13, v13\ns_nop 0\nv_mul_f32 v13, v12, v13")
        a("v_cvt_pk_bf16_f32 v13, v13, v13\nv_and_b32 v13, s40, v13")
        a("v_mul_f32_dpp v13, v12, v13 row_ror:8 row_mask:0xf bank_mask:0xf")
        a("v_cvt_pk_bf16_f32 v13, v13, v13")
        a("s_mov_b64 exec, 0x00ff00ff")
        a("ds_write_b16 v54, v13 offset:%d" % L_ACT)
        a("s_mov_b64 exec, -1")
        a("s_waitcnt lgkmcnt(0)")
        a("s_barrier")
        a("ds_read_b128 v[20:23], v55 offset:%d" % L_ACT)
        a("s_waitcnt lgkmcnt(0)")
        D = 64
        for t in range(9):
            a("v_mfma_f32_16x16x32_bf16 v[%d:%d], v[%d:%d], v[20:23], 0" % (D + 4 * t, D + 4 * t + 3, DF + 4 * t, DF + 4 * t + 3))
        a("s_mov_b64 exec, s[56:57]")
        for t in range(9):
            a("buffer_store_dwordx4 v[%d:%d], v55, s[28:31], s54 offen sc1" % (D + 4 * t, D + 4 * t + 3))
            a("s_add_u32 s54, s54, %d" % (144 * 128))
        self.stamp(7)
        if self.diag:
            a("s_cmp_lg_u32 s3, 0\ns_cbranch_scc1 L_end")
            self.flush_stamps([0, 1, 2, 3, 4, 5, 6, 7, 12, 13, 14])
        a("s_endpgm")

    def build(self):
        a = self.a
        a("s_load_dwordx16 s[4:19], s[0:1], 0\ns_load_dwordx8 s[20:27], s[0:1], 64")
        a("s_cmp_ge_u32 s2, 256\ns_cbranch_scc1 L_end")
        if self.diag:
            for k in range(NSTAMP):
                a("s_mov_b64 s[%d:%d], 0" % (64 + 2 * k, 65 + 2 * k))
        self.stamp(0)
        if self.o.get("padto", 0) or self.o.get("dbgtime", 0) or self.o.get("padmin", 0):
            a("s_memrealtime s[90:91]")
        a("v_lshrrev_b32 v1, 6, v0\nv_and_b32 v0, 63, v0")
        a("v_readfirstlane_b32 s3, v1")
        a("v_mov_b32 v4, 0\nv_mov_b32 v5, 0\nv_mov_b32 v6, 0\nv_mov_b32 v7, 0")
        a("ds_write_b128 v4, v[4:7] offset:%d\nds_write_b128 v4, v[4:7] offset:%d" % (L_FLAG, L_FLAG + 16))
        if self.o.get("order", 1) == 1:
            a("s_cmp_lt_u32 s3, 4\ns_cbranch_scc1 L_service")
            self.streaming()
            a("L_service:")
            self.service()
        else:
            a("s_cmp_ge_u32 s3, 4\ns_cbranch_scc1 L_stream")
            self.service()
            self.streaming()
        a("L_end:\ns_endpgm")
        return wrap(a.text(), 256, 512, LDS_BYTES, 256, 100, accum=256)


if __name__ == "__main__":
    import argparse
    ap = argparse.ArgumentParser()
    ap.add_argument("out")
    ap.add_argument("--diag", action="store_true")
    ap.add_argument("--opt", action="append", default=[])
    args = ap.parse_args()
    opts = {}
    for o in args.opt:
        k, v = o.split("=", 1)
        try: v = int(v)
        except ValueError: pass
        opts[k] = v
    open(args.out, "w").write(Gen(diag=args.diag, nback=opts.get('nback', 5), win=opts.get('win', 8), opts=opts).build())
```

```python
import sys, struct, math
from asmlib import *

def f32(x):
    return struct.unpack("<I", struct.pack("<f", x))[0]

WS_EPOCH = 0x0
WS_CTR = 0x1000
WS_MQ = 0x180000
SB = 0x10000
WS_M1 = SB + 0x0
WS_M2 = SB + 0x60000
WS_M3 = SB + 0xA8000
WS_M4 = SB + 0xC0000
RESET_PER_WG = 3072
WS_STAMP = 0x8000000
NSTAMP = 16
L_Q = 0x0
L_XN = 0x200
L_ACT = 0xB00
L_PML = 0xB80
L_FLAG = 0xBC0
L_PACC = 0xC00
L_ZERO = 0x1C00
L_WQ = 0x2000
L_WB = 0x6800
L_UP = L_WB + 36864 + 32
L_DN = L_WB + 73728 + 64
L_HB = L_DN + 37888
LDS_BYTES = L_HB + 3520 + 1024 + 128
N_FFN, N_OP, N_RED = 144, 64, 36
OP0 = N_FFN
RED0 = N_FFN + N_OP
SPIN = 200000
LOG2E = 1.4426950408889634
EPOCH_INC = 0x9E3779B9


class Gen:
    def __init__(self, diag=False, nback=4, win=8, opts=None):
        self.a = Asm()
        self.diag = diag
        self.nback = nback
        self.win = win
        self.o = opts or {}

    def stamp(self, k):
        if self.diag:
            self.a("s_memrealtime s[%d:%d]" % (64 + 2 * k, 65 + 2 * k))

    def flush_stamps(self, ks):
        if not self.diag:
            return
        a = self.a
        a("s_waitcnt lgkmcnt(0)")
        a("s_mov_b64 exec, 1")
        a("s_mul_i32 s96, s2, %d\ns_add_u32 s96, s96, 0x%x" % (NSTAMP * 8, WS_STAMP))
        a("v_mov_b32 v252, 0")
        for k in ks:
            a("v_mov_b32 v250, s%d\nv_mov_b32 v251, s%d" % (64 + 2 * k, 65 + 2 * k))
            a("buffer_store_dwordx2 v[250:251], v252, s[28:31], s96 offen offset:%d" % (8 * k))
            a("s_nop 1")

    def srd(self, d, lo, size, add=None):
        a = self.a
        if add is None:
            a("s_mov_b32 s%d, s%d\ns_mov_b32 s%d, s%d" % (d, lo, d + 1, lo + 1))
        else:
            a("s_add_u32 s%d, s%d, %s\ns_addc_u32 s%d, s%d, 0" % (d, lo, add, d + 1, lo + 1))
        a("s_mov_b32 s%d, 0x%x\ns_mov_b32 s%d, 0x20000" % (d + 2, size, d + 3))

    def xrow(self, op, x, t, halves=True, rows=True):
        a = self.a
        if rows:
            a("v_mov_b32 v%d, v%d\ns_nop 1\nv_permlane16_swap_b32 v%d, v%d\ns_nop 0\n%s v%d, v%d, v%d" % (t, x, x, t, op, x, x, t))
        if halves:
            a("v_mov_b32 v%d, v%d\ns_nop 1\nv_permlane32_swap_b32 v%d, v%d\ns_nop 0\n%s v%d, v%d, v%d" % (t, x, x, t, op, x, x, t))

    def dpp(self, op, d, s0, s1, ctrl, bank=0xf):
        self.a("%s_dpp v%d, v%d, v%d %s row_mask:0xf bank_mask:0x%x" % (op, d, s0, s1, ctrl, bank))

    def row_reduce(self, op, regs):
        for ctrl in ("row_ror:8", "row_ror:4", "row_ror:2", "row_ror:1"):
            if len(regs) < 3:
                self.a("s_nop 1")
            for r in regs:
                self.dpp(op, r, r, r, ctrl)

    def oct_reduce(self, op, regs):
        for ctrl in ("row_half_mirror", "quad_perm:[1,0,3,2]", "quad_perm:[2,3,0,1]"):
            if len(regs) < 3:
                self.a("s_nop 1")
            for r in regs:
                self.dpp(op, r, r, r, ctrl)

    def layernorm(self, X, T, ldsaddr):
        a = self.a
        s, t, m, r = T, T + 1, T + 2, T + 3
        D = T + 4
        a("v_add_f32 v%d, v%d, v%d" % (s, X, X + 1))
        a("v_add_f32 v%d, v%d, v%d" % (t, X + 2, X + 3))
        for i in range(4, 18, 2):
            a("v_add_f32 v%d, v%d, v%d\nv_add_f32 v%d, v%d, v%d" % (s, s, X + i, t, t, X + i + 1))
        a("v_add_f32 v%d, v%d, v%d" % (s, s, t))
        self.row_reduce("v_add_f32", [s])
        self.xrow("v_add_f32", s, t, halves=False)
        a("v_mul_f32 v%d, 0x%x, v%d" % (m, f32(1.0 / 576), s))
        for i in range(18):
            a("v_sub_f32 v%d, v%d, v%d" % (D + i, X + i, m))
        a("v_mul_f32 v%d, v%d, v%d\nv_mul_f32 v%d, v%d, v%d" % (s, D, D, t, D + 1, D + 1))
        for i in range(2, 18, 2):
            a("v_fmac_f32 v%d, v%d, v%d\nv_fmac_f32 v%d, v%d, v%d" % (s, D + i, D + i, t, D + i + 1, D + i + 1))
        a("v_add_f32 v%d, v%d, v%d" % (s, s, t))
        self.row_reduce("v_add_f32", [s])
        self.xrow("v_add_f32", s, t, halves=False)
        a("v_mul_f32 v%d, 0x%x, v%d" % (s, f32(1.0 / 576), s))
        a("v_cvt_pk_bf16_f32 v%d, v%d, v%d" % (t, m, s))
        a("s_mov_b32 s40, 0xffff0000")
        a("v_lshlrev_b32 v%d, 16, v%d\nv_and_b32 v%d, s40, v%d" % (m, t, s, t))
        a("v_add_f32 v%d, 0x%x, v%d" % (s, f32(1e-5), s))
        a("v_cvt_pk_bf16_f32 v%d, v%d, v%d" % (s, s, s))
        a("v_and_b32 v%d, s40, v%d" % (s, s))
        a("v_sqrt_f32 v%d, v%d\ns_nop 0" % (s, s))
        a("v_cvt_pk_bf16_f32 v%d, v%d, v%d" % (s, s, s))
        a("v_and_b32 v%d, s40, v%d" % (s, s))
        a("v_rcp_f32 v%d, v%d" % (r, s))
        for i in range(18):
            a("v_sub_f32 v%d, v%d, v%d" % (D + i, X + i, m))
        for j in range(9):
            a("v_cvt_pk_bf16_f32 v%d, v%d, v%d" % (D + 2 * j + 1, D + 2 * j, D + 2 * j + 1))
        for j in range(9):
            a("v_lshlrev_b32 v%d, 16, v%d\nv_and_b32 v%d, s40, v%d" % (D + 2 * j, D + 2 * j + 1, D + 2 * j + 1, D + 2 * j + 1))
        for i in range(18):
            a("v_mul_f32 v%d, v%d, v%d" % (D + i, D + i, r))
        for j in range(9):
            a("v_cvt_pk_bf16_f32 v%d, v%d, v%d" % (D + 2 * j, D + 2 * j, D + 2 * j + 1))
        for j in range(9):
            a("ds_write_b32 v%d, v%d offset:%d" % (ldsaddr, D + 2 * j, j * 128))

    def poll_begin(self, name):
        self.a("s_mov_b32 s60, 0\n%s:" % name)

    def poll_end(self, name, regs, t):
        a = self.a
        a("s_waitcnt vmcnt(0)")
        regs = list(regs)
        first = True
        while regs:
            if first:
                if len(regs) >= 3:
                    a("v_max3_u32 v%d, v%d, v%d, v%d" % (t, regs[0], regs[1], regs[2])); regs = regs[3:]
                else:
                    a("v_max_u32 v%d, v%d, v%d" % (t, regs[0], regs[-1])); regs = regs[2:]
                first = False
            elif len(regs) >= 2:
                a("v_max3_u32 v%d, v%d, v%d, v%d" % (t, t, regs[0], regs[1])); regs = regs[2:]
            else:
                a("v_max_u32 v%d, v%d, v%d" % (t, t, regs[0])); regs = []
        a("v_cmp_eq_u32 vcc, -1, v%d" % t)
        a("s_add_u32 s60, s60, 1\ns_cmp_gt_u32 s60, %d\ns_cbranch_scc1 %s_x" % (SPIN, name))
        a("s_cbranch_vccnz %s\n%s_x:" % (name, name))

    def ticket(self, KR, VR, ring):
        a = self.a
        QA, QB, SA, SBR, T0, T1, MT, M, ML, LS, ACC, AF, MK = 10, 14, 18, 22, 26, 27, 28, 29, 30, 31, 32, 36, 5
        for j in range(4):
            if ring and j > 0:
                a("s_waitcnt vmcnt(7)")
            if ring and j == self.o.get("cpos", 3):
                self.claim()
            k = KR + 4 * j
            for e in range(4):
                a("v_dot2_f32_bf16 v%d, v%d, v%d, %s" % (SA + j, k + e, QA + e, "0" if e == 0 else "v%d" % (SA + j)))
                a("v_dot2_f32_bf16 v%d, v%d, v%d, %s" % (SBR + j, k + e, QB + e, "0" if e == 0 else "v%d" % (SBR + j)))
            if ring:
                a("buffer_load_dwordx4 v[%d:%d], v1, s[36:39], s45 offen offset:%d nt" % (k, k + 3, j * 1024))
        for j in range(4):
            self.dpp("v_add_f32", SA + j, SA + j, SA + j, "row_ror:8", 0x3)
        for j in range(4):
            self.dpp("v_add_f32", SA + j, SBR + j, SBR + j, "row_ror:8", 0xc)
        self.oct_reduce("v_add_f32", [SA + j for j in range(4)])
        for rnd in range(2):
            a("v_cvt_pk_bf16_f32 v%d, v%d, v%d\nv_cvt_pk_bf16_f32 v%d, v%d, v%d" % (T0, SA, SA + 1, T1, SA + 2, SA + 3))
            a("v_lshlrev_b32 v%d, 16, v%d\nv_and_b32 v%d, s46, v%d" % (SA, T0, SA + 1, T0))
            a("v_lshlrev_b32 v%d, 16, v%d\nv_and_b32 v%d, s46, v%d" % (SA + 2, T1, SA + 3, T1))
            if rnd == 0:
                for j in range(4):
                    a("v_mul_f32 v%d, s47, v%d" % (SA + j, SA + j))
        a("v_max3_f32 v%d, v%d, v%d, v%d\nv_max_f32 v%d, v%d, v%d" % (MT, SA, SA + 1, SA + 2, MT, MT, SA + 3))
        a("v_cmp_gt_f32 vcc, v%d, v%d" % (MT, M))
        lab = a.label("L_nors")
        a("s_cbranch_vccz %s\ns_call_b64 s[50:51], L_rescale\n%s:" % (lab, lab))
        for j in range(4):
            a("v_fma_f32 v%d, v%d, s48, -v%d" % (SA + j, SA + j, ML))
        for j in range(4):
            a("v_exp_f32 v%d, v%d" % (SA + j, SA + j))
        a("s_nop 0")
        for j in range(4):
            a("v_cvt_pk_bf16_f32 v%d, v%d, v%d" % (SBR + j, SA + j, SA + j))
        a("v_add_f32 v%d, v%d, v%d\nv_add_f32 v%d, v%d, v%d" % (T0, SA, SA + 1, T1, SA + 2, SA + 3))
        for j in range(4):
            for e in range(4):
                a("v_and_b32 v%d, v%d, v%d" % (AF + 4 * j + e, MK + e, SBR + j))
        a("v_add_f32 v%d, v%d, v%d\nv_add_f32 v%d, v%d, v%d" % (T0, T0, T1, LS, LS, T0))
        for j in range(4):
            if ring:
                a("s_waitcnt vmcnt(7)")
            if ring and j + 4 == self.o.get("cpos", 3):
                self.claim()
            v = VR + 4 * j
            a("v_mfma_f32_16x16x32_bf16 v[%d:%d], v[%d:%d], v[%d:%d], v[%d:%d]" % (ACC, ACC + 3, AF + 4 * j, AF + 4 * j + 3, v, v + 3, ACC, ACC + 3))
            if ring:
                a("buffer_load_dwordx4 v[%d:%d], v1, s[40:43], s45 offen offset:%d nt" % (v, v + 3, j * 1024))

    def claim(self):
        a = self.a
        a("s_mov_b32 s57, 1\ns_cmp_eq_u32 s62, 0\ns_cbranch_scc1 L_nclaim\ns_atomic_add s57, s[54:55], 0x0 glc\nL_nclaim:")

    def streaming(self):
        a = self.a
        NB = self.nback
        NS = self.o.get("nstatic", 11)
        LIMF = self.o.get("limf", 512)
        assert NS >= 2 * NB + 1 and NS >= NB + 2
        RING, BACK = 52, 84
        a("L_stream:")
        a("s_sub_u32 s44, s3, 4")
        a("v_lshlrev_b32 v1, 4, v0")
        a("s_lshr_b32 s56, s2, 3\ns_lshl_b32 s46, s56, 21")
        a("s_and_b32 s45, s2, 7\ns_mul_i32 s45, s45, %d\ns_add_u32 s45, s45, s44\ns_lshl_b32 s45, s45, 12" % (NS * 4))
        a("s_waitcnt lgkmcnt(0)")
        self.srd(36, 6, 0x200000, "s46")
        self.srd(40, 8, 0x200000, "s46")
        n = 0
        for tk in range(NB + 1):
            base = BACK + 32 * tk if tk < NB else RING
            for kv in range(2):
                for j in range(4):
                    if n >= self.win:
                        a("s_waitcnt vmcnt(%d)" % (self.win - 1))
                    r = base + 16 * kv + 4 * j
                    a("buffer_load_dwordx4 v[%d:%d], v1, s[%d:%d], s45 offen offset:%d nt" % (r, r + 3, 36 + 4 * kv, 39 + 4 * kv, j * 1024))
                    n += 1
                    if n == self.o.get("qgo", (NB - 1) * 8):
                        a("ds_write_b32 v2, v3 offset:%d" % (L_FLAG + 12))
                    if n == self.win:
                        if not self.o.get("ackstamp", 0):
                            self.stamp(15)
                        self.srd(28, 26, 0x10000000)
                        a("v_and_b32 v26, 1, v0\nv_lshlrev_b32 v26, 4, v26\nv_mov_b32 v27, 0xffff\nv_lshlrev_b32 v27, v26, v27")
                        a("v_bfe_u32 v26, v0, 1, 2")
                        for e in range(4):
                            a("v_cmp_eq_u32 vcc, %d, v26\ns_nop 1\nv_cndmask_b32 v%d, 0, v27, vcc" % (e, 5 + e))
                        a("v_mov_b32 v29, 0x%x\nv_mov_b32 v30, 0x%x\nv_mov_b32 v31, 0" % (f32(-1e38), f32(-1e38 * LOG2E)))
                        a("v_mov_b32 v32, 0\nv_mov_b32 v33, 0\nv_mov_b32 v34, 0\nv_mov_b32 v35, 0")
                        a("s_mov_b32 s46, 0xffff0000\ns_mov_b32 s47, 0x%x\ns_mov_b32 s48, 0x%x" % (f32(128 ** -0.5), f32(LOG2E)))
                        a("s_mov_b32 s52, 0\ns_mov_b32 s53, -1")
                        a("v_and_b32 v9, 15, v0\nv_lshlrev_b32 v9, 4, v9")
                        a("v_mov_b32 v2, 0\nv_mov_b32 v3, 1\nv_mov_b32 v4, 0")
                        a("s_lshl_b32 s56, s56, 8\ns_add_u32 s56, s56, 0x%x\ns_add_u32 s54, s26, s56\ns_addc_u32 s55, s27, 0" % WS_CTR)
                        a("s_lshr_b32 s57, s2, 3\ns_add_u32 s58, s2, s57\ns_and_b32 s58, s58, 7\ns_lshl_b32 s58, s58, 5\ns_add_u32 s58, s58, s57\ns_sub_u32 s58, s58, 96")
                        a("s_cmp_lt_u32 s58, 144\ns_cselect_b32 s59, %d, %d\ns_sub_u32 s59, 512, s59\ns_lshl_b32 s59, s59, 12" % (self.o.get("egf", 0), self.o.get("endgame", 0)))
                        a("s_barrier")
            if tk < NB:
                a("s_add_u32 s45, s45, 0x4000")
        self.stamp(8)
        if self.o.get("abl", 0) != 1:
            self.lds_wait(L_FLAG + 20, 1, 1, t=26)
        self.stamp(9)
        a("ds_read_b128 v[10:13], v9 offset:%d\nds_read_b128 v[14:17], v9 offset:%d" % (L_Q, L_Q + 256))
        a("s_mov_b32 s49, 0")
        a("s_waitcnt lgkmcnt(0)")
        a("s_mov_b32 s57, 0")
        a("L_sloop:")
        a("s_waitcnt vmcnt(7) lgkmcnt(0)")
        a("s_add_u32 s45, s45, 0x4000")
        a("s_add_u32 s57, s57, %d\ns_lshl_b32 s57, s57, 12" % (NS * 32))
        a("s_cmp_lt_u32 s49, %d\ns_cselect_b32 s45, s45, s57" % (NS - NB - 1))
        a("s_cmp_ge_u32 s49, %d\ns_cselect_b32 s62, 1, 0" % (NS - NB - 2))
        a("s_cmp_lt_u32 s45, s59\ns_cbranch_scc1 L_sgo")
        a("s_cmp_ge_u32 s45, 0x200000\ns_cbranch_scc1 L_sst2")
        for kv in range(2):
            for j in range(4):
                r = BACK + 16 * kv + 4 * j
                a("buffer_load_dwordx4 v[%d:%d], v1, s[%d:%d], s45 offen offset:%d nt" % (r, r + 3, 36 + 4 * kv, 39 + 4 * kv, j * 1024))
        a("s_mov_b32 s49, 0")
        a("L_sst2:")
        a("s_mov_b32 s38, 0\ns_mov_b32 s42, 0\ns_mov_b32 s62, 0")
        a("s_mov_b64 exec, 1")
        a("ds_add_u32 v2, v3 offset:%d" % (L_FLAG + 4))
        a("s_mov_b64 exec, -1")
        a("L_sgo:")
        a("s_cmp_lg_u32 s49, %d\ns_cbranch_scc1 L_sgo2" % self.o.get("rchk", 4))
        a("ds_write_b32 v2, v3 offset:%d" % (L_FLAG + 16))
        a("L_sgo2:")
        self.ticket(RING, RING + 16, True)
        for k in range(NB):
            a("s_cmp_eq_u32 s49, %d\ns_cbranch_scc1 L_back%d" % (k, k))
        a("L_scont:")
        a("s_add_u32 s49, s49, 1\ns_cmp_lg_u32 s38, 0\ns_cbranch_scc1 L_sloop")
        self.xrow("v_add_f32", 31, 26)
        a("s_lshl_b32 s45, s44, 10")
        a("v_add_u32 v26, s45, v1")
        a("ds_write_b128 v26, v[32:35] offset:%d" % L_PACC)
        a("s_lshl_b32 s45, s44, 4")
        a("v_add_u32 v27, s45, v0")
        a("s_mov_b64 exec, 0x101")
        a("ds_write_b64 v27, v[30:31] offset:%d" % L_PML)
        a("s_mov_b64 exec, 1")
        a("ds_add_u32 v2, v3 offset:%d" % L_FLAG)
        self.stamp(10)
        if self.diag:
            if self.o.get("abl", 0):
                a("s_cmp_lg_u32 s3, 7\ns_cbranch_scc1 L_nw7")
                a("s_waitcnt lgkmcnt(0)\ns_mov_b64 s[70:71], s[84:85]")
                self.flush_stamps([3])
                a("L_nw7:")
            a("s_cmp_lg_u32 s3, 4\ns_cbranch_scc1 L_end")
            self.flush_stamps([8, 9, 10] + ([] if self.o.get('ackstamp', 0) else [15]))
        a("s_endpgm")
        for k in range(NB):
            a("L_back%d:" % k)
            if k == 0:
                a("s_waitcnt vmcnt(8)")
            self.ticket(BACK + 32 * k, BACK + 32 * k + 16, False)
            a("s_branch L_scont")
        a("L_rescale:")
        a("v_max_f32 v28, v28, v29")
        self.xrow("v_max_f32", 28, 26)
        a("v_mov_b32 v29, v28\nv_mul_f32 v27, s48, v28\nv_sub_f32 v26, v30, v27\nv_exp_f32 v26, v26\nv_mov_b32 v30, v27")
        a("v_mul_f32 v31, v31, v26")
        a("v_readlane_b32 s63, v26, 0\nv_readlane_b32 s56, v26, 8\ns_nop 1")
        a("v_mov_b32 v26, s63\nv_mov_b32 v27, s56\nv_cndmask_b32 v26, v26, v27, s[52:53]")
        for r in range(4):
            a("v_mul_f32 v%d, v%d, v26" % (32 + r, 32 + r))
        a("s_setpc_b64 s[50:51]")

    def lds_wait(self, off, val, sleep, t=5):
        a = self.a
        lab = a.label("L_lw")
        a("v_mov_b32 v%d, 0\ns_mov_b32 s60, 0\n%s:" % (t, lab))
        a("ds_read_b32 v%d, v%d offset:%d\ns_waitcnt lgkmcnt(0)" % (t + 1, t, off))
        a("v_cmp_le_u32 vcc, %d, v%d" % (val, t + 1))
        a("s_add_u32 s60, s60, 1\ns_cmp_gt_u32 s60, %d\ns_cbranch_scc1 %s_x\ns_cbranch_vccnz %s_x" % (SPIN * 20, lab, lab))
        if sleep:
            a("s_sleep %d" % sleep)
        a("s_branch %s\n%s_x:" % (lab, lab))

    def qproj(self):
        a = self.a
        a("v_lshrrev_b32 v3, 5, v0\nv_mul_u32_u24 v3, 1152, v3\nv_and_b32 v4, 31, v0\nv_lshl_add_u32 v3, v4, 2, v3")
        a("v_mov_b32 v6, 0")
        a("s_lshr_b32 s46, s2, 3\ns_and_b32 s47, s46, 15\ns_lshr_b32 s48, s46, 4")
        a("s_bfe_u32 s49, s2, 0x10002\ns_lshl_b32 s44, s48, 1\ns_add_u32 s49, s49, s44")
        a("s_and_b32 s50, s2, 3")
        a("s_waitcnt lgkmcnt(0)")
        self.srd(36, 4, 2304)
        self.srd(28, 26, 0x10000000)
        for j in range(9):
            a("buffer_load_dword v%d, v3, s[36:39], 0 offen offset:%d" % (16 + 2 * j + 1, j * 128))
        a("buffer_load_dword v7, v6, s[28:31], 0 offen offset:%d sc1" % WS_EPOCH)
        self.srd(32, 24, 256)
        a("s_and_b32 s44, s2, 7\ns_cmp_eq_u32 s44, 0\ns_cselect_b64 exec, 1, 0")
        a("s_lshl_b32 s44, s46, 8\ns_add_u32 s44, s44, 0x%x" % WS_CTR)
        a("buffer_store_dword v6, v6, s[28:31], s44 offen sc1")
        a("s_mov_b64 exec, -1")
        a("s_mov_b32 s40, 0xffff0000")
        a("s_barrier")
        a("s_waitcnt vmcnt(0)")
        self.stamp(12)
        for j in range(9):
            a("v_lshlrev_b32 v%d, 16, v%d\nv_and_b32 v%d, s40, v%d" % (16 + 2 * j, 16 + 2 * j + 1, 16 + 2 * j + 1, 16 + 2 * j + 1))
        a("v_add_u32 v7, 0x%x, v7" % EPOCH_INC)
        a("v_add_u32 v8, %d, v3" % L_XN)
        self.layernorm(16, 40, 8)
        a("v_and_b32 v9, 1, v0\nv_mul_u32_u24 v9, 1152, v9\nv_lshl_add_u32 v9, v2, 3, v9\ns_mul_i32 s44, s50, 288\nv_add_u32 v9, s44, v9")
        a("v_lshrrev_b32 v10, 2, v0\nv_lshlrev_b32 v10, 7, v10\nv_and_b32 v11, 3, v0\nv_lshl_add_u32 v10, v11, 3, v10")
        self.stamp(13)
        a("s_waitcnt lgkmcnt(0)")
        FB, FA, D = 64, 84, 160
        for ks in range(9):
            a("ds_read_b64 v[%d:%d], v9 offset:%d" % (FB + 2 * ks, FB + 2 * ks + 1, L_XN + ks * 32))
        self.lds_wait(L_FLAG + 8, 3, 0, t=12)
        self.stamp(14)
        for ks in range(9):
            for t in range(4):
                r = FA + 8 * ks + 2 * t
                a("ds_read_b64_tr_b16 v[%d:%d], v10 offset:%d" % (r, r + 1, L_WQ + ks * 2048 + t * 32))
            if ks % 3 == 2:
                a("s_waitcnt lgkmcnt(0)")
                for k2 in range(ks - 2, ks + 1):
                    for t in range(4):
                        r = FA + 8 * k2 + 2 * t
                        a("v_mfma_f32_16x16x16_bf16 v[%d:%d], v[%d:%d], v[%d:%d], %s" % (D + 4 * t, D + 4 * t + 3, r, r + 1, FB + 2 * k2, FB + 2 * k2 + 1, "0" if k2 == 0 else "v[%d:%d]" % (D + 4 * t, D + 4 * t + 3)))
        a("s_lshl_b32 s45, s47, 14\ns_lshl_b32 s44, s50, 11\ns_add_u32 s45, s45, s44\ns_lshl_b32 s44, s49, 9\ns_add_u32 s45, s45, s44\ns_add_u32 s45, s45, 0x%x" % WS_MQ)
        a("v_and_b32 v10, 1, v0\nv_lshlrev_b32 v10, 13, v10\nv_lshl_add_u32 v10, v2, 5, v10\nv_bfe_u32 v11, v0, 1, 1\nv_lshl_add_u32 v10, v11, 4, v10")
        a("v_cmp_eq_u32 vcc, 1, v11")
        a("s_mov_b32 s52, 0x000f000f\ns_mov_b32 s53, 0x000f000f")
        for t in range(4):
            a("v_mov_b32 v%d, v7\nv_mov_b32 v%d, v7" % (17 + 4 * t, 19 + 4 * t))
        for t in range(4):
            a("v_cndmask_b32 v%d, v%d, v%d, vcc\nv_cndmask_b32 v%d, v%d, v%d, vcc" % (16 + 4 * t, D + 4 * t, D + 4 * t + 2, 18 + 4 * t, D + 4 * t + 1, D + 4 * t + 3))
        a("s_mov_b64 exec, s[52:53]")
        for t in range(4):
            a("buffer_store_dwordx4 v[%d:%d], v10, s[28:31], s45 offen offset:%d sc1" % (16 + 4 * t, 19 + 4 * t, t * 128))
        a("s_mov_b64 exec, -1")
        self.stamp(1)
        a("s_lshl_b32 s44, s47, 1\ns_add_u32 s44, s44, s48\ns_lshl_b32 s44, s44, 13\ns_add_u32 s44, s44, 0x%x\ns_add_u32 s45, s44, 4096" % WS_MQ)
        a("v_lshlrev_b32 v10, 4, v0\nv_lshlrev_b32 v11, 2, v0")
        G = 64
        self.lds_wait(L_FLAG + 12, 1, 2, t=12)
        a("s_mov_b32 s60, 0\nL_qpoll:")
        for i in range(8):
            a("buffer_load_dwordx4 v[%d:%d], v10, s[28:31], s%d offen offset:%d sc1" % (G + 4 * i, G + 4 * i + 3, 44 + i // 4, (i % 4) * 1024))
        a("s_waitcnt vmcnt(0)")
        for i in range(8):
            a("v_xor_b32 v%d, v%d, v7\nv_xor_b32 v%d, v%d, v7" % (G + 4 * i + 1, G + 4 * i + 1, G + 4 * i + 3, G + 4 * i + 3))
        a("v_or_b32 v12, v%d, v%d" % (G + 1, G + 3))
        for i in range(1, 8):
            a("v_or3_b32 v12, v12, v%d, v%d" % (G + 4 * i + 1, G + 4 * i + 3))
        a("v_cmp_ne_u32 vcc, 0, v12")
        a("s_add_u32 s60, s60, 1\ns_cmp_gt_u32 s60, %d\ns_cbranch_scc1 L_qpoll_x\ns_cbranch_vccnz L_qpoll\nL_qpoll_x:" % SPIN)
        for hf in range(2):
            for c in (0, 2):
                b0 = G + 4 * hf + c
                a("v_add_f32 v%d, v%d, v%d\nv_add_f32 v%d, v%d, v%d" % (b0, b0, b0 + 8, b0 + 16, b0 + 16, b0 + 24))
        for hf in range(2):
            for c in (0, 2):
                b0 = G + 4 * hf + c
                a("v_add_f32 v%d, v%d, v%d" % (b0, b0, b0 + 16))
        a("v_cvt_pk_bf16_f32 v12, v%d, v%d\nv_cvt_pk_bf16_f32 v13, v%d, v%d" % (G, G + 2, G + 4, G + 6))
        a("ds_write_b32 v11, v12 offset:%d\nds_write_b32 v11, v13 offset:%d" % (L_Q, L_Q + 256))
        a("v_mov_b32 v12, 1\nds_write_b32 v6, v12 offset:%d" % (L_FLAG + 20))
        a("v_readfirstlane_b32 s61, v7")
        a("s_waitcnt lgkmcnt(0)")
        self.stamp(2)

    def finish_attn(self):
        a = self.a
        a("L_finish:")
        self.lds_wait(L_FLAG + 16, 1, 8, t=4)
        a("v_mov_b32 v4, 0\ns_mov_b32 s60, 0\nL_rpoll:")
        a("buffer_load_dword v5, v4, s[32:35], 0 offen sc1\ns_waitcnt vmcnt(0)")
        a("v_cmp_gt_u32 vcc, 256, v5")
        a("s_add_u32 s60, s60, 1\ns_cmp_gt_u32 s60, %d\ns_cbranch_scc1 L_rpoll_x\ns_cbranch_vccz L_rpoll_x\ns_sleep 64\ns_branch L_rpoll\nL_rpoll_x:" % SPIN)
        a("v_mov_b32 v5, 1\ns_mov_b64 exec, 1\nds_add_u32 v4, v5 offset:%d\ns_mov_b64 exec, -1" % L_FLAG)
        if self.o.get("cpf", 1):
            a("s_getpc_b64 s[44:45]\nL_cpf:")
            a("v_lshlrev_b32 v6, 7, v0\nv_min_u32 v6, L_end-L_cpf, v6")
            a("global_load_dword v255, v6, s[44:45]")
            if self.diag:
                a("v_lshlrev_b32 v6, 7, v0\nv_add_u32 v6, 8192, v6\nv_min_u32 v6, L_end-L_cpf, v6")
                a("global_load_dword v255, v6, s[44:45]")
        a("s_lshr_b32 s44, s2, 3\ns_and_b32 s45, s44, 15\ns_lshr_b32 s44, s44, 4\ns_lshl_b32 s44, s44, 3\ns_and_b32 s46, s2, 7\ns_add_u32 s44, s44, s46")
        a("v_mul_u32_u24 v8, 6144, v2\nv_lshl_add_u32 v8, v1, 4, v8")
        a("s_mul_i32 s46, s44, 384\ns_mul_i32 s45, s45, 24576\ns_add_u32 s46, s46, s45\ns_add_u32 s46, s46, 0x%x" % WS_M1)
        a("v_and_b32 v10, 32, v0\nv_and_b32 v6, 1, v0\nv_lshl_add_u32 v10, v6, 4, v10\nv_bfe_u32 v6, v0, 1, 4\nv_add_u32 v10, v10, v6\nv_lshlrev_b32 v10, 4, v10")
        a("v_lshrrev_b32 v11, 5, v0\nv_lshlrev_b32 v11, 3, v11")
        a("s_mov_b32 s48, 0x00ff00ff\ns_mov_b32 s49, 0x00ff00ff")
        self.lds_wait(L_FLAG, 5, 1, t=4)
        self.stamp(3)
        for wv in range(4):
            a("ds_read_b64 v[%d:%d], v11 offset:%d" % (12 + 2 * wv, 13 + 2 * wv, L_PML + 16 * wv))
        for wv in range(4):
            a("ds_read_b128 v[%d:%d], v10 offset:%d" % (20 + 4 * wv, 23 + 4 * wv, L_PACC + 1024 * wv))
        a("s_waitcnt lgkmcnt(0)")
        a("v_max3_f32 v36, v12, v14, v16\nv_max_f32 v36, v36, v18")
        for wv in range(4):
            a("v_sub_f32 v%d, v%d, v36" % (12 + 2 * wv, 12 + 2 * wv))
        for wv in range(4):
            a("v_exp_f32 v%d, v%d" % (12 + 2 * wv, 12 + 2 * wv))
        a("s_nop 0")
        for r in range(4):
            a("v_mul_f32 v%d, v12, v%d" % (40 + r, 20 + r))
        for wv in range(1, 4):
            for r in range(4):
                a("v_fmac_f32 v%d, v%d, v%d" % (40 + r, 12 + 2 * wv, 20 + 4 * wv + r))
        a("buffer_store_dwordx4 v[40:43], v8, s[28:31], s46 offen sc1")
        a("v_mul_f32 v37, v12, v13")
        for wv in range(1, 4):
            a("v_fmac_f32 v37, v%d, v%d" % (12 + 2 * wv, 13 + 2 * wv))
        a("v_mov_b32 v38, v36\nv_mov_b32 v39, v37")
        a("s_mov_b64 exec, s[48:49]")
        a("buffer_store_dwordx4 v[36:39], v8, s[28:31], s46 offen offset:256 sc1")
        self.stamp(4)
        if self.o.get("trigack", 0):
            a("s_waitcnt vmcnt(0)")
        a("s_mov_b64 exec, 1\nv_mov_b32 v5, 1\nds_add_u32 v4, v5 offset:%d" % L_FLAG)
        a("s_mov_b64 exec, -1")
        if self.o.get("ackstamp", 0):
            a("s_waitcnt vmcnt(0)")
            self.stamp(15)
        a("s_setpc_b64 s[50:51]")

    def service(self):
        a = self.a
        a("s_setprio 2")
        if self.o.get("abl", 0) == 1:
            a("s_waitcnt lgkmcnt(0)")
            self.srd(28, 26, 0x10000000)
            a("s_barrier")
            a("s_cmp_lg_u32 s3, 0\ns_cbranch_scc1 L_end")
            self.flush_stamps([0])
            a("s_endpgm")
        a("v_and_b32 v1, 15, v0\nv_lshrrev_b32 v2, 4, v0")
        a("s_cmp_lg_u32 s3, 0\ns_cbranch_scc1 L_svc_other")
        self.qproj()
        a("s_branch L_svc_a")
        a("L_svc_other:")
        a("v_lshrrev_b32 v4, 3, v0\nv_lshlrev_b32 v4, 13, v4\nv_and_b32 v5, 7, v0\nv_lshl_add_u32 v4, v5, 4, v4")
        a("s_bfe_u32 s47, s2, 0x40003\ns_lshr_b32 s48, s2, 7\ns_bfe_u32 s49, s2, 0x10002\ns_lshl_b32 s44, s48, 1\ns_add_u32 s49, s49, s44\ns_and_b32 s50, s2, 3")
        a("s_lshl_b32 s45, s47, 2\ns_add_u32 s45, s45, s49\ns_lshl_b32 s45, s45, 7\ns_mul_i32 s44, s50, 3\ns_add_u32 s44, s44, s3\ns_sub_u32 s44, s44, 1\ns_mul_i32 s44, s44, %d\ns_add_u32 s45, s45, s44" % (48 * 8192))
        a("s_mul_i32 s46, s3, 6144\ns_add_u32 s46, s46, %d" % (L_WQ - 6144))
        a("s_waitcnt lgkmcnt(0)")
        self.srd(40, 10, 576 * 8192)
        for i in range(6):
            a("s_mov_b32 m0, s46\ns_add_u32 s46, s46, 1024")
            a("buffer_load_dwordx4 v4, s[40:43], s45 offen nt lds")
            a("s_add_u32 s45, s45, %d" % (8 * 8192))
        self.srd(28, 26, 0x10000000)
        self.srd(32, 24, 256)
        a("s_mov_b32 s61, 0")
        a("v_mov_b32 v6, 0\nv_mov_b32 v7, 1")
        a("s_barrier")
        a("s_waitcnt vmcnt(0)")
        a("s_mov_b64 exec, 1\nds_add_u32 v6, v7 offset:%d\ns_mov_b64 exec, -1" % (L_FLAG + 8))
        self.lds_wait(L_FLAG + self.o.get("bgflag", 20), 1, 4, t=12)
        a("L_svc_a:")
        if self.o.get("abl", 0) == 2:
            a("s_cmp_lg_u32 s3, 0\ns_cbranch_scc1 L_end")
            self.flush_stamps([0, 1, 2, 12, 13, 14] + ([15] if self.o.get('ackstamp', 0) else []))
            a("s_endpgm")
        a("s_cmp_lg_u32 s3, 1\ns_cbranch_scc1 L_svc_r")
        a("v_mov_b32 v10, 0")
        a("v_mov_b32 v4, -1\nv_mov_b32 v5, -1\nv_mov_b32 v6, -1\nv_mov_b32 v7, -1\nv_lshlrev_b32 v8, 4, v0")
        a("s_mul_i32 s44, s2, %d\ns_add_u32 s44, s44, 0x%x" % (RESET_PER_WG, SB))
        for i in range(RESET_PER_WG // 1024):
            if i == 4:
                a("s_add_u32 s44, s44, 4096")
            if not self.o.get("noreset", 0):
                a("buffer_store_dwordx4 v[4:7], v8, s[28:31], s44 offen offset:%d sc1" % ((i % 4) * 1024))
        a("v_mov_b32 v9, 1")
        a("s_waitcnt vmcnt(0) lgkmcnt(0)")
        a("s_mov_b64 exec, 1")
        if self.o.get("padmin", 0):
            a("s_and_b32 s92, s90, 0x7fffffff\ns_not_b32 s92, s92\nv_mov_b32 v11, s92\nbuffer_atomic_umax v11, v10, s[32:35], 0 offen offset:16")
            a("s_and_b32 s92, s90, 0x7fffffff\nv_mov_b32 v12, s92\nbuffer_atomic_umax v12, v10, s[32:35], 0 offen offset:20\ns_waitcnt vmcnt(0)")
        a("buffer_atomic_add v9, v10, s[32:35], 0 offen")
        a("s_mov_b64 exec, -1")
        a("L_svc_r:")
        a("s_and_b32 s44, s2, 7\ns_lshr_b32 s45, s2, 3\ns_add_u32 s46, s44, s45\ns_and_b32 s46, s46, 7\ns_lshr_b32 s47, s45, 3")
        a("s_mul_i32 s48, s44, 18\ns_lshl_b32 s49, s46, 2\ns_add_u32 s58, s48, s49\ns_add_u32 s58, s58, s47\ns_sub_u32 s58, s58, 12")
        a("s_add_u32 s48, s44, %d\ns_cmp_lt_u32 s44, 4\ns_cselect_b32 s48, s48, 255\ns_cmp_eq_u32 s47, 2\ns_cselect_b32 s48, s48, 255" % (RED0 + 32))
        a("s_cmp_lt_u32 s47, 2\ns_cselect_b32 s48, s58, s48\ns_cmp_eq_u32 s46, 7\ns_cselect_b32 s58, s48, s58")
        a("s_add_u32 s48, s45, %d\ns_cmp_eq_u32 s46, 2\ns_cselect_b32 s58, s48, s58" % RED0)
        a("s_lshl_b32 s48, s45, 1\ns_add_u32 s48, s48, s46\ns_add_u32 s48, s48, %d\ns_cmp_lt_u32 s46, 2\ns_cselect_b32 s58, s48, s58" % OP0)
        a("s_cmp_lt_u32 s58, %d\ns_cbranch_scc1 L_ffn" % OP0)
        a("s_cmp_lt_u32 s58, %d\ns_cbranch_scc1 L_oproj" % RED0)
        a("s_cmp_lt_u32 s58, %d\ns_cbranch_scc1 L_red" % (RED0 + N_RED))
        a("s_cmp_lg_u32 s3, 0\ns_cbranch_scc1 L_end")
        a("s_call_b64 s[50:51], L_finish")
        self.flush_stamps([0, 1, 2, 3, 4, 12, 13, 14] + ([15] if self.o.get('ackstamp', 0) else []))
        a("s_endpgm")
        self.finish_attn()
        self.oproj()
        self.reducer()
        self.ffn()

    def masked_addrs(self, AR, base, bstride, tstride, so):
        a = self.a
        a("v_mov_b32 v8, 0\nv_mov_b32 v9, 0\nv_mov_b32 v10, 0\nv_mov_b32 v11, 0\nv_lshlrev_b32 v12, 4, v0\nds_write_b128 v12, v[8:11] offset:%d" % L_ZERO)
        a("v_and_b32 v12, 1, v0\nv_mul_u32_u24 v13, %d, v12\nv_lshl_add_u32 v13, v2, 4, v13\nv_add_u32 v13, %d, v13" % (bstride, base))
        a("v_lshrrev_b32 v14, 1, v1\nv_mov_b32 v15, %d" % L_ZERO)
        for t in range(8):
            a("v_cmp_eq_u32 vcc, %d, v14\ns_nop 1\nv_cndmask_b32 v%d, v15, v13, vcc" % (t, AR + t))
        a("v_mul_u32_u24 v%d, %d, v14\nv_lshl_add_u32 v%d, v12, 6, v%d\nv_lshl_add_u32 v%d, v2, 4, v%d" % (so, tstride, so, so, so, so))

    def oproj(self):
        a = self.a
        WF = 64
        a("L_oproj:")
        a("s_sub_u32 s59, s58, %d" % OP0)
        self.srd(36, 12, 4096 * 1152)
        a("s_mul_i32 s45, s59, 73728\ns_mul_i32 s46, s3, 288\ns_add_u32 s45, s45, s46")
        a("s_mul_i32 s46, s3, 18432\ns_add_u32 s46, s46, %d" % L_WB)
        a("v_mul_u32_u24 v4, 3641, v0\nv_lshrrev_b32 v4, 16, v4")
        a("v_mul_u32_u24 v5, 18, v4\nv_sub_u32 v5, v0, v5")
        a("v_mul_u32_u24 v4, 1152, v4\nv_lshl_add_u32 v4, v5, 4, v4")
        a("v_mov_b32 v7, 864")
        OW = self.o.get("op_win", 3)
        for n in range(18):
            if n >= OW:
                a("s_waitcnt vmcnt(%d)" % (OW - 1))
            a("s_mov_b32 m0, s46\ns_add_u32 s46, s46, 1024")
            a("buffer_load_dwordx4 v4, s[36:39], s45 offen nt lds")
            if n < 17:
                a("v_add_u32 v5, 10, v5\nv_cmp_le_u32 vcc, 18, v5\nv_add_u32 v4, 3616, v4\nv_subrev_u32 v6, 18, v5")
                a("v_cndmask_b32 v5, v5, v6, vcc\nv_cndmask_b32 v6, 0, v7, vcc\nv_add_u32 v4, v4, v6")
        a("v_lshrrev_b32 v4, 2, v1\nv_lshl_add_u32 v4, v2, 3, v4\nv_mul_u32_u24 v4, 288, v4\nv_and_b32 v5, 3, v0\nv_lshl_add_u32 v4, v5, 3, v4")
        a("s_mul_i32 s46, s3, 18432\ns_add_u32 s46, s46, %d\nv_add_u32 v4, s46, v4" % L_WB)
        a("s_waitcnt vmcnt(0)")
        for tt in range(9):
            for ks in range(2):
                for hh in range(2):
                    r = WF + tt * 8 + ks * 4 + hh * 2
                    a("ds_read_b64_tr_b16 v[%d:%d], v4 offset:%d" % (r, r + 1, (32 * ks + 4 * hh) * 288 + tt * 32))
            if tt % 3 == 2:
                a("s_waitcnt lgkmcnt(0)")
        a("v_mul_u32_u24 v51, 384, v2\nv_lshl_add_u32 v50, v1, 4, v51")
        self.masked_addrs(56, L_XN, 128, 8192, 52)
        a("v_lshlrev_b32 v54, 3, v1\nv_lshl_add_u32 v54, v2, 1, v54")
        a("s_sub_u32 s53, s3, 1\ns_lshl_b32 s55, s53, 7\nv_add_u32 v54, s55, v54")
        a("s_mul_i32 s52, s59, 6144\ns_mul_i32 s53, s53, 3072\ns_add_u32 s52, s52, s53\ns_add_u32 s52, s52, 0x%x" % WS_M1)
        a("s_mul_i32 s54, s3, %d\ns_lshl_b32 s55, s59, 7\ns_add_u32 s54, s54, s55\ns_add_u32 s54, s54, 0x%x\ns_add_u32 s55, s54, %d" % (9 * 8192, WS_M2, 8 * 8192))
        a("s_waitcnt lgkmcnt(0)")
        a("s_mov_b32 s56, 0x00030003\ns_mov_b32 s57, 0x00030003")
        a("s_cmp_lg_u32 s3, 0\ns_cbranch_scc1 L_op_w")
        a("s_call_b64 s[50:51], L_finish")
        a("s_branch L_op_go")
        a("L_op_w:")
        a("s_cmp_eq_u32 s3, 3\ns_cbranch_scc1 L_op_go")
        self.lds_wait(L_FLAG, 6, 1)
        self.poll_begin("L_op_poll")
        a("buffer_load_dwordx2 v[12:13], v51, s[28:31], s52 offen offset:256 sc1")
        a("buffer_load_dwordx2 v[14:15], v51, s[28:31], s52 offen offset:%d sc1" % (256 + 1536))
        a("buffer_load_dwordx4 v[16:19], v50, s[28:31], s52 offen sc1")
        a("buffer_load_dwordx4 v[20:23], v50, s[28:31], s52 offen offset:1536 sc1")
        self.poll_end("L_op_poll", range(12, 24), 24)
        self.stamp(5)
        a("v_max_f32 v24, v12, v14")
        a("v_mov_b32 v25, v24\ns_nop 1\nv_permlane16_swap_b32 v24, v25\nv_max_f32 v24, v24, v25")
        a("v_mov_b32 v25, v24\ns_nop 1\nv_permlane32_swap_b32 v24, v25\nv_max_f32 v24, v24, v25")
        a("v_sub_f32 v12, v12, v24\nv_sub_f32 v14, v14, v24\nv_exp_f32 v12, v12\nv_exp_f32 v14, v14\ns_nop 0")
        a("v_mul_f32 v13, v12, v13\nv_fmac_f32 v13, v14, v15")
        for r in range(4):
            a("v_mul_f32 v%d, v12, v%d" % (16 + r, 16 + r))
        a("v_mov_b32 v25, v13")
        for r in range(4):
            a("v_fmac_f32 v%d, v14, v%d" % (16 + r, 20 + r))
        a("v_permlane16_swap_b32 v13, v25\nv_add_f32 v13, v13, v25")
        a("v_permlane32_swap_b32 v16, v18\nv_mov_b32 v25, v13\nv_permlane32_swap_b32 v17, v19")
        a("v_add_f32 v16, v16, v18\nv_add_f32 v17, v17, v19")
        a("v_permlane32_swap_b32 v13, v25\nv_add_f32 v13, v13, v25")
        a("v_permlane16_swap_b32 v16, v17\nv_rcp_f32 v13, v13\nv_add_f32 v16, v16, v17")
        a("v_mul_f32 v16, v16, v13\nv_cvt_pk_bf16_f32 v16, v16, v16")
        a("ds_write_b16 v54, v16 offset:%d" % L_XN)
        a("s_waitcnt lgkmcnt(0)")
        a("L_op_go:")
        a("s_barrier")
        BF = 140
        order = [(t, ks) for t in range(8) for ks in range(2)]
        def rd(i):
            t, ks = order[i]
            a("ds_read_b128 v[%d:%d], v%d offset:%d" % (BF + 4 * i, BF + 4 * i + 3, 56 + t, ks * 64))
        for i in range(12):
            rd(i)
        for i, (t, ks) in enumerate(order):
            a("s_waitcnt lgkmcnt(%d)" % (min(16, i + 12) - i - 1))
            w = WF + 8 * t + 4 * ks
            a("v_mfma_f32_16x16x32_bf16 v[12:15], v[%d:%d], v[%d:%d], %s" % (w, w + 3, BF + 4 * i, BF + 4 * i + 3, "0" if i == 0 else "v[12:15]"))
            if i < 2:
                w = WF + 64 + 4 * ks
                a("v_mfma_f32_16x16x32_bf16 v[16:19], v[%d:%d], v[%d:%d], %s" % (w, w + 3, BF + 4 * i, BF + 4 * i + 3, "0" if i == 0 else "v[16:19]"))
            if i + 12 < 16:
                rd(i + 12)
        a("s_mov_b64 exec, s[56:57]")
        a("buffer_store_dwordx4 v[16:19], v52, s[28:31], s55 offen sc1")
        a("s_mov_b64 exec, -1")
        a("s_nop 4")
        a("buffer_store_dwordx4 v[12:15], v52, s[28:31], s54 offen sc1")
        self.stamp(6)
        if self.diag:
            a("s_cmp_lg_u32 s3, 1\ns_cbranch_scc1 L_opd0")
            self.flush_stamps([5])
            a("L_opd0:")
            a("s_cmp_lg_u32 s3, 0\ns_cbranch_scc1 L_end")
            self.flush_stamps([0, 1, 2, 3, 4, 6, 12, 13, 14] + ([15] if self.o.get('ackstamp', 0) else []))
        a("s_endpgm")

    def gather_sum(self, name, G, n, sbase):
        a = self.a
        self.poll_begin(name)
        for i in range(n):
            a("buffer_load_dwordx4 v[%d:%d], v50, s[28:31], s%d offen offset:%d sc1" % (G + 4 * i, G + 4 * i + 3, sbase + i // 4, (i % 4) * 1024))
        for i in range(1, n):
            a("s_waitcnt vmcnt(%d)" % (n - 1 - i))
            a("v_pk_add_f32 v[%d:%d], v[%d:%d], v[%d:%d]" % (G, G + 1, G, G + 1, G + 4 * i, G + 4 * i + 1))
            a("v_pk_add_f32 v[%d:%d], v[%d:%d], v[%d:%d]" % (G + 2, G + 3, G + 2, G + 3, G + 4 * i + 2, G + 4 * i + 3))
        a("s_nop 1")
        a("v_permlane32_swap_b32 v%d, v%d\nv_permlane32_swap_b32 v%d, v%d" % (G, G + 2, G + 1, G + 3))
        a("v_add_f32 v%d, v%d, v%d\nv_add_f32 v%d, v%d, v%d" % (G, G, G + 2, G + 1, G + 1, G + 3))
        a("s_nop 1")
        a("v_permlane16_swap_b32 v%d, v%d" % (G, G + 1))
        a("v_add_f32 v%d, v%d, v%d" % (G, G, G + 1))
        a("s_nop 1")
        self.dpp("v_add_f32", G, G, G, "row_ror:8")
        a("v_cmp_u_f32 vcc, v%d, v%d" % (G, G))
        a("s_add_u32 s60, s60, 1\ns_cmp_gt_u32 s60, %d\ns_cbranch_scc1 %s_x" % (SPIN, name))
        a("s_cbranch_vccnz %s\n%s_x:" % (name, name))

    def round4(self, base, t):
        a = self.a
        a("v_cvt_pk_bf16_f32 v%d, v%d, v%d\nv_cvt_pk_bf16_f32 v%d, v%d, v%d" % (t, base, base + 1, t + 1, base + 2, base + 3))
        a("v_lshlrev_b32 v%d, 16, v%d\nv_and_b32 v%d, s40, v%d" % (base, t, base + 1, t))
        a("v_lshlrev_b32 v%d, 16, v%d\nv_and_b32 v%d, s40, v%d" % (base + 2, t + 1, base + 3, t + 1))

    def reducer(self):
        a = self.a
        a("L_red:")
        a("s_sub_u32 s59, s58, %d" % RED0)
        a("s_cmp_eq_u32 s3, 0\ns_cbranch_scc1 L_red0")
        a("s_cmp_lg_u32 s3, 1\ns_cbranch_scc1 L_end")
        a("s_mul_i32 s52, s59, %d\ns_add_u32 s52, s52, 0x%x" % (144 * 128, WS_M4))
        a("v_mov_b32 v12, -1\nv_mov_b32 v13, -1\nv_mov_b32 v14, -1\nv_mov_b32 v15, -1\nv_lshlrev_b32 v8, 4, v0")
        self.lds_wait(L_FLAG + self.o.get("m4flag", 4), self.o.get("m4cnt", 4), 2)
        for i in range(18):
            a("buffer_store_dwordx4 v[12:15], v8, s[28:31], s52 offen offset:%d sc1" % ((i % 4) * 1024))
            if i % 4 == 3:
                a("s_add_u32 s52, s52, 4096")
        a("v_mov_b32 v9, 0\nv_mov_b32 v10, 1\ns_waitcnt vmcnt(0)")
        a("ds_write_b32 v9, v10 offset:%d" % (L_FLAG + 28))
        a("s_endpgm")
        a("L_red0:")
        self.srd(36, 4, 2304)
        a("v_bfe_u32 v51, v0, 2, 1\nv_mul_u32_u24 v51, 1152, v51\nv_and_b32 v4, 3, v0\nv_lshl_add_u32 v51, v4, 3, v51\nv_lshl_add_u32 v51, v2, 1, v51")
        a("s_lshl_b32 s45, s59, 5\nv_add_u32 v51, s45, v51")
        a("buffer_load_ushort v53, v51, s[36:39], 0 offen")
        a("v_lshlrev_b32 v50, 4, v0")
        a("v_and_b32 v52, 7, v0\nv_lshlrev_b32 v52, 3, v52\nv_bfe_u32 v5, v0, 2, 1\nv_lshlrev_b32 v5, 3, v5\nv_lshl_add_u32 v5, v4, 4, v5\nv_add_u32 v5, 64, v5")
        a("s_mov_b32 s62, 0xffff0000\ns_mov_b32 s63, 0xffff0000")
        a("v_cndmask_b32 v52, v52, v5, s[62:63]\nv_lshrrev_b32 v5, 5, v0\nv_lshl_add_u32 v52, v5, 2, v52")
        a("s_waitcnt vmcnt(0)")
        a("v_lshlrev_b32 v53, 16, v53")
        self.srd(36, 22, 2304)
        a("s_call_b64 s[50:51], L_finish")
        a("s_mov_b32 s40, 0xffff0000")
        a("s_lshl_b32 s52, s59, 13\ns_add_u32 s52, s52, 0x%x\ns_add_u32 s53, s52, 4096" % WS_M2)
        a("s_lshl_b32 s41, s59, 7\ns_add_u32 s41, s41, 0x%x" % WS_M3)
        a("s_mov_b32 s42, 0x00ff00ff\ns_mov_b32 s43, 0x00ff00ff")
        self.lds_wait(L_FLAG + 28, 1, 1, t=12)
        G = 64
        self.gather_sum("L_r1_poll", G, 8, 52)
        self.stamp(5)
        a("v_cvt_pk_bf16_f32 v%d, v%d, v%d\nv_and_b32 v%d, s40, v%d" % (G, G, G, G, G))
        a("v_add_f32 v53, v53, v%d" % G)
        a("v_cvt_pk_bf16_f32 v53, v53, v53\nv_and_b32 v53, s40, v53")
        a("v_mov_b32 v12, v53\nv_mov_b32 v13, v53\ns_nop 1\nv_permlane16_swap_b32 v12, v13")
        a("v_add_f32 v14, v12, v13\nv_mul_f32 v15, v12, v12\nv_fmac_f32 v15, v13, v13")
        a("v_cvt_pk_bf16_f32 v16, v12, v13\ns_nop 0\nv_permlane32_swap_b32 v14, v15")
        a("v_add_f32 v14, v14, v15\ns_nop 1")
        self.dpp("v_add_f32", 14, 14, 14, "quad_perm:[1,0,3,2]")
        a("s_nop 1")
        self.dpp("v_add_f32", 14, 14, 14, "quad_perm:[2,3,0,1]")
        a("v_cndmask_b32 v16, v16, v14, s[62:63]")
        a("s_mov_b64 exec, s[42:43]")
        a("buffer_store_dword v16, v52, s[28:31], s41 offen sc1")
        a("s_mov_b64 exec, -1")
        self.stamp(6)
        a("s_mul_i32 s52, s59, %d\ns_add_u32 s52, s52, 0x%x" % (144 * 128, WS_M4))
        for i in range(1, 5):
            a("s_add_u32 s%d, s52, %d" % (52 + i, 4096 * i))
        a("s_mov_b32 s42, 0x00ff00ff\ns_mov_b32 s43, 0x00ff00ff")
        self.gather_sum("L_r2_poll", G, 18, 52)
        self.stamp(7)
        a("v_cvt_pk_bf16_f32 v%d, v%d, v%d\nv_and_b32 v%d, s40, v%d" % (G, G, G, G, G))
        a("v_add_f32 v53, v53, v%d" % G)
        a("v_cvt_pk_bf16_f32 v53, v53, v53")
        a("s_mov_b64 exec, s[42:43]")
        a("buffer_store_short v53, v51, s[36:39], 0 offen %s" % self.o.get("outf", ""))
        a("s_cmp_lg_u32 s59, 0\ns_cbranch_scc1 L_red_end")
        a("s_mov_b64 exec, 1\nv_mov_b32 v16, s61\nv_mov_b32 v17, 0")
        a("buffer_store_dword v16, v17, s[28:31], 0 offen offset:%d sc1" % WS_EPOCH)
        a("L_red_end:")
        if self.o.get("dbgtime", 0):
            a("s_memrealtime s[92:93]\ns_waitcnt lgkmcnt(0)\ns_sub_u32 s92, s92, s90\ns_mov_b64 exec, 1\nv_mov_b32 v16, s92\nv_mov_b32 v17, 0")
            a("buffer_atomic_umax v16, v17, s[32:35], 0 offen offset:8")
        if self.o.get("padmin", 0):
            a("s_mov_b64 exec, 1\nv_mov_b32 v17, 0\nbuffer_load_dword v16, v17, s[32:35], 0 offen offset:16 sc1\ns_waitcnt vmcnt(0)\nv_readfirstlane_b32 s90, v16\ns_nop 3\ns_not_b32 s90, s90")
            a("L_pad2:\ns_memrealtime s[92:93]\ns_waitcnt lgkmcnt(0)\ns_and_b32 s92, s92, 0x7fffffff\ns_sub_u32 s92, s92, s90\ns_cmp_lt_u32 s92, %d\ns_cbranch_scc1 L_pad2" % (self.o["padmin"] * 100))
        if self.o.get("padto", 0):
            a("L_pad:\ns_memrealtime s[92:93]\ns_waitcnt lgkmcnt(0)\ns_sub_u32 s92, s92, s90\ns_cmp_lt_u32 s92, %d\ns_cbranch_scc1 L_pad" % (self.o["padto"] * 100))
        self.stamp(11)
        self.flush_stamps([0, 1, 2, 3, 4, 5, 6, 7, 11, 12, 13, 14] + ([15] if self.o.get('ackstamp', 0) else []))
        a("s_endpgm")

    def ffn(self):
        a = self.a
        GF, DF, HF = 64, 136, 172
        EN = self.o.get("early", 18)
        assert EN % 2 == 0
        EK = EN // 2
        FW = self.o.get("ffn_win", 40)
        EW = self.o.get("early_win", 3)
        def gu_reads(k0, k1):
            n = 0
            for ks in range(k0, k1):
                for hh in range(2):
                    r = GF + 4 * ks + 2 * hh
                    a("ds_read_b64_tr_b16 v[%d:%d], v56 offset:%d" % (r, r + 1, (32 * ks + 4 * hh) * 64))
                if ks % 3 == 2:
                    a("s_waitcnt lgkmcnt(6)")
        a("L_ffn:")
        a("v_mov_b32 v4, 0x3f803f80\nv_mov_b32 v5, v4\nv_mov_b32 v6, v4\nv_mov_b32 v7, v4\nv_lshlrev_b32 v51, 4, v0\nv_add_u32 v51, %d, v51" % L_HB)
        a("ds_write_b128 v51, v[4:7] offset:2368\nds_write_b128 v51, v[4:7] offset:%d" % (2368 + 128))
        a("v_mov_b32 v8, 0\nv_mov_b32 v9, 0\nv_mov_b32 v10, 0\nv_mov_b32 v11, 0\nds_write_b128 v51, v[8:11] offset:3520")
        a("v_mul_u32_u24 v7, 52, v0\nv_lshrrev_b32 v7, 8, v7\nv_mul_u32_u24 v8, 5, v7\nv_sub_u32 v8, v0, v8\ns_mul_i32 s45, s3, 9\nv_add_u32 v7, s45, v7")
        a("v_lshlrev_b32 v50, 7, v7\nv_lshl_add_u32 v50, v8, 4, v50")
        a("v_lshrrev_b32 v9, 1, v8\nv_mul_u32_u24 v52, 1152, v9\nv_lshl_add_u32 v52, v7, 5, v52\nv_and_b32 v9, 1, v8\nv_lshl_add_u32 v52, v9, 4, v52")
        a("v_lshlrev_b32 v9, 4, v7\nv_add_u32 v9, 3520, v9\nv_cmp_eq_u32 vcc, 4, v8\ns_nop 1\nv_cndmask_b32 v52, v52, v9, vcc\nv_add_u32 v52, %d, v52" % L_HB)
        a("v_lshrrev_b32 v4, 2, v0\nv_and_b32 v5, 3, v0\nv_and_b32 v6, 1, v0")
        a("v_bfe_u32 v53, v0, 2, 1\nv_cmp_eq_u32 vcc, 1, v6\ns_nop 1\nv_cndmask_b32 v53, v53, 2, vcc")
        a("v_mul_u32_u24 v53, 1152, v53\nv_lshl_add_u32 v53, v2, 4, v53\nv_lshl_add_u32 v53, v6, 6, v53\nv_add_u32 v53, %d, v53" % L_HB)
        a("s_lshl_b32 s45, s3, 3\nv_add_u32 v7, s45, v1\nv_bfe_u32 v54, v7, 2, 2\nv_lshlrev_b32 v54, 4, v54\nv_bfe_u32 v8, v7, 4, 1\nv_lshl_add_u32 v54, v8, 3, v54")
        a("v_lshl_add_u32 v54, v5, 1, v54\nv_and_b32 v8, 1, v2\nv_lshl_add_u32 v54, v8, 6, v54")

        a("v_lshrrev_b32 v7, 2, v1\nv_lshl_add_u32 v7, v2, 3, v7")
        a("v_bfe_u32 v56, v0, 1, 1\nv_mul_u32_u24 v56, %d, v56\nv_lshl_add_u32 v56, v7, 6, v56\nv_lshl_add_u32 v56, v6, 3, v56" % (L_UP - L_WB))
        a("v_xor_b32 v8, s3, v8\nv_lshl_add_u32 v56, v8, 4, v56\nv_add_u32 v56, %d, v56" % L_WB)
        a("v_mul_u32_u24 v57, 1184, v4\nv_lshl_add_u32 v57, v5, 3, v57")
        a("s_mul_i32 s45, s3, 288\ns_add_u32 s45, s45, %d\nv_add_u32 v57, s45, v57" % L_DN)
        a("s_mul_i32 s54, s3, %d\ns_lshl_b32 s55, s58, 7\ns_add_u32 s54, s54, s55\ns_add_u32 s54, s54, 0x%x\ns_add_u32 s55, s54, %d" % (9 * 144 * 128, WS_M4, 8 * 144 * 128))
        self.masked_addrs(244, L_ACT, 64, 144 * 128, 55)
        a("s_cmp_lg_u32 s3, 0\ns_cbranch_scc1 L_ffn_w")
        a("s_call_b64 s[50:51], L_finish")
        if EK:
            a("s_call_b64 s[50:51], L_ffn_er")
        a("s_branch L_ffn_c")
        if EK:
            a("L_ffn_er:")
            self.lds_wait(L_FLAG + 24, 2, 2, t=12)
            gu_reads(0, EK)
            a("s_waitcnt lgkmcnt(0)")
            a("s_setpc_b64 s[50:51]")
        a("L_ffn_w:")
        a("s_setprio 0")
        a("s_cmp_eq_u32 s3, 3\ns_cbranch_scc1 L_ffn_dn")
        a("s_cmp_eq_u32 s3, 1\ns_cselect_b32 s36, s16, s18\ns_cselect_b32 s37, s17, s19\ns_mov_b32 s38, %d\ns_mov_b32 s39, 0x20000" % (576 * 9216))
        a("s_cselect_b32 s46, 0, %d\ns_add_u32 s46, s46, %d" % (L_UP - L_WB, L_WB))
        a("s_lshl_b32 s45, s58, 6")
        a("v_mul_u32_u24 v4, 9216, v4\nv_lshrrev_b32 v7, 5, v0\nv_xor_b32 v5, v5, v7\nv_lshl_add_u32 v4, v5, 4, v4")
        if self.o.get("fakeA", 0):
            a("v_lshrrev_b32 v4, 5, v0\nv_mul_u32_u24 v4, 9216, v4\nv_and_b32 v5, 31, v0\nv_lshl_add_u32 v4, v5, 4, v4")
            a("s_mul_i32 s45, s58, 3641\ns_lshr_b32 s45, s45, 16\ns_mul_i32 s47, s45, 18\ns_sub_u32 s47, s58, s47\ns_mul_i32 s45, s45, %d\ns_lshl_b32 s47, s47, 9\ns_add_u32 s45, s45, s47" % (72 * 9216))
        GUF = self.o.get("guf", "nt ")
        REV = self.o.get("rev", 0)
        RS = (2 if self.o.get('fakeA', 0) else 16) * 9216
        a("s_and_b32 s62, s58, %d" % REV)
        a("s_cmp_eq_u32 s62, 0\ns_cselect_b32 s52, 1, -1\ns_mul_i32 s53, s52, 1024\ns_mul_i32 s52, s52, %d" % RS)
        def gu_loop(name, lo, hi, win):
            a("s_mul_i32 s48, s62, %d\ns_add_u32 s48, s48, %d" % (hi - 1 - lo, lo))
            a("s_mul_i32 s47, s48, %d\ns_add_u32 s47, s47, s45\ns_lshl_b32 s49, s48, 10\ns_add_u32 s49, s49, s46\ns_mov_b32 s48, 0" % RS)
            a("%s:" % name)
            a("s_mov_b32 m0, s49\ns_add_u32 s49, s49, s53")
            a("buffer_load_dwordx4 v4, s[36:39], s47 offen %slds" % GUF)
            a("s_add_u32 s47, s47, s52\ns_add_u32 s48, s48, 1")
            a("s_waitcnt vmcnt(%d)" % (win - 1))
            a("s_cmp_lt_u32 s48, %d\ns_cbranch_scc1 %s" % (hi - lo, name))
        if EN:
            gu_loop("L_ffn_lde", 0, EN, EW)
            a("v_mov_b32 v8, 0\nv_mov_b32 v9, 1\ns_waitcnt vmcnt(0)")
            a("s_mov_b64 exec, 1\nds_add_u32 v8, v9 offset:%d\ns_mov_b64 exec, -1" % (L_FLAG + 24))
            a("s_call_b64 s[50:51], L_ffn_er")
        if EN < 36:
            self.lds_wait(L_FLAG, 6, 1, t=12)
            gu_loop("L_ffn_ldl", EN, 36, FW)
            a("s_waitcnt vmcnt(0)")
        a("s_branch L_ffn_c")
        a("L_ffn_dn:")
        self.srd(36, 20, 4608 * 1152)
        a("s_mul_i32 s45, s58, 36864\ns_mov_b32 s46, %d\ns_mov_b32 s48, 0" % L_DN)
        a("v_lshlrev_b32 v4, 4, v0\nv_mov_b32 v5, v0\nv_mov_b32 v7, 32")
        if EK:
            a("s_call_b64 s[50:51], L_ffn_er")
        self.lds_wait(L_FLAG, 6, 1, t=12)
        a("L_ffn_ldd:")
        a("s_mov_b32 m0, s46\ns_add_u32 s46, s46, 1024")
        a("buffer_load_dwordx4 v4, s[36:39], s45 offen nt lds")
        a("v_add_u32 v5, 64, v5\nv_cmp_le_u32 vcc, 74, v5\nv_add_u32 v4, 1024, v4\nv_subrev_u32 v6, 74, v5\ns_add_u32 s48, s48, 1")
        a("v_cndmask_b32 v5, v5, v6, vcc\nv_cndmask_b32 v6, 0, v7, vcc\nv_sub_u32 v4, v4, v6")
        a("s_waitcnt vmcnt(%d)" % (self.o.get("dn_win", 40) - 1))
        a("s_cmp_lt_u32 s48, %d\ns_cbranch_scc1 L_ffn_ldd" % self.o.get("dn_n", 37))
        a("s_waitcnt vmcnt(0)")
        a("L_ffn_c:")
        a("s_mov_b32 s40, 0xffff0000")
        a("s_mov_b32 s41, 0x%x\ns_mov_b32 s42, 0x%x" % (f32(0.044715), f32(-2.0 * math.sqrt(2.0 / math.pi) * LOG2E)))
        a("s_mov_b32 s45, 0x%x" % WS_M3)
        a("s_mov_b32 s46, -1\ns_mov_b32 s47, 0x00001fff")
        a("s_mov_b32 s56, 0x00030003\ns_mov_b32 s57, 0x00030003")
        a("s_waitcnt lgkmcnt(0)")
        a("s_barrier")
        self.stamp(5)
        def h_loads():
            a("buffer_load_dwordx4 v[16:19], v50, s[28:31], s45 offen sc1")
        a("s_mov_b64 exec, s[46:47]")
        h_loads()
        a("s_mov_b64 exec, -1")
        gu_reads(EK, 18)
        for t in range(9):
            for hh in range(2):
                r = DF + 4 * t + 2 * hh
                a("ds_read_b64_tr_b16 v[%d:%d], v57 offset:%d" % (r, r + 1, 16 * hh * 1184 + t * 32))
            if t % 3 == 0:
                a("s_waitcnt lgkmcnt(6)")
        a("s_mov_b64 exec, s[46:47]")
        a("s_mov_b32 s60, 0\ns_branch L_h_chk")
        a("L_h_poll:")
        h_loads()
        a("L_h_chk:")
        self.poll_end("L_h_poll", range(16, 20), 14)
        a("ds_write_b128 v52, v[16:19]")
        a("s_mov_b64 exec, -1")
        a("s_waitcnt lgkmcnt(0)")
        a("s_barrier")
        self.stamp(6)
        if self.diag:
            a("s_waitcnt lgkmcnt(0)")
        a("ds_read_b128 v[28:31], v51 offset:3520")
        for ks in range(12):
            a("ds_read_b128 v[%d:%d], v53 offset:%d" % (HF + 4 * ks, HF + 4 * ks + 3, ks * 64))
        stats = [
            "v_permlane32_swap_b32 v28, v29\nv_permlane32_swap_b32 v30, v31",
            "v_add_f32 v28, v28, v29\nv_add_f32 v30, v30, v31",
            "v_permlane16_swap_b32 v28, v30\nv_add_f32 v28, v28, v30",
            "v_add_f32_dpp v28, v28, v28 row_ror:8 row_mask:0xf bank_mask:0xf",
            "v_add_f32_dpp v28, v28, v28 row_ror:4 row_mask:0xf bank_mask:0xf",
            "v_add_f32_dpp v28, v28, v28 row_ror:2 row_mask:0xf bank_mask:0xf",
            "v_add_f32_dpp v28, v28, v28 row_ror:1 row_mask:0xf bank_mask:0xf",
            "v_mul_f32 v28, 0x%x, v28\nv_mov_b32 v30, v28" % f32(1.0 / 576),
            "v_permlane32_swap_b32 v28, v30",
            "v_fma_f32 v30, -v28, v28, v30\nv_max_f32 v30, 0, v30",
            "v_cvt_pk_bf16_f32 v29, v28, v30\nv_and_b32 v30, s40, v29",
            "v_add_f32 v30, 0x%x, v30\nv_lshlrev_b32 v28, 16, v29" % f32(1e-5),
            "v_cvt_pk_bf16_f32 v30, v30, v30\nv_and_b32 v30, s40, v30",
            "v_sqrt_f32 v30, v30",
            "v_cvt_pk_bf16_f32 v30, v30, v30\nv_and_b32 v30, s40, v30",
            "v_rcp_f32 v30, v30",
            "", "",
        ]
        for ks in range(18):
            out = min(18, ks + 12) - ks - 1
            a("s_waitcnt lgkmcnt(%d)" % out)
            a("v_mfma_f32_16x16x32_bf16 v[12:15], v[%d:%d], v[%d:%d], %s" % (HF + 4 * ks, HF + 4 * ks + 3, GF + 4 * ks, GF + 4 * ks + 3, "0" if ks == 0 else "v[12:15]"))
            if ks + 12 < 18:
                k2 = ks + 12
                a("ds_read_b128 v[%d:%d], v53 offset:%d" % (HF + 4 * k2, HF + 4 * k2 + 3, k2 * 64))
            if stats[ks]:
                a(stats[ks])
        if self.o.get("fs", 0): self.stamp(12)
        a("s_nop 7")
        a("v_fma_f32 v12, -v28, v13, v12\nv_mul_f32 v12, v12, v30")
        a("v_cvt_pk_bf16_f32 v12, v12, v12\nv_and_b32 v12, s40, v12")
        a("v_mul_f32 v13, v12, v12\nv_fma_f32 v13, v13, s41, 1.0\nv_mul_f32 v14, s42, v12\nv_mul_f32 v13, v13, v14")
        a("v_exp_f32 v13, v13\ns_nop 0\nv_add_f32 v13, 1.0, v13\nv_rcp_f32 v13, v13\ns_nop 0\nv_mul_f32 v13, v12, v13")
        a("v_cvt_pk_bf16_f32 v13, v13, v13\nv_and_b32 v13, s40, v13")
        a("v_mul_f32_dpp v13, v12, v13 row_ror:8 row_mask:0xf bank_mask:0xf")
        a("v_cvt_pk_bf16_f32 v13, v13, v13")
        a("s_mov_b64 exec, 0x00ff00ff")
        a("ds_write_b16 v54, v13 offset:%d" % L_ACT)
        a("s_mov_b64 exec, -1")
        a("s_waitcnt lgkmcnt(0)")
        if self.o.get("fs", 0):
            self.stamp(13)
            if self.diag: a("s_waitcnt lgkmcnt(0)")
        a("s_barrier")
        BF = 64
        for t in range(8):
            a("ds_read_b128 v[%d:%d], v%d" % (BF + 4 * t, BF + 4 * t + 3, 244 + t))
        for t in range(8):
            a("s_waitcnt lgkmcnt(%d)" % (7 - t))
            a("v_mfma_f32_16x16x32_bf16 v[12:15], v[%d:%d], v[%d:%d], %s" % (DF + 4 * t, DF + 4 * t + 3, BF + 4 * t, BF + 4 * t + 3, "0" if t == 0 else "v[12:15]"))
            if t == 0:
                a("v_mfma_f32_16x16x32_bf16 v[16:19], v[%d:%d], v[%d:%d], 0" % (DF + 32, DF + 35, BF, BF + 3))
        a("s_mov_b64 exec, s[56:57]")
        a("buffer_store_dwordx4 v[16:19], v55, s[28:31], s55 offen sc1")
        a("s_mov_b64 exec, -1")
        a("s_nop 4")
        a("buffer_store_dwordx4 v[12:15], v55, s[28:31], s54 offen sc1")
        self.stamp(7)
        if self.diag:
            a("s_cmp_lg_u32 s3, 0\ns_cbranch_scc1 L_end")
            self.flush_stamps([0, 1, 2, 3, 4, 5, 6, 7, 12, 13, 14] + ([15] if self.o.get('ackstamp', 0) else []))
        a("s_endpgm")

    def build(self):
        a = self.a
        a("s_load_dwordx16 s[4:19], s[0:1], 0\ns_load_dwordx8 s[20:27], s[0:1], 64")
        a("s_cmp_ge_u32 s2, 256\ns_cbranch_scc1 L_end")
        if self.diag:
            for k in range(NSTAMP):
                a("s_mov_b64 s[%d:%d], 0" % (64 + 2 * k, 65 + 2 * k))
        self.stamp(0)
        if self.o.get("padto", 0) or self.o.get("dbgtime", 0) or self.o.get("padmin", 0):
            a("s_memrealtime s[90:91]")
        a("v_lshrrev_b32 v1, 6, v0\nv_and_b32 v0, 63, v0")
        a("v_readfirstlane_b32 s3, v1")
        a("v_mov_b32 v4, 0\nv_mov_b32 v5, 0\nv_mov_b32 v6, 0\nv_mov_b32 v7, 0")
        a("ds_write_b128 v4, v[4:7] offset:%d\nds_write_b128 v4, v[4:7] offset:%d" % (L_FLAG, L_FLAG + 16))
        if self.o.get("order", 1) == 1:
            a("s_cmp_lt_u32 s3, 4\ns_cbranch_scc1 L_service")
            self.streaming()
            a("L_service:")
            self.service()
        else:
            a("s_cmp_ge_u32 s3, 4\ns_cbranch_scc1 L_stream")
            self.service()
            self.streaming()
        a("L_end:\ns_endpgm")
        return wrap(a.text(), 256, 512, LDS_BYTES, 256, 100, accum=256)


if __name__ == "__main__":
    import argparse
    ap = argparse.ArgumentParser()
    ap.add_argument("out")
    ap.add_argument("--diag", action="store_true")
    ap.add_argument("--opt", action="append", default=[])
    args = ap.parse_args()
    opts = {}
    for o in args.opt:
        k, v = o.split("=", 1)
        try: v = int(v)
        except ValueError: pass
        opts[k] = v
    open(args.out, "w").write(Gen(diag=args.diag, nback=opts.get('nback', 5), win=opts.get('win', 8), opts=opts).build())
```

```python
import sys, struct, math
from asmlib import *

def f32(x):
    return struct.unpack("<I", struct.pack("<f", x))[0]

WS_EPOCH = 0x0
WS_CTR = 0x1000
WS_MQ = 0x180000
SB = 0x10000
WS_M1 = SB + 0x0
TSTR = 72 * 128
WS_M2 = SB + 0x60000
WS_M4 = SB + 0xC0000
WS_M3 = 0x200000
RESET_PER_WG = 4096
WS_STAMP = 0x8000000
NSTAMP = 16
L_Q = 0x0
L_XN = 0x200
L_ACT = 0xB00
L_PML = 0xB80
L_FLAG = 0xBC0
L_PACC = 0xC00
L_ZERO = 0x1C00
L_OPD = 0x1E00
L_WQ = 0x2000
L_WB = 0x6800
LDS_BYTES = L_WB + 72 * 1024
A0, NA, BO0 = 64, 162, 226
NOB = 42
SPIN = 200000
LOG2E = 1.4426950408889634
EPOCH_INC = 0x9E3779B9


class Gen:
    def __init__(self, diag=False, nback=4, win=8, opts=None):
        self.a = Asm()
        self.diag = diag
        self.nback = nback
        self.win = win
        self.o = opts or {}

    def stamp(self, k):
        if self.diag:
            self.a("s_memrealtime s[%d:%d]" % (64 + 2 * k, 65 + 2 * k))

    def flush_stamps(self, ks):
        if not self.diag:
            return
        a = self.a
        a("s_waitcnt lgkmcnt(0)")
        a("s_mov_b64 exec, 1")
        a("s_mul_i32 s96, s2, %d\ns_add_u32 s96, s96, 0x%x" % (NSTAMP * 8, WS_STAMP))
        a("v_mov_b32 v252, 0")
        for k in ks:
            a("v_mov_b32 v250, s%d\nv_mov_b32 v251, s%d" % (64 + 2 * k, 65 + 2 * k))
            a("buffer_store_dwordx2 v[250:251], v252, s[28:31], s96 offen offset:%d" % (8 * k))
            a("s_nop 1")

    def srd(self, d, lo, size, add=None):
        a = self.a
        if add is None:
            a("s_mov_b32 s%d, s%d\ns_mov_b32 s%d, s%d" % (d, lo, d + 1, lo + 1))
        else:
            a("s_add_u32 s%d, s%d, %s\ns_addc_u32 s%d, s%d, 0" % (d, lo, add, d + 1, lo + 1))
        a("s_mov_b32 s%d, 0x%x\ns_mov_b32 s%d, 0x20000" % (d + 2, size, d + 3))

    def xrow(self, op, x, t, halves=True, rows=True):
        a = self.a
        if rows:
            a("v_mov_b32 v%d, v%d\ns_nop 1\nv_permlane16_swap_b32 v%d, v%d\ns_nop 0\n%s v%d, v%d, v%d" % (t, x, x, t, op, x, x, t))
        if halves:
            a("v_mov_b32 v%d, v%d\ns_nop 1\nv_permlane32_swap_b32 v%d, v%d\ns_nop 0\n%s v%d, v%d, v%d" % (t, x, x, t, op, x, x, t))

    def dpp(self, op, d, s0, s1, ctrl, bank=0xf):
        self.a("%s_dpp v%d, v%d, v%d %s row_mask:0xf bank_mask:0x%x" % (op, d, s0, s1, ctrl, bank))

    def row_reduce(self, op, regs):
        for ctrl in ("row_ror:8", "row_ror:4", "row_ror:2", "row_ror:1"):
            if len(regs) < 3:
                self.a("s_nop 1")
            for r in regs:
                self.dpp(op, r, r, r, ctrl)

    def oct_reduce(self, op, regs):
        for ctrl in ("row_half_mirror", "quad_perm:[1,0,3,2]", "quad_perm:[2,3,0,1]"):
            if len(regs) < 3:
                self.a("s_nop 1")
            for r in regs:
                self.dpp(op, r, r, r, ctrl)

    def layernorm(self, X, T, ldsaddr):
        a = self.a
        s, t, m, r = T, T + 1, T + 2, T + 3
        D = T + 4
        a("v_add_f32 v%d, v%d, v%d" % (s, X, X + 1))
        a("v_add_f32 v%d, v%d, v%d" % (t, X + 2, X + 3))
        for i in range(4, 18, 2):
            a("v_add_f32 v%d, v%d, v%d\nv_add_f32 v%d, v%d, v%d" % (s, s, X + i, t, t, X + i + 1))
        a("v_add_f32 v%d, v%d, v%d" % (s, s, t))
        self.row_reduce("v_add_f32", [s])
        self.xrow("v_add_f32", s, t, halves=False)
        a("v_mul_f32 v%d, 0x%x, v%d" % (m, f32(1.0 / 576), s))
        for i in range(18):
            a("v_sub_f32 v%d, v%d, v%d" % (D + i, X + i, m))
        a("v_mul_f32 v%d, v%d, v%d\nv_mul_f32 v%d, v%d, v%d" % (s, D, D, t, D + 1, D + 1))
        for i in range(2, 18, 2):
            a("v_fmac_f32 v%d, v%d, v%d\nv_fmac_f32 v%d, v%d, v%d" % (s, D + i, D + i, t, D + i + 1, D + i + 1))
        a("v_add_f32 v%d, v%d, v%d" % (s, s, t))
        self.row_reduce("v_add_f32", [s])
        self.xrow("v_add_f32", s, t, halves=False)
        a("v_mul_f32 v%d, 0x%x, v%d" % (s, f32(1.0 / 576), s))
        a("v_cvt_pk_bf16_f32 v%d, v%d, v%d" % (t, m, s))
        a("s_mov_b32 s40, 0xffff0000")
        a("v_lshlrev_b32 v%d, 16, v%d\nv_and_b32 v%d, s40, v%d" % (m, t, s, t))
        a("v_add_f32 v%d, 0x%x, v%d" % (s, f32(1e-5), s))
        a("v_cvt_pk_bf16_f32 v%d, v%d, v%d" % (s, s, s))
        a("v_and_b32 v%d, s40, v%d" % (s, s))
        a("v_sqrt_f32 v%d, v%d\ns_nop 0" % (s, s))
        a("v_cvt_pk_bf16_f32 v%d, v%d, v%d" % (s, s, s))
        a("v_and_b32 v%d, s40, v%d" % (s, s))
        a("v_rcp_f32 v%d, v%d" % (r, s))
        for i in range(18):
            a("v_sub_f32 v%d, v%d, v%d" % (D + i, X + i, m))
        for j in range(9):
            a("v_cvt_pk_bf16_f32 v%d, v%d, v%d" % (D + 2 * j + 1, D + 2 * j, D + 2 * j + 1))
        for j in range(9):
            a("v_lshlrev_b32 v%d, 16, v%d\nv_and_b32 v%d, s40, v%d" % (D + 2 * j, D + 2 * j + 1, D + 2 * j + 1, D + 2 * j + 1))
        for i in range(18):
            a("v_mul_f32 v%d, v%d, v%d" % (D + i, D + i, r))
        for j in range(9):
            a("v_cvt_pk_bf16_f32 v%d, v%d, v%d" % (D + 2 * j, D + 2 * j, D + 2 * j + 1))
        for j in range(9):
            a("ds_write_b32 v%d, v%d offset:%d" % (ldsaddr, D + 2 * j, j * 128))

    def poll_begin(self, name):
        self.a("s_mov_b32 s60, 0\n%s:" % name)

    def poll_end(self, name, regs, t):
        a = self.a
        a("s_waitcnt vmcnt(0)")
        regs = list(regs)
        first = True
        while regs:
            if first:
                if len(regs) >= 3:
                    a("v_max3_u32 v%d, v%d, v%d, v%d" % (t, regs[0], regs[1], regs[2])); regs = regs[3:]
                else:
                    a("v_max_u32 v%d, v%d, v%d" % (t, regs[0], regs[-1])); regs = regs[2:]
                first = False
            elif len(regs) >= 2:
                a("v_max3_u32 v%d, v%d, v%d, v%d" % (t, t, regs[0], regs[1])); regs = regs[2:]
            else:
                a("v_max_u32 v%d, v%d, v%d" % (t, t, regs[0])); regs = []
        a("v_cmp_eq_u32 vcc, -1, v%d" % t)
        a("s_add_u32 s60, s60, 1\ns_cmp_gt_u32 s60, %d\ns_cbranch_scc1 %s_x" % (SPIN, name))
        a("s_cbranch_vccnz %s\n%s_x:" % (name, name))

    def ticket(self, KR, VR, ring):
        a = self.a
        QA, QB, SA, SBR, T0, T1, MT, M, ML, LS, ACC, AF, MK = 10, 14, 18, 22, 26, 27, 28, 29, 30, 31, 32, 36, 5
        for j in range(4):
            if ring and j > 0:
                a("s_waitcnt vmcnt(7)")
            if ring and j == self.o.get("cpos", 3):
                self.claim()
            k = KR + 4 * j
            for e in range(4):
                a("v_dot2_f32_bf16 v%d, v%d, v%d, %s" % (SA + j, k + e, QA + e, "0" if e == 0 else "v%d" % (SA + j)))
                a("v_dot2_f32_bf16 v%d, v%d, v%d, %s" % (SBR + j, k + e, QB + e, "0" if e == 0 else "v%d" % (SBR + j)))
            if ring:
                a("buffer_load_dwordx4 v[%d:%d], v1, s[36:39], s45 offen offset:%d nt" % (k, k + 3, j * 1024))
        for j in range(4):
            self.dpp("v_add_f32", SA + j, SA + j, SA + j, "row_ror:8", 0x3)
        for j in range(4):
            self.dpp("v_add_f32", SA + j, SBR + j, SBR + j, "row_ror:8", 0xc)
        self.oct_reduce("v_add_f32", [SA + j for j in range(4)])
        for rnd in range(2):
            a("v_cvt_pk_bf16_f32 v%d, v%d, v%d\nv_cvt_pk_bf16_f32 v%d, v%d, v%d" % (T0, SA, SA + 1, T1, SA + 2, SA + 3))
            a("v_lshlrev_b32 v%d, 16, v%d\nv_and_b32 v%d, s46, v%d" % (SA, T0, SA + 1, T0))
            a("v_lshlrev_b32 v%d, 16, v%d\nv_and_b32 v%d, s46, v%d" % (SA + 2, T1, SA + 3, T1))
            if rnd == 0:
                for j in range(4):
                    a("v_mul_f32 v%d, s47, v%d" % (SA + j, SA + j))
        a("v_max3_f32 v%d, v%d, v%d, v%d\nv_max_f32 v%d, v%d, v%d" % (MT, SA, SA + 1, SA + 2, MT, MT, SA + 3))
        a("v_cmp_gt_f32 vcc, v%d, v%d" % (MT, M))
        lab = a.label("L_nors")
        a("s_cbranch_vccz %s\ns_call_b64 s[50:51], L_rescale\n%s:" % (lab, lab))
        for j in range(4):
            a("v_fma_f32 v%d, v%d, s48, -v%d" % (SA + j, SA + j, ML))
        for j in range(4):
            a("v_exp_f32 v%d, v%d" % (SA + j, SA + j))
        a("s_nop 0")
        for j in range(4):
            a("v_cvt_pk_bf16_f32 v%d, v%d, v%d" % (SBR + j, SA + j, SA + j))
        a("v_add_f32 v%d, v%d, v%d\nv_add_f32 v%d, v%d, v%d" % (T0, SA, SA + 1, T1, SA + 2, SA + 3))
        for j in range(4):
            for e in range(4):
                a("v_and_b32 v%d, v%d, v%d" % (AF + 4 * j + e, MK + e, SBR + j))
        a("v_add_f32 v%d, v%d, v%d\nv_add_f32 v%d, v%d, v%d" % (T0, T0, T1, LS, LS, T0))
        for j in range(4):
            if ring:
                a("s_waitcnt vmcnt(7)")
            if ring and j + 4 == self.o.get("cpos", 3):
                self.claim()
            v = VR + 4 * j
            a("v_mfma_f32_16x16x32_bf16 v[%d:%d], v[%d:%d], v[%d:%d], v[%d:%d]" % (ACC, ACC + 3, AF + 4 * j, AF + 4 * j + 3, v, v + 3, ACC, ACC + 3))
            if ring:
                a("buffer_load_dwordx4 v[%d:%d], v1, s[40:43], s45 offen offset:%d nt" % (v, v + 3, j * 1024))

    def claim(self):
        a = self.a
        a("s_mov_b32 s57, 1\ns_cmp_eq_u32 s62, 0\ns_cbranch_scc1 L_nclaim\ns_atomic_add s57, s[54:55], 0x0 glc\nL_nclaim:")

    def streaming(self):
        a = self.a
        NB = self.nback
        NS = self.o.get("nstatic", 11)
        LIMF = self.o.get("limf", 512)
        assert NS >= 2 * NB + 1 and NS >= NB + 2
        RING, BACK = 52, 84
        a("L_stream:")
        a("s_sub_u32 s44, s3, 4")
        a("v_lshlrev_b32 v1, 4, v0")
        a("s_lshr_b32 s56, s2, 3\ns_lshl_b32 s46, s56, 21")
        a("s_and_b32 s45, s2, 7\ns_mul_i32 s45, s45, %d\ns_add_u32 s45, s45, s44\ns_lshl_b32 s45, s45, 12" % (NS * 4))
        a("s_waitcnt lgkmcnt(0)")
        self.srd(36, 6, 0x200000, "s46")
        self.srd(40, 8, 0x200000, "s46")
        n = 0
        for tk in range(NB + 1):
            base = BACK + 32 * tk if tk < NB else RING
            for kv in range(2):
                for j in range(4):
                    if n >= self.win:
                        a("s_waitcnt vmcnt(%d)" % (self.win - 1))
                    r = base + 16 * kv + 4 * j
                    a("buffer_load_dwordx4 v[%d:%d], v1, s[%d:%d], s45 offen offset:%d nt" % (r, r + 3, 36 + 4 * kv, 39 + 4 * kv, j * 1024))
                    n += 1
                    if n == self.o.get("qgo", (NB - 1) * 8):
                        a("ds_write_b32 v2, v3 offset:%d" % (L_FLAG + 12))
                    if n == self.win:
                        if not self.o.get("ackstamp", 0):
                            self.stamp(15)
                        self.srd(28, 26, 0x10000000)
                        a("v_and_b32 v26, 1, v0\nv_lshlrev_b32 v26, 4, v26\nv_mov_b32 v27, 0xffff\nv_lshlrev_b32 v27, v26, v27")
                        a("v_bfe_u32 v26, v0, 1, 2")
                        for e in range(4):
                            a("v_cmp_eq_u32 vcc, %d, v26\ns_nop 1\nv_cndmask_b32 v%d, 0, v27, vcc" % (e, 5 + e))
                        a("v_mov_b32 v29, 0x%x\nv_mov_b32 v30, 0x%x\nv_mov_b32 v31, 0" % (f32(-1e38), f32(-1e38 * LOG2E)))
                        a("v_mov_b32 v32, 0\nv_mov_b32 v33, 0\nv_mov_b32 v34, 0\nv_mov_b32 v35, 0")
                        a("s_mov_b32 s46, 0xffff0000\ns_mov_b32 s47, 0x%x\ns_mov_b32 s48, 0x%x" % (f32(128 ** -0.5), f32(LOG2E)))
                        a("s_mov_b32 s52, 0\ns_mov_b32 s53, -1")
                        a("v_and_b32 v9, 15, v0\nv_lshlrev_b32 v9, 4, v9")
                        a("v_mov_b32 v2, 0\nv_mov_b32 v3, 1\nv_mov_b32 v4, 0")
                        a("s_lshl_b32 s56, s56, 8\ns_add_u32 s56, s56, 0x%x\ns_add_u32 s54, s26, s56\ns_addc_u32 s55, s27, 0" % WS_CTR)
                        a("s_lshr_b32 s57, s2, 3\ns_add_u32 s58, s2, s57\ns_and_b32 s58, s58, 7\ns_cmp_lt_u32 s58, 2\ns_cselect_b32 s59, %d, %d\ns_sub_u32 s59, 512, s59\ns_lshl_b32 s59, s59, 12" % (self.o.get("ego", 0), self.o.get("endgame", 0)))
                        a("s_barrier")
            if tk < NB:
                a("s_add_u32 s45, s45, 0x4000")
        self.stamp(8)
        if self.o.get("abl", 0) != 1:
            self.lds_wait(L_FLAG + 20, 1, 1, t=26)
        self.stamp(9)
        a("ds_read_b128 v[10:13], v9 offset:%d\nds_read_b128 v[14:17], v9 offset:%d" % (L_Q, L_Q + 256))
        a("s_mov_b32 s49, 0")
        a("s_waitcnt lgkmcnt(0)")
        a("s_mov_b32 s57, 0")
        a("L_sloop:")
        a("s_waitcnt vmcnt(7) lgkmcnt(0)")
        a("s_add_u32 s45, s45, 0x4000")
        a("s_add_u32 s57, s57, %d\ns_lshl_b32 s57, s57, 12" % (NS * 32))
        a("s_cmp_lt_u32 s49, %d\ns_cselect_b32 s45, s45, s57" % (NS - NB - 1))
        a("s_cmp_ge_u32 s49, %d\ns_cselect_b32 s62, 1, 0" % (NS - NB - 2))
        a("s_cmp_lt_u32 s45, s59\ns_cbranch_scc1 L_sgo")
        a("s_cmp_ge_u32 s45, 0x200000\ns_cbranch_scc1 L_sst2")
        for kv in range(2):
            for j in range(4):
                r = BACK + 16 * kv + 4 * j
                a("buffer_load_dwordx4 v[%d:%d], v1, s[%d:%d], s45 offen offset:%d nt" % (r, r + 3, 36 + 4 * kv, 39 + 4 * kv, j * 1024))
        a("s_mov_b32 s49, 0")
        a("L_sst2:")
        a("s_mov_b32 s38, 0\ns_mov_b32 s42, 0\ns_mov_b32 s62, 0")
        a("s_mov_b64 exec, 1")
        a("ds_add_u32 v2, v3 offset:%d" % (L_FLAG + 4))
        a("s_mov_b64 exec, -1")
        a("L_sgo:")
        a("s_cmp_lg_u32 s49, %d\ns_cbranch_scc1 L_sgo2" % self.o.get("rchk", 4))
        a("ds_write_b32 v2, v3 offset:%d" % (L_FLAG + 16))
        a("L_sgo2:")
        self.ticket(RING, RING + 16, True)
        for k in range(NB):
            a("s_cmp_eq_u32 s49, %d\ns_cbranch_scc1 L_back%d" % (k, k))
        a("L_scont:")
        a("s_add_u32 s49, s49, 1\ns_cmp_lg_u32 s38, 0\ns_cbranch_scc1 L_sloop")
        self.xrow("v_add_f32", 31, 26)
        a("s_lshl_b32 s45, s44, 10")
        a("v_add_u32 v26, s45, v1")
        a("ds_write_b128 v26, v[32:35] offset:%d" % L_PACC)
        a("s_lshl_b32 s45, s44, 4")
        a("v_add_u32 v27, s45, v0")
        a("s_mov_b64 exec, 0x101")
        a("ds_write_b64 v27, v[30:31] offset:%d" % L_PML)
        a("s_mov_b64 exec, 1")
        a("ds_add_u32 v2, v3 offset:%d" % L_FLAG)
        self.stamp(10)
        if self.diag:
            if self.o.get("abl", 0):
                a("s_cmp_lg_u32 s3, 7\ns_cbranch_scc1 L_nw7")
                a("s_waitcnt lgkmcnt(0)\ns_mov_b64 s[70:71], s[84:85]")
                self.flush_stamps([3])
                a("L_nw7:")
            a("s_cmp_lg_u32 s3, 4\ns_cbranch_scc1 L_end")
            self.flush_stamps([8, 9, 10] + ([] if self.o.get('ackstamp', 0) else [15]))
        a("s_endpgm")
        for k in range(NB):
            a("L_back%d:" % k)
            if k == 0:
                a("s_waitcnt vmcnt(8)")
            self.ticket(BACK + 32 * k, BACK + 32 * k + 16, False)
            a("s_branch L_scont")
        a("L_rescale:")
        a("v_max_f32 v28, v28, v29")
        self.xrow("v_max_f32", 28, 26)
        a("v_mov_b32 v29, v28\nv_mul_f32 v27, s48, v28\nv_sub_f32 v26, v30, v27\nv_exp_f32 v26, v26\nv_mov_b32 v30, v27")
        a("v_mul_f32 v31, v31, v26")
        a("v_readlane_b32 s63, v26, 0\nv_readlane_b32 s56, v26, 8\ns_nop 1")
        a("v_mov_b32 v26, s63\nv_mov_b32 v27, s56\nv_cndmask_b32 v26, v26, v27, s[52:53]")
        for r in range(4):
            a("v_mul_f32 v%d, v%d, v26" % (32 + r, 32 + r))
        a("s_setpc_b64 s[50:51]")

    def lds_wait(self, off, val, sleep, t=5):
        a = self.a
        lab = a.label("L_lw")
        a("v_mov_b32 v%d, 0\ns_mov_b32 s60, 0\n%s:" % (t, lab))
        a("ds_read_b32 v%d, v%d offset:%d\ns_waitcnt lgkmcnt(0)" % (t + 1, t, off))
        a("v_cmp_le_u32 vcc, %s, v%d" % (val, t + 1))
        a("s_add_u32 s60, s60, 1\ns_cmp_gt_u32 s60, %d\ns_cbranch_scc1 %s_x\ns_cbranch_vccnz %s_x" % (SPIN * 20, lab, lab))
        if sleep:
            a("s_sleep %d" % sleep)
        a("s_branch %s\n%s_x:" % (lab, lab))

    def qproj(self):
        a = self.a
        a("v_lshrrev_b32 v3, 5, v0\nv_mul_u32_u24 v3, 1152, v3\nv_and_b32 v4, 31, v0\nv_lshl_add_u32 v3, v4, 2, v3")
        a("v_mov_b32 v6, 0")
        a("s_lshr_b32 s46, s2, 3\ns_and_b32 s47, s46, 15\ns_lshr_b32 s48, s46, 4")
        a("s_bfe_u32 s49, s2, 0x10002\ns_lshl_b32 s44, s48, 1\ns_add_u32 s49, s49, s44")
        a("s_and_b32 s50, s2, 3")
        a("s_waitcnt lgkmcnt(0)")
        self.srd(36, 4, 2304)
        self.srd(28, 26, 0x10000000)
        for j in range(9):
            a("buffer_load_dword v%d, v3, s[36:39], 0 offen offset:%d" % (16 + 2 * j + 1, j * 128))
        a("buffer_load_dword v7, v6, s[28:31], 0 offen offset:%d sc1" % WS_EPOCH)
        self.srd(32, 24, 256)
        a("s_and_b32 s44, s2, 7\ns_cmp_eq_u32 s44, 0\ns_cselect_b64 exec, 1, 0")
        a("s_lshl_b32 s44, s46, 8\ns_add_u32 s44, s44, 0x%x" % WS_CTR)
        a("buffer_store_dword v6, v6, s[28:31], s44 offen sc1")
        a("s_mov_b64 exec, -1")
        a("s_mov_b32 s40, 0xffff0000")
        a("s_barrier")
        a("s_waitcnt vmcnt(0)")
        for j in range(9):
            a("v_lshlrev_b32 v%d, 16, v%d\nv_and_b32 v%d, s40, v%d" % (16 + 2 * j, 16 + 2 * j + 1, 16 + 2 * j + 1, 16 + 2 * j + 1))
        a("v_add_u32 v7, 0x%x, v7" % EPOCH_INC)
        a("v_add_u32 v8, %d, v3" % L_XN)
        self.layernorm(16, 40, 8)
        a("v_and_b32 v9, 1, v0\nv_mul_u32_u24 v9, 1152, v9\nv_lshl_add_u32 v9, v2, 3, v9\ns_mul_i32 s44, s50, 288\nv_add_u32 v9, s44, v9")
        a("v_lshrrev_b32 v10, 2, v0\nv_lshlrev_b32 v10, 7, v10\nv_and_b32 v11, 3, v0\nv_lshl_add_u32 v10, v11, 3, v10")
        a("s_waitcnt lgkmcnt(0)")
        FB, FA, D = 64, 84, 160
        for ks in range(9):
            a("ds_read_b64 v[%d:%d], v9 offset:%d" % (FB + 2 * ks, FB + 2 * ks + 1, L_XN + ks * 32))
        self.lds_wait(L_FLAG + 8, 3, 0, t=12)
        for ks in range(9):
            for t in range(4):
                r = FA + 8 * ks + 2 * t
                a("ds_read_b64_tr_b16 v[%d:%d], v10 offset:%d" % (r, r + 1, L_WQ + ks * 2048 + t * 32))
            if ks % 3 == 2:
                a("s_waitcnt lgkmcnt(0)")
                for k2 in range(ks - 2, ks + 1):
                    for t in range(4):
                        r = FA + 8 * k2 + 2 * t
                        a("v_mfma_f32_16x16x16_bf16 v[%d:%d], v[%d:%d], v[%d:%d], %s" % (D + 4 * t, D + 4 * t + 3, r, r + 1, FB + 2 * k2, FB + 2 * k2 + 1, "0" if k2 == 0 else "v[%d:%d]" % (D + 4 * t, D + 4 * t + 3)))
        a("s_lshl_b32 s45, s47, 14\ns_lshl_b32 s44, s50, 11\ns_add_u32 s45, s45, s44\ns_lshl_b32 s44, s49, 9\ns_add_u32 s45, s45, s44\ns_add_u32 s45, s45, 0x%x" % WS_MQ)
        a("v_and_b32 v10, 1, v0\nv_lshlrev_b32 v10, 13, v10\nv_lshl_add_u32 v10, v2, 5, v10\nv_bfe_u32 v11, v0, 1, 1\nv_lshl_add_u32 v10, v11, 4, v10")
        a("v_cmp_eq_u32 vcc, 1, v11")
        a("s_mov_b32 s52, 0x000f000f\ns_mov_b32 s53, 0x000f000f")
        for t in range(4):
            a("v_mov_b32 v%d, v7\nv_mov_b32 v%d, v7" % (17 + 4 * t, 19 + 4 * t))
        for t in range(4):
            a("v_cndmask_b32 v%d, v%d, v%d, vcc\nv_cndmask_b32 v%d, v%d, v%d, vcc" % (16 + 4 * t, D + 4 * t, D + 4 * t + 2, 18 + 4 * t, D + 4 * t + 1, D + 4 * t + 3))
        a("s_mov_b64 exec, s[52:53]")
        for t in range(4):
            a("buffer_store_dwordx4 v[%d:%d], v10, s[28:31], s45 offen offset:%d sc1" % (16 + 4 * t, 19 + 4 * t, t * 128))
        a("s_mov_b64 exec, -1")
        self.stamp(1)
        a("s_lshl_b32 s44, s47, 1\ns_add_u32 s44, s44, s48\ns_lshl_b32 s44, s44, 13\ns_add_u32 s44, s44, 0x%x\ns_add_u32 s45, s44, 4096" % WS_MQ)
        a("v_lshlrev_b32 v10, 4, v0\nv_lshlrev_b32 v11, 2, v0")
        G = 64
        self.lds_wait(L_FLAG + 12, 1, 2, t=12)
        a("s_mov_b32 s60, 0\nL_qpoll:")
        for i in range(8):
            a("buffer_load_dwordx4 v[%d:%d], v10, s[28:31], s%d offen offset:%d sc1" % (G + 4 * i, G + 4 * i + 3, 44 + i // 4, (i % 4) * 1024))
        a("s_waitcnt vmcnt(0)")
        for i in range(8):
            a("v_xor_b32 v%d, v%d, v7\nv_xor_b32 v%d, v%d, v7" % (G + 4 * i + 1, G + 4 * i + 1, G + 4 * i + 3, G + 4 * i + 3))
        a("v_or_b32 v12, v%d, v%d" % (G + 1, G + 3))
        for i in range(1, 8):
            a("v_or3_b32 v12, v12, v%d, v%d" % (G + 4 * i + 1, G + 4 * i + 3))
        a("v_cmp_ne_u32 vcc, 0, v12")
        a("s_add_u32 s60, s60, 1\ns_cmp_gt_u32 s60, %d\ns_cbranch_scc1 L_qpoll_x\ns_cbranch_vccnz L_qpoll\nL_qpoll_x:" % SPIN)
        for hf in range(2):
            for c in (0, 2):
                b0 = G + 4 * hf + c
                a("v_add_f32 v%d, v%d, v%d\nv_add_f32 v%d, v%d, v%d" % (b0, b0, b0 + 8, b0 + 16, b0 + 16, b0 + 24))
        for hf in range(2):
            for c in (0, 2):
                b0 = G + 4 * hf + c
                a("v_add_f32 v%d, v%d, v%d" % (b0, b0, b0 + 16))
        a("v_cvt_pk_bf16_f32 v12, v%d, v%d\nv_cvt_pk_bf16_f32 v13, v%d, v%d" % (G, G + 2, G + 4, G + 6))
        a("ds_write_b32 v11, v12 offset:%d\nds_write_b32 v11, v13 offset:%d" % (L_Q, L_Q + 256))
        a("v_mov_b32 v12, 1\nds_write_b32 v6, v12 offset:%d" % (L_FLAG + 20))
        a("v_readfirstlane_b32 s61, v7")
        a("s_waitcnt lgkmcnt(0)")
        self.stamp(2)

    def finish_attn(self):
        a = self.a
        a("L_finish:")
        self.stamp(14)
        self.lds_wait(L_FLAG + 16, 1, 8, t=4)
        a("v_mov_b32 v4, 0\ns_mov_b32 s60, 0\nL_rpoll:")
        a("buffer_load_dword v5, v4, s[32:35], 0 offen sc1\ns_waitcnt vmcnt(0)")
        a("v_cmp_gt_u32 vcc, 192, v5")
        a("s_add_u32 s60, s60, 1\ns_cmp_gt_u32 s60, %d\ns_cbranch_scc1 L_rpoll_x\ns_cbranch_vccz L_rpoll_x\ns_sleep 64\ns_branch L_rpoll\nL_rpoll_x:" % SPIN)
        a("v_mov_b32 v5, 1\ns_mov_b64 exec, 1\nds_add_u32 v4, v5 offset:%d\ns_mov_b64 exec, -1" % L_FLAG)
        if self.o.get("cpf", 1):
            a("s_getpc_b64 s[44:45]\nL_cpf:")
            a("v_lshlrev_b32 v6, 7, v0\nv_min_u32 v6, L_end-L_cpf, v6")
            a("global_load_dword v255, v6, s[44:45]")
            if self.diag:
                a("v_lshlrev_b32 v6, 7, v0\nv_add_u32 v6, 8192, v6\nv_min_u32 v6, L_end-L_cpf, v6")
                a("global_load_dword v255, v6, s[44:45]")
        a("s_lshr_b32 s44, s2, 3\ns_and_b32 s45, s44, 15\ns_lshr_b32 s44, s44, 4\ns_lshl_b32 s44, s44, 3\ns_and_b32 s46, s2, 7\ns_add_u32 s44, s44, s46")
        a("v_mul_u32_u24 v8, 6144, v2\nv_lshl_add_u32 v8, v1, 4, v8")
        a("s_mul_i32 s46, s44, 384\ns_mul_i32 s45, s45, 24576\ns_add_u32 s46, s46, s45\ns_add_u32 s46, s46, 0x%x" % WS_M1)
        a("v_and_b32 v10, 32, v0\nv_and_b32 v6, 1, v0\nv_lshl_add_u32 v10, v6, 4, v10\nv_bfe_u32 v6, v0, 1, 4\nv_add_u32 v10, v10, v6\nv_lshlrev_b32 v10, 4, v10")
        a("v_lshrrev_b32 v11, 5, v0\nv_lshlrev_b32 v11, 3, v11")
        a("s_mov_b32 s48, 0x00ff00ff\ns_mov_b32 s49, 0x00ff00ff")
        self.stamp(1)
        self.lds_wait(L_FLAG, 6, self.o.get('fsl', 1), t=4)
        self.stamp(3)
        for wv in range(4):
            a("ds_read_b64 v[%d:%d], v11 offset:%d" % (12 + 2 * wv, 13 + 2 * wv, L_PML + 16 * wv))
        for wv in range(4):
            a("ds_read_b128 v[%d:%d], v10 offset:%d" % (20 + 4 * wv, 23 + 4 * wv, L_PACC + 1024 * wv))
        a("s_waitcnt lgkmcnt(0)")
        a("v_max3_f32 v36, v12, v14, v16\nv_max_f32 v36, v36, v18")
        for wv in range(4):
            a("v_sub_f32 v%d, v%d, v36" % (12 + 2 * wv, 12 + 2 * wv))
        for wv in range(4):
            a("v_exp_f32 v%d, v%d" % (12 + 2 * wv, 12 + 2 * wv))
        a("s_nop 0")
        for r in range(4):
            a("v_mul_f32 v%d, v12, v%d" % (40 + r, 20 + r))
        for wv in range(1, 4):
            for r in range(4):
                a("v_fmac_f32 v%d, v%d, v%d" % (40 + r, 12 + 2 * wv, 20 + 4 * wv + r))
        a("buffer_store_dwordx4 v[40:43], v8, s[28:31], s46 offen sc1")
        a("v_mul_f32 v37, v12, v13")
        for wv in range(1, 4):
            a("v_fmac_f32 v37, v%d, v%d" % (12 + 2 * wv, 13 + 2 * wv))
        a("v_mov_b32 v38, v36\nv_mov_b32 v39, v37")
        a("s_mov_b64 exec, s[48:49]")
        a("buffer_store_dwordx4 v[36:39], v8, s[28:31], s46 offen offset:256 sc1")
        self.stamp(4)
        if self.o.get("trigack", 0):
            a("s_waitcnt vmcnt(0)")
        a("s_mov_b64 exec, 1\nv_mov_b32 v5, 1\nds_add_u32 v4, v5 offset:%d" % L_FLAG)
        a("s_mov_b64 exec, -1")
        if self.o.get("ackstamp", 0):
            a("s_waitcnt vmcnt(0)")
            self.stamp(15)
        a("s_setpc_b64 s[50:51]")

    def service(self):
        a = self.a
        a("s_setprio 2")
        if self.o.get("abl", 0) == 1:
            a("s_waitcnt lgkmcnt(0)")
            self.srd(28, 26, 0x10000000)
            a("s_barrier")
            a("s_cmp_lg_u32 s3, 0\ns_cbranch_scc1 L_end")
            self.flush_stamps([0])
            a("s_endpgm")
        a("v_and_b32 v1, 15, v0\nv_lshrrev_b32 v2, 4, v0")
        a("s_cmp_lg_u32 s3, 0\ns_cbranch_scc1 L_svc_other")
        self.qproj()
        a("s_branch L_svc_a")
        a("L_svc_other:")
        a("v_lshrrev_b32 v4, 3, v0\nv_lshlrev_b32 v4, 13, v4\nv_and_b32 v5, 7, v0\nv_lshl_add_u32 v4, v5, 4, v4")
        a("s_bfe_u32 s47, s2, 0x40003\ns_lshr_b32 s48, s2, 7\ns_bfe_u32 s49, s2, 0x10002\ns_lshl_b32 s44, s48, 1\ns_add_u32 s49, s49, s44\ns_and_b32 s50, s2, 3")
        a("s_lshl_b32 s45, s47, 2\ns_add_u32 s45, s45, s49\ns_lshl_b32 s45, s45, 7\ns_mul_i32 s44, s50, 3\ns_add_u32 s44, s44, s3\ns_sub_u32 s44, s44, 1\ns_mul_i32 s44, s44, %d\ns_add_u32 s45, s45, s44" % (48 * 8192))
        a("s_mul_i32 s46, s3, 6144\ns_add_u32 s46, s46, %d" % (L_WQ - 6144))
        a("s_waitcnt lgkmcnt(0)")
        self.srd(40, 10, 576 * 8192)
        for i in range(6):
            a("s_mov_b32 m0, s46\ns_add_u32 s46, s46, 1024")
            a("buffer_load_dwordx4 v4, s[40:43], s45 offen nt lds")
            a("s_add_u32 s45, s45, %d" % (8 * 8192))
        self.srd(28, 26, 0x10000000)
        self.srd(32, 24, 256)
        a("s_mov_b32 s61, 0")
        a("v_mov_b32 v6, 0\nv_mov_b32 v7, 1")
        a("s_barrier")
        a("s_waitcnt vmcnt(0)")
        a("s_mov_b64 exec, 1\nds_add_u32 v6, v7 offset:%d\ns_mov_b64 exec, -1" % (L_FLAG + 8))
        self.lds_wait(L_FLAG + self.o.get("bgflag", 8), 1, 4, t=12)
        a("L_svc_a:")
        if self.o.get("abl", 0) == 2:
            a("s_cmp_lg_u32 s3, 0\ns_cbranch_scc1 L_end")
            self.flush_stamps([0, 1, 2, 12, 13, 14] + ([15] if self.o.get('ackstamp', 0) else []))
            a("s_endpgm")
        a("s_lshr_b32 s45, s2, 3\ns_add_u32 s58, s2, s45\ns_and_b32 s46, s58, 7\ns_lshl_b32 s58, s46, 5\ns_add_u32 s58, s58, s45")
        if self.o.get("xmap", 1):
            a("s_and_b32 s44, s2, 7\ns_lshl_b32 s47, s46, 2\ns_lshr_b32 s48, s45, 3\ns_add_u32 s47, s47, s48\ns_sub_u32 s47, s47, 8")
            a("s_mul_i32 s48, s44, 18\ns_mul_i32 s49, s44, 6\ns_add_u32 s49, s49, 126\ns_cmp_lt_u32 s47, 18\ns_cselect_b32 s48, s48, s49\ns_add_u32 s48, s48, s47\ns_add_u32 s48, s48, %d" % A0)
            a("s_cmp_lt_u32 s46, 2\ns_cselect_b32 s58, s58, s48")
        a("s_cmp_lt_u32 s58, %d\ns_cbranch_scc1 L_ob" % A0)
        a("s_cmp_lg_u32 s3, 1\ns_cbranch_scc1 L_svc_r")
        a("v_mov_b32 v10, 0")
        a("v_mov_b32 v4, -1\nv_mov_b32 v5, -1\nv_mov_b32 v6, -1\nv_mov_b32 v7, -1\nv_lshlrev_b32 v8, 4, v0")
        a("s_mul_i32 s44, s58, %d\ns_add_u32 s44, s44, 0x%x" % (RESET_PER_WG, SB - A0 * RESET_PER_WG + (1 << 32)))
        for i in range(RESET_PER_WG // 1024):
            if i == 4:
                a("s_add_u32 s44, s44, 4096")
            if not self.o.get("noreset", 0):
                a("buffer_store_dwordx4 v[4:7], v8, s[28:31], s44 offen offset:%d sc1" % ((i % 4) * 1024))
        a("v_mov_b32 v9, 1")
        a("s_waitcnt vmcnt(0) lgkmcnt(0)")
        a("s_mov_b64 exec, 1")
        if self.o.get("padmin", 0):
            a("s_and_b32 s92, s90, 0x7fffffff\ns_not_b32 s92, s92\nv_mov_b32 v11, s92\nbuffer_atomic_umax v11, v10, s[32:35], 0 offen offset:16")
            a("s_and_b32 s92, s90, 0x7fffffff\nv_mov_b32 v12, s92\nbuffer_atomic_umax v12, v10, s[32:35], 0 offen offset:20\ns_waitcnt vmcnt(0)")
        a("buffer_atomic_add v9, v10, s[32:35], 0 offen")
        a("s_mov_b64 exec, -1")
        a("L_svc_r:")
        a("s_cmp_lt_u32 s58, %d\ns_cbranch_scc1 L_a" % BO0)
        a("s_branch L_ob")
        self.box_reset()
        self.w64()
        self.finish_attn()
        self.mm_store()
        self.role_ob()
        self.role_a()

    def box_reset(self):
        a = self.a
        a("L_box:")
        a("v_mov_b32 v12, -1\nv_mov_b32 v13, -1\nv_mov_b32 v14, -1\nv_mov_b32 v15, -1\nv_lshlrev_b32 v8, 4, v0\nv_mov_b32 v9, 0\nv_mov_b32 v7, 1")
        a("s_cmp_eq_u32 s53, 0\ns_cbranch_scc1 L_box_x")
        a("s_cmp_eq_u32 s49, 0\ns_cbranch_scc1 L_box_l")
        a("s_mov_b64 exec, 1\nds_add_u32 v9, v7 offset:%d\ns_mov_b64 exec, -1\nv_mov_b32 v7, 0" % L_FLAG)
        self.lds_wait(L_FLAG + self.o.get("boxflag", 4), self.o.get("boxcnt", 4), 2, t=10)
        a("L_box_l:")
        if not self.o.get("nobox", 0):
            a("buffer_store_dwordx4 v[12:15], v8, s[28:31], s52 offen sc1")
        a("s_add_u32 s52, s52, 1024\ns_sub_u32 s53, s53, 1\ns_waitcnt vmcnt(%d)\ns_cmp_lg_u32 s53, 0\ns_cbranch_scc1 L_box_l" % self.o.get("box_win", 20))
        a("L_box_x:")
        a("s_waitcnt vmcnt(0)")
        a("s_mov_b64 exec, 1\nds_add_u32 v9, v7 offset:%d\ns_mov_b64 exec, -1" % L_FLAG)
        a("s_setpc_b64 s[50:51]")

    def w64_setup(self):
        a = self.a
        a("s_lshl_b32 s46, s3, 3\nv_lshrrev_b32 v5, 3, v0\nv_add_u32 v5, s46, v5\nv_mul_u32_u24 v5, 7282, v5\nv_lshlrev_b32 v8, 4, v0")
        for i in range(18):
            if i:
                a("v_add_u32 v5, %d, v5" % (32 * 7282))
            a("v_bfe_u32 v4, v5, 17, 2\nv_lshlrev_b32 v4, 5, v4\nv_xor_b32 v%d, v4, v8" % (204 + i))
        a("v_lshrrev_b32 v10, 2, v0\nv_mul_u32_u24 v10, 1152, v10\nv_and_b32 v11, 3, v0\nv_lshl_add_u32 v10, v11, 3, v10\nv_bfe_u32 v11, v0, 3, 2\nv_add_u32 v10, %d, v10" % L_WB)
        a("v_xor_b32 v226, s3, v11\nv_lshl_add_u32 v226, v226, 5, v10")
        a("s_lshl_b32 s46, s3, 8\nv_add_u32 v10, s46, v10")
        for j in range(4):
            a("v_xor_b32 v%d, %d, v11\nv_lshl_add_u32 v%d, v%d, 5, v10" % (222 + j, j, 222 + j, 222 + j))

    def w64(self):
        a = self.a
        WF = 64
        BI = self.o.get("bh", 0) // 4
        def lds(lo, hi):
            a("s_lshl_b32 s47, s3, 10\ns_add_u32 s46, s47, %d\ns_add_u32 s47, s47, s45" % (L_WB + lo * 4096))
            if lo:
                a("s_add_u32 s47, s47, %d" % (lo * 4096))
            for i in range(lo, hi):
                a("s_mov_b32 m0, s46\ns_add_u32 s46, s46, 4096")
                a("buffer_load_dwordx4 v%d, s[36:39], s47 offen nt lds" % (204 + i))
                lab = a.label("L_wn")
                a("s_add_u32 s47, s47, 4096\ns_cbranch_vccz %s\ns_waitcnt vmcnt(%d)\n%s:" % (lab, self.o.get("op_win", 5) - 1, lab))
        a("L_w64:\nL_wi:")
        lds(0, 18)
        a("s_setpc_b64 s[50:51]")
        a("L_wf:")
        if self.o.get("ws", 0): self.stamp(14)
        a("v_mov_b32 v8, 0\nv_mov_b32 v9, 1\ns_waitcnt vmcnt(0)")
        if self.o.get("ws", 0): self.stamp(1)
        a("s_mov_b64 exec, 1\nds_add_u32 v8, v9 offset:%d\ns_mov_b64 exec, -1" % (L_FLAG + 24))
        self.lds_wait(L_FLAG + 24, "s48", 0, t=10)
        if self.o.get("ws", 0): self.stamp(2)
        for tt in range(9):
            for ks in range(2):
                for hh in range(2):
                    r = WF + tt * 8 + ks * 4 + hh * 2
                    areg, off = (222 + tt % 4, (tt // 4) * 128) if tt < 8 else (226, 1024)
                    a("ds_read_b64_tr_b16 v[%d:%d], v%d offset:%d" % (r, r + 1, areg, (32 * ks + 16 * hh) * 1152 + off))
            if tt % 2 == 1:
                a("s_waitcnt lgkmcnt(4)")
        a("s_waitcnt lgkmcnt(0)")
        a("s_setpc_b64 s[50:51]")

    def zero_area(self):
        self.a("v_mov_b32 v8, 0\nv_mov_b32 v9, 0\nv_mov_b32 v10, 0\nv_mov_b32 v11, 0\nv_lshlrev_b32 v12, 3, v0\nds_write_b64 v12, v[8:9] offset:%d" % L_ZERO)

    def mm_store(self):
        a = self.a
        WF, BF = 64, 140
        a("L_mm:")
        a("s_barrier")
        order = [(t, ks) for t in range(8) for ks in range(2)]
        def rd(i):
            t, ks = order[i]
            a("ds_read_b128 v[%d:%d], v%d offset:%d" % (BF + 4 * i, BF + 4 * i + 3, 56 + t, ks * 64))
        for i in range(12):
            rd(i)
        for i, (t, ks) in enumerate(order):
            a("s_waitcnt lgkmcnt(%d)" % (min(16, i + 12) - i - 1))
            w = WF + 8 * t + 4 * ks
            a("v_mfma_f32_16x16x32_bf16 v[12:15], v[%d:%d], v[%d:%d], %s" % (w, w + 3, BF + 4 * i, BF + 4 * i + 3, "0" if i == 0 else "v[12:15]"))
            if i < 2:
                w = WF + 64 + 4 * ks
                a("v_mfma_f32_16x16x32_bf16 v[16:19], v[%d:%d], v[%d:%d], %s" % (w, w + 3, BF + 4 * i, BF + 4 * i + 3, "0" if i == 0 else "v[16:19]"))
            if i + 12 < 16:
                rd(i + 12)
        a("s_mov_b64 exec, s[56:57]")
        a("buffer_store_dwordx4 v[16:19], v49, s[28:31], s55 offen sc1")
        a("s_mov_b64 exec, -1")
        a("s_nop 4")
        a("buffer_store_dwordx4 v[12:15], v52, s[28:31], s54 offen sc1")
        a("s_setpc_b64 s[50:51]")

    def role_ob(self):
        a = self.a
        a("L_ob:")
        a("s_sub_u32 s59, s58, %d\ns_cmp_lt_u32 s58, %d\ns_cselect_b32 s59, s58, s59" % (BO0 - NOB, A0))
        self.w64_setup()
        a("s_mul_i32 s45, s59, 73728\ns_mov_b32 s48, 4")
        a("s_cmp_ge_u32 s58, %d\ns_cbranch_scc1 L_ob_s" % A0)
        self.srd(36, 12, 4096 * 1152)
        a("s_mov_b64 vcc, 1\ns_call_b64 s[50:51], L_wi\ns_call_b64 s[50:51], L_wf")
        a("s_mov_b64 exec, 1\nds_add_u32 v8, v9 offset:%d\ns_mov_b64 exec, -1" % (L_FLAG + 28))
        self.lds_wait(L_FLAG + 28, 4, 1, t=10)
        a("L_ob_s:")
        self.srd(36, 20, 4608 * 1152)
        self.zero_area()
        a("v_and_b32 v12, 1, v0\nv_lshlrev_b32 v13, 7, v12\nv_lshl_add_u32 v13, v2, 4, v13\nv_add_u32 v13, %d, v13" % L_OPD)
        a("v_lshrrev_b32 v14, 1, v1\nv_mov_b32 v15, %d" % (L_ZERO + 64))
        for t in range(8):
            a("v_cmp_eq_u32 vcc, %d, v14\ns_nop 1\nv_cndmask_b32 v%d, v15, v13, vcc" % (t, 56 + t))
        a("v_bfe_u32 v52, v0, 3, 1\nv_lshl_add_u32 v52, v52, 2, v2\nv_mul_u32_u24 v52, %d, v52\nv_and_b32 v14, 7, v0\nv_lshl_add_u32 v52, v14, 4, v52" % TSTR)
        a("v_lshlrev_b32 v49, 5, v2\nv_lshl_add_u32 v49, v12, 4, v49")
        a("v_mul_u32_u24 v51, 384, v2\nv_lshl_add_u32 v50, v1, 4, v51")
        a("v_lshrrev_b32 v4, 3, v1\nv_lshlrev_b32 v54, 6, v4\nv_and_b32 v4, 3, v0\nv_lshl_add_u32 v54, v4, 4, v54\nv_bfe_u32 v5, v0, 2, 1\nv_lshl_add_u32 v54, v5, 3, v54\nv_lshl_add_u32 v54, v2, 1, v54")
        a("s_sub_u32 s63, s3, 1\ns_lshl_b32 s55, s63, 7\nv_add_u32 v54, s55, v54")
        a("v_lshrrev_b32 v6, 5, v0\nv_lshlrev_b32 v53, 10, v6\nv_and_b32 v6, 1, v2\nv_lshl_add_u32 v53, v6, 11, v53\nv_lshl_add_u32 v53, v1, 4, v53\ns_lshl_b32 s55, s3, 8\nv_add_u32 v53, s55, v53")
        a("v_bfe_u32 v7, v0, 3, 1\nv_lshlrev_b32 v55, 6, v7\nv_lshl_add_u32 v55, v5, 3, v55\nv_bfe_u32 v7, v0, 1, 1\nv_lshl_add_u32 v55, v7, 2, v55\nv_lshl_add_u32 v55, v6, 1, v55\nv_lshl_add_u32 v55, v12, 7, v55")
        a("s_lshl_b32 s55, s3, 4\nv_add_u32 v55, s55, v55")
        a("s_lshl_b32 s55, s59, 7\ns_add_u32 s55, s55, 0x%x\ns_mul_i32 s54, s3, %d\ns_add_u32 s54, s54, s55\ns_mul_i32 s46, s3, %d\ns_add_u32 s55, s55, s46\ns_add_u32 s55, s55, %d" % (WS_M2, 8 * TSTR, TSTR, 32 * TSTR))
        a("s_mov_b32 s56, 0x00030003\ns_mov_b32 s57, 0x00030003")
        a("s_waitcnt lgkmcnt(0)")
        a("s_cmp_lg_u32 s3, 0\ns_cbranch_scc1 L_ob_1")
        a("s_call_b64 s[50:51], L_finish")
        a("s_branch L_ob_p")
        a("L_ob_1:")
        a("s_cmp_eq_u32 s3, 3\ns_cbranch_scc1 L_ob_x")
        a("s_cmp_ge_u32 s58, %d\ns_cbranch_scc1 L_ob_g" % NOB)
        a("s_mov_b64 vcc, 1\ns_call_b64 s[50:51], L_wi")
        a("s_branch L_ob_g")
        a("L_ob_x:")
        a("s_mul_i32 s52, s59, 18432\ns_add_u32 s52, s52, 0x%x\ns_sub_u32 s53, s58, %d\ns_cmp_lt_u32 s53, %d\ns_cselect_b32 s53, 0, 18\ns_cmp_lt_u32 s58, %d\ns_cselect_b32 s49, 1, 0" % (WS_M3, NOB, A0 - NOB, A0))
        a("s_call_b64 s[50:51], L_box")
        a("L_ob_g:")
        self.lds_wait(L_FLAG, 7, 1)
        a("L_ob_p:")
        a("s_mul_i32 s45, s59, 73728\ns_mov_b32 s48, 4")
        a("s_cmp_ge_u32 s58, %d\ns_cbranch_scc1 L_ob_li" % A0)
        a("s_mov_b32 s48, 8")
        a("s_cmp_ge_u32 s63, 2\ns_cbranch_scc1 L_ob_2")
        a("s_mul_i32 s52, s59, 6144\ns_mul_i32 s53, s63, 3072\ns_add_u32 s52, s52, s53\ns_add_u32 s52, s52, 0x%x" % WS_M1)
        self.poll_begin("L_op_poll")
        a("buffer_load_dwordx2 v[12:13], v51, s[28:31], s52 offen offset:256 sc1")
        a("buffer_load_dwordx2 v[14:15], v51, s[28:31], s52 offen offset:%d sc1" % (256 + 1536))
        a("buffer_load_dwordx4 v[16:19], v50, s[28:31], s52 offen sc1")
        a("buffer_load_dwordx4 v[20:23], v50, s[28:31], s52 offen offset:1536 sc1")
        self.poll_end("L_op_poll", range(12, 24), 24)
        self.stamp(5)
        a("v_max_f32 v24, v12, v14")
        a("v_mov_b32 v25, v24\ns_nop 1\nv_permlane16_swap_b32 v24, v25\nv_max_f32 v24, v24, v25")
        a("v_mov_b32 v25, v24\ns_nop 1\nv_permlane32_swap_b32 v24, v25\nv_max_f32 v24, v24, v25")
        a("v_sub_f32 v12, v12, v24\nv_sub_f32 v14, v14, v24\nv_exp_f32 v12, v12\nv_exp_f32 v14, v14\ns_nop 0")
        a("v_mul_f32 v13, v12, v13\nv_fmac_f32 v13, v14, v15")
        for r in range(4):
            a("v_mul_f32 v%d, v12, v%d" % (16 + r, 16 + r))
        a("v_mov_b32 v25, v13")
        for r in range(4):
            a("v_fmac_f32 v%d, v14, v%d" % (16 + r, 20 + r))
        a("v_permlane16_swap_b32 v13, v25\nv_add_f32 v13, v13, v25")
        a("v_permlane32_swap_b32 v16, v18\nv_mov_b32 v25, v13\nv_permlane32_swap_b32 v17, v19")
        a("v_add_f32 v16, v16, v18\nv_add_f32 v17, v17, v19")
        a("v_permlane32_swap_b32 v13, v25\nv_add_f32 v13, v13, v25")
        a("v_permlane16_swap_b32 v16, v17\nv_rcp_f32 v13, v13\nv_add_f32 v16, v16, v17")
        a("v_mul_f32 v16, v16, v13\nv_cvt_pk_bf16_f32 v16, v16, v16")
        a("ds_write_b16 v54, v16 offset:%d" % L_OPD)
        a("s_waitcnt lgkmcnt(0)")
        a("L_ob_2:")
        a("s_call_b64 s[50:51], L_mm")
        self.stamp(6)
        a("s_cmp_ge_u32 s58, %d\ns_cbranch_scc1 L_ob_end" % NOB)
        a("s_cmp_lt_u32 s63, 2\ns_cbranch_scc1 L_ob_3")
        a("L_ob_li:")
        a("s_mov_b64 vcc, 0\ns_call_b64 s[50:51], L_wi")
        a("L_ob_3:")
        a("s_call_b64 s[50:51], L_wf")
        a("L_ob_b:")
        self.stamp(12)
        a("s_add_u32 s54, s54, 0x%x\ns_add_u32 s55, s55, 0x%x" % (WS_M4 - WS_M2, WS_M4 - WS_M2))
        a("s_mul_i32 s40, s59, 18432\ns_add_u32 s40, s40, 0x%x" % WS_M3)
        for i in range(1, 5):
            a("s_add_u32 s%d, s40, %d" % (40 + i, 4096 * i))
        a("s_mov_b32 s46, 0xffff\ns_mov_b32 s47, 0xffff")
        a("s_mov_b32 s48, 0x%x\ns_mov_b32 s49, 0x%x" % (f32(0.044715), f32(-2.0 * math.sqrt(2.0 / math.pi) * LOG2E)))
        a("s_mov_b32 s52, 0xaaaaaaaa\ns_mov_b32 s53, 0xaaaaaaaa\ns_mov_b32 s62, 0x33333333\ns_mov_b32 s63, 0x33333333")
        a("s_mov_b32 s45, 0x%x" % f32(1.0 / 576))
        G = 20
        a("v_mov_b32 v36, 0\nv_mov_b32 v37, 0\nv_mov_b32 v38, 0\nv_mov_b32 v39, 0")
        self.poll_begin("L_b_poll")
        for i in range(5):
            if i == 4:
                a("s_mov_b64 exec, s[46:47]")
            a("buffer_load_dwordx4 v[%d:%d], v53, s[28:31], s%d offen sc1" % (G + 4 * i, G + 4 * i + 3, 40 + i))
        a("s_mov_b64 exec, -1")
        for i in range(1, 5):
            a("s_waitcnt vmcnt(%d)" % (4 - i))
            a("v_pk_add_f32 v[%d:%d], v[%d:%d], v[%d:%d]" % (G, G + 1, G, G + 1, G + 4 * i, G + 4 * i + 1))
            a("v_pk_add_f32 v[%d:%d], v[%d:%d], v[%d:%d]" % (G + 2, G + 3, G + 2, G + 3, G + 4 * i + 2, G + 4 * i + 3))
        a("s_add_u32 s60, s60, 1\ns_cmp_gt_u32 s60, %d" % SPIN)
        a("v_permlane16_swap_b32 v20, v21\nv_permlane16_swap_b32 v22, v23")
        a("v_add_f32 v20, v20, v21\nv_add_f32 v22, v22, v23")
        a("v_cmp_u_f32 vcc, v20, v22")
        a("v_mul_f32 v12, s45, v20\nv_mul_f32 v13, s45, v22")
        a("s_cbranch_scc1 L_b_poll_x\ns_cbranch_vccnz L_b_poll\nL_b_poll_x:")
        self.stamp(13)
        a("v_fma_f32 v13, -v12, v12, v13\ns_mov_b64 vcc, s[52:53]")
        a("v_mov_b32_dpp v14, v12 row_newbcast:7 row_mask:0xf bank_mask:0xf")
        a("v_max_f32 v13, 0, v13\nv_add_f32 v13, 0x%x, v13" % f32(1e-5))
        a("v_cndmask_b32_dpp v14, v12, v14, vcc row_newbcast:3 row_mask:0xf bank_mask:0xf")
        a("v_rsq_f32 v13, v13\nv_sub_f32 v14, 0, v14")
        a("v_fmac_f32_dpp v22, v22, v14 quad_perm:[2,2,2,2] row_mask:0xf bank_mask:0xf")
        a("v_fmac_f32_dpp v20, v20, v14 quad_perm:[2,2,2,2] row_mask:0xf bank_mask:0xf")
        a("v_mov_b32_dpp v15, v13 row_newbcast:7 row_mask:0xf bank_mask:0xf")
        a("v_cndmask_b32_dpp v15, v13, v15, vcc row_newbcast:3 row_mask:0xf bank_mask:0xf")
        a("s_mov_b64 vcc, s[62:63]")
        a("v_cndmask_b32_dpp v20, v22, v20, vcc quad_perm:[0,1,0,1] row_mask:0xf bank_mask:0xf")
        a("v_mul_f32 v20, v20, v15")
        a("v_mov_b32 v21, v20\nv_mul_f32 v13, v20, v20\nv_fma_f32 v13, v13, s48, 1.0\nv_mul_f32 v14, s49, v20\nv_mul_f32 v13, v13, v14")
        a("v_exp_f32 v13, v13\nv_permlane32_swap_b32 v20, v21\nv_add_f32 v13, 1.0, v13\nv_rcp_f32 v13, v13\nv_mul_f32 v20, v20, v21\nv_mul_f32 v20, v20, v13")
        a("v_cvt_pk_bf16_f32 v20, v20, v20")
        a("s_mov_b32 exec_hi, 0")
        a("ds_write_b16 v55, v20 offset:%d" % L_OPD)
        a("s_mov_b32 exec_hi, -1")
        a("s_waitcnt lgkmcnt(0)")
        a("s_call_b64 s[50:51], L_mm")
        self.stamp(7)
        a("L_ob_end:")
        if self.diag:
            a("s_cmp_lg_u32 s3, 1\ns_cbranch_scc1 L_opd0")
            self.flush_stamps([5])
            a("L_opd0:")
            a("s_cmp_lg_u32 s3, 0\ns_cbranch_scc1 L_end")
            self.flush_stamps([0, 1, 2, 3, 4, 6, 7, 12, 13, 14])
        a("s_endpgm")

    def gather_sum(self, name, G, n, sbase, between=None, sleep=0):
        a = self.a
        def loads():
            for i in range(n):
                a("buffer_load_dwordx4 v[%d:%d], v50, s[28:31], s%d offen offset:%d sc1" % (G + 4 * i, G + 4 * i + 3, sbase + i // 4, (i % 4) * 1024))
        if between is not None:
            loads()
            between()
            a("s_mov_b32 s60, 0\ns_branch %s_c\n%s:" % (name, name))
            if sleep:
                a("s_sleep %d" % sleep)
            loads()
            a("%s_c:" % name)
        else:
            self.poll_begin(name)
            loads()
        for i in range(1, n):
            a("s_waitcnt vmcnt(%d)" % (n - 1 - i))
            a("v_pk_add_f32 v[%d:%d], v[%d:%d], v[%d:%d]" % (G, G + 1, G, G + 1, G + 4 * i, G + 4 * i + 1))
            a("v_pk_add_f32 v[%d:%d], v[%d:%d], v[%d:%d]" % (G + 2, G + 3, G + 2, G + 3, G + 4 * i + 2, G + 4 * i + 3))
        a("s_add_u32 s60, s60, 1\ns_cmp_gt_u32 s60, %d" % SPIN)
        a("v_permlane32_swap_b32 v%d, v%d\nv_permlane32_swap_b32 v%d, v%d" % (G, G + 2, G + 1, G + 3))
        a("v_add_f32 v%d, v%d, v%d\nv_add_f32 v%d, v%d, v%d" % (G, G, G + 2, G + 1, G + 1, G + 3))
        a("s_nop 1")
        a("v_permlane16_swap_b32 v%d, v%d" % (G, G + 1))
        a("v_add_f32 v%d, v%d, v%d" % (G, G, G + 1))
        a("s_nop 1")
        self.dpp("v_add_f32", G, G, G, "row_ror:8")
        a("v_cmp_u_f32 vcc, v%d, v%d" % (G, G))
        a("s_cbranch_scc1 %s_x" % name)
        a("s_cbranch_vccnz %s\n%s_x:" % (name, name))

    def gather_inc(self, name, G, n, sbase, between=None, sleep=0):
        a = self.a
        P = G + 4
        for r in range(4):
            a("v_mov_b32 v%d, 0" % (G + r))
        a("s_mov_b32 s44, 0x%x\ns_mov_b32 s60, 0" % ((1 << n) - 1))
        def ld(i):
            a("buffer_load_dwordx4 v[%d:%d], v50, s[28:31], s%d offen offset:%d sc1" % (P + 4 * i, P + 4 * i + 3, sbase + i // 4, (i % 4) * 1024))
        if between is not None:
            for i in range(n):
                ld(i)
            between()
            a("s_branch %s_c" % name)
        a("%s:" % name)
        if sleep:
            a("s_sleep %d" % sleep)
        for i in range(n):
            a("s_bitcmp0_b32 s44, %d\ns_cbranch_scc1 %s_l%d" % (i, name, i))
            ld(i)
            a("%s_l%d:" % (name, i))
        a("%s_c:" % name)
        a("s_waitcnt vmcnt(0)")
        for i in range(n):
            p = P + 4 * i
            a("s_bitcmp0_b32 s44, %d\ns_cbranch_scc1 %s_k%d" % (i, name, i))
            a("v_max3_u32 v49, v%d, v%d, v%d\nv_max_u32 v49, v49, v%d\nv_cmp_eq_u32 vcc, -1, v49\ns_cbranch_vccnz %s_k%d" % (p, p + 1, p + 2, p + 3, name, i))
            a("v_pk_add_f32 v[%d:%d], v[%d:%d], v[%d:%d]\nv_pk_add_f32 v[%d:%d], v[%d:%d], v[%d:%d]" % (G, G + 1, G, G + 1, p, p + 1, G + 2, G + 3, G + 2, G + 3, p + 2, p + 3))
            a("s_bitset0_b32 s44, %d" % i)
            a("%s_k%d:" % (name, i))
        a("s_add_u32 s60, s60, 1\ns_cmp_gt_u32 s60, %d\ns_cbranch_scc1 %s_x" % (SPIN, name))
        a("s_cmp_lg_u32 s44, 0\ns_cbranch_scc1 %s\n%s_x:" % (name, name))
        a("v_permlane32_swap_b32 v%d, v%d\nv_permlane32_swap_b32 v%d, v%d" % (G, G + 2, G + 1, G + 3))
        a("v_add_f32 v%d, v%d, v%d\nv_add_f32 v%d, v%d, v%d" % (G, G, G + 2, G + 1, G + 1, G + 3))
        a("s_nop 1")
        a("v_permlane16_swap_b32 v%d, v%d" % (G, G + 1))
        a("v_add_f32 v%d, v%d, v%d" % (G, G, G + 1))
        a("s_nop 1")
        self.dpp("v_add_f32", G, G, G, "row_ror:8")

    def role_a(self):
        a = self.a
        GU, G, BF = 64, 128, 168
        ONES, ST = L_OPD + 320, L_ACT
        a("L_a:")
        a("s_sub_u32 s59, s58, %d\ns_mul_i32 s62, s59, 3641\ns_lshr_b32 s62, s62, 16\ns_mul_i32 s63, s62, 18\ns_sub_u32 s63, s59, s63" % A0)
        a("s_lshl_b32 s59, s62, 2\ns_add_u32 s59, s59, s3")
        self.srd(36, 4, 2304)
        a("v_bfe_u32 v16, v0, 1, 2\nv_mov_b32 v17, s3\ns_cmp_eq_u32 s62, 8\ns_cselect_b64 vcc, -1, 0\nv_and_b32 v20, 1, v0")
        a("v_cndmask_b32 v18, v16, v17, vcc\nv_cndmask_b32 v19, v17, v16, vcc")
        a("v_mul_u32_u24 v51, 1152, v20\nv_lshl_add_u32 v51, v18, 5, v51\nv_lshl_add_u32 v51, v19, 3, v51\nv_lshl_add_u32 v51, v2, 1, v51")
        a("s_lshl_b32 s45, s62, 7\nv_add_u32 v51, s45, v51")
        a("v_bfe_u32 v5, v0, 2, 1\nv_and_b32 v4, 3, v0")
        a("buffer_load_ushort v53, v51, s[36:39], 0 offen")
        a("v_lshlrev_b32 v50, 4, v0")
        self.zero_area()
        a("v_mov_b32 v13, 0x3f803f80\nv_lshlrev_b32 v14, 2, v0\ns_mov_b32 exec_hi, 0\nds_write_b32 v14, v13 offset:%d\nds_write_b32 v14, v8 offset:%d\ns_mov_b32 exec_hi, -1" % (ONES, ST))
        a("v_lshlrev_b32 v54, 7, v20\nv_lshl_add_u32 v54, v19, 4, v54\nv_lshl_add_u32 v54, v2, 1, v54\nv_lshrrev_b32 v16, 1, v18\nv_lshl_add_u32 v54, v16, 6, v54\nv_and_b32 v16, 1, v18\nv_lshl_add_u32 v54, v16, 3, v54")
        a("v_lshlrev_b32 v55, 4, v20\nv_lshl_add_u32 v55, v2, 2, v55")
        a("v_lshlrev_b32 v13, 7, v4\nv_cmp_eq_u32 vcc, 2, v4\nv_mov_b32 v14, 320\ns_nop 0\nv_cndmask_b32 v13, v13, v14, vcc\nv_lshl_add_u32 v13, v2, 4, v13\nv_add_u32 v13, %d, v13" % L_OPD)
        a("v_mov_b32 v15, %d\nv_cmp_eq_u32 vcc, 3, v4\nv_lshlrev_b32 v60, 4, v5\nv_add_u32 v60, %d, v60\nv_cndmask_b32 v13, v13, v15, vcc\nv_cndmask_b32 v60, v15, v60, vcc" % (L_ZERO + 192, ST))
        a("v_lshrrev_b32 v14, 2, v1")
        for t in range(4):
            a("v_cmp_eq_u32 vcc, %d, v14\ns_nop 1\nv_cndmask_b32 v%d, v15, v13, vcc" % (t, 56 + t))
        a("v_lshrrev_b32 v6, 2, v0\nv_lshlrev_b32 v7, 9, v6\nv_lshl_add_u32 v7, v4, 3, v7\nv_add_u32 v7, %d, v7\nv_and_b32 v6, 7, v6\ns_lshl_b32 s45, s3, 2\nv_xor_b32 v6, s45, v6" % L_WB)
        for t in range(4):
            a("v_xor_b32 v8, %d, v6\nv_lshl_add_u32 v%d, v8, 5, v7" % (t, 44 + t))
        a("v_lshrrev_b32 v6, 5, v0\nv_mul_u32_u24 v7, 9216, v6\nv_and_b32 v8, 31, v0\nv_lshl_add_u32 v7, v8, 4, v7\nv_lshlrev_b32 v6, 5, v6\nv_xor_b32 v244, v7, v6")
        for t in range(1, 4):
            a("v_xor_b32 v%d, %d, v244" % (244 + t, 64 * t))
        a("s_waitcnt vmcnt(0) lgkmcnt(0)")
        a("v_lshlrev_b32 v53, 16, v53")
        a("s_cmp_lt_u32 s3, 2\ns_cselect_b32 s36, s16, s18\ns_cselect_b32 s37, s17, s19\ns_mov_b32 s38, %d\ns_mov_b32 s39, 0x20000" % (576 * 9216))
        a("s_cmp_lg_u32 s3, 0\ns_cbranch_scc1 L_a_1")
        a("s_call_b64 s[50:51], L_finish")
        a("s_branch L_a_2")
        a("L_a_1:")
        if self.o.get("a12", 0):
            a("s_cmp_eq_u32 s3, 3\ns_cbranch_scc1 L_a_3")
            if self.o.get("a12", 0) == 2:
                a("s_cmp_eq_u32 s3, 2\ns_cbranch_scc1 L_a_w")
            self.lds_wait(L_FLAG + 4, self.o.get("a12cnt", 4), 1, t=12)
            a("s_branch L_a_2\nL_a_3:")
        else:
            a("s_cmp_lg_u32 s3, 3\ns_cbranch_scc1 L_a_w")
        a("s_lshl_b32 s52, s62, 2\ns_add_u32 s52, s52, s63\ns_mul_i32 s52, s52, %d\ns_add_u32 s52, s52, 0x%x\ns_cmp_lt_u32 s63, 4\ns_cselect_b32 s53, 9, 0\ns_mov_b32 s49, 0" % (TSTR, WS_M4))
        a("s_call_b64 s[50:51], L_box")
        a("L_a_w:")
        self.lds_wait(L_FLAG, 7, 1, t=12)
        a("L_a_2:")
        a("s_lshl_b32 s45, s62, 1\ns_and_b32 s46, s3, 1\ns_add_u32 s45, s45, s46\ns_mul_i32 s45, s45, %d\ns_lshl_b32 s46, s63, 9\ns_add_u32 s45, s45, s46" % (32 * 9216))
        a("s_lshl_b32 s46, s3, 14\ns_add_u32 s46, s46, %d" % L_WB)
        for n in range(16):
            a("s_mov_b32 m0, s46\ns_add_u32 s46, s46, 1024")
            if not self.o.get("noA", 0):
                a("buffer_load_dwordx4 v%d, s[36:39], s45 offen nt lds" % (244 + n % 4))
            a("s_add_u32 s45, s45, %d" % (2 * 9216))
        a("s_mov_b32 s40, 0xffff0000")
        a("s_mul_i32 s52, s59, %d\ns_add_u32 s52, s52, 0x%x\ns_add_u32 s53, s52, 4096\ns_add_u32 s54, s52, 8192" % (TSTR, WS_M2))
        a("s_lshl_b32 s41, s63, 2\ns_add_u32 s41, s41, s3\ns_mul_i32 s41, s41, 9\ns_add_u32 s41, s41, s62\ns_lshl_b32 s41, s41, 11\ns_add_u32 s41, s41, 0x%x" % WS_M3)
        a("s_mov_b32 s42, 0x00ff00ff\ns_mov_b32 s43, 0x00ff00ff\ns_mov_b32 s46, 0x00030003\ns_mov_b32 s47, 0x00030003")
        a("s_waitcnt vmcnt(0)")
        a("s_barrier")
        self.stamp(12)
        def trreads():
            for mat in range(2):
                for tt in range(4):
                    for ks in range(2):
                        for hh in range(2):
                            r = GU + mat * 32 + tt * 8 + ks * 4 + hh * 2
                            a("ds_read_b64_tr_b16 v[%d:%d], v%d offset:%d" % (r, r + 1, 44 + tt, mat * 32768 + (32 * ks + 16 * hh) * 512))
                    if tt % 2 == 1:
                        a("s_waitcnt lgkmcnt(4)")
        if self.o.get("inc1", 0):
            self.gather_inc("L_r1_poll", G, 8, 52, between=trreads, sleep=self.o.get("sl1", 0))
        else:
            self.gather_sum("L_r1_poll", G, 8, 52, between=trreads, sleep=self.o.get("sl1", 0))
        self.stamp(5)
        a("v_cvt_pk_bf16_f32 v%d, v%d, v%d\nv_and_b32 v%d, s40, v%d" % (G, G, G, G, G))
        a("v_add_f32 v53, v53, v%d" % G)
        a("v_cvt_pk_bf16_f32 v12, v53, v53\nv_and_b32 v53, s40, v12")
        a("s_mov_b64 exec, s[42:43]\nds_write_b16 v54, v12 offset:%d\ns_mov_b64 exec, -1" % L_OPD)
        a("v_mov_b32 v13, v53\nv_mul_f32 v14, v53, v53\ns_nop 1\nv_permlane32_swap_b32 v13, v14\nv_add_f32 v13, v13, v14")
        a("v_mov_b32 v14, v13\ns_nop 1\nv_permlane16_swap_b32 v13, v14\nv_add_f32 v13, v13, v14\ns_nop 1")
        self.dpp("v_add_f32", 13, 13, 13, "quad_perm:[2,3,0,1]")
        a("s_nop 1")
        self.dpp("v_add_f32", 13, 13, 13, "row_ror:4")
        a("s_mov_b64 exec, s[46:47]\nds_add_f32 v55, v13 offset:%d\ns_mov_b64 exec, -1" % ST)
        a("s_waitcnt lgkmcnt(0)")
        a("s_barrier")
        a("ds_read_b128 v[12:15], v60\nds_read_b128 v[16:19], v60")
        for i in range(8):
            a("ds_read_b128 v[%d:%d], v%d offset:%d" % (BF + 4 * i, BF + 4 * i + 3, 56 + i // 2, (i % 2) * 64))
        for i in range(8):
            a("s_waitcnt lgkmcnt(%d)" % (7 - i))
            for mat in range(2):
                w = GU + mat * 32 + 4 * i
                d = 12 + 4 * mat
                a("v_mfma_f32_16x16x32_bf16 v[%d:%d], v[%d:%d], v[%d:%d], v[%d:%d]" % (d, d + 3, w, w + 3, BF + 4 * i, BF + 4 * i + 3, d, d + 3))
        a("s_add_u32 s52, s52, 0x%x\ns_add_u32 s53, s53, 0x%x\ns_add_u32 s54, s54, 0x%x" % ((WS_M4 - WS_M2,) * 3))
        a("s_nop 3")
        a("buffer_store_dwordx4 v[12:15], v50, s[28:31], s41 offen sc1")
        a("buffer_store_dwordx4 v[16:19], v50, s[28:31], s41 offen offset:1024 sc1")
        self.stamp(6)
        a("s_cmp_eq_u32 s3, s63\ns_cbranch_scc1 L_a_red")
        if self.diag:
            a("s_cmp_lg_u32 s3, 0\ns_cbranch_scc1 L_end")
            self.flush_stamps([0, 1, 2, 3, 4, 5, 6, 12, 14])
        a("s_endpgm")
        a("L_a_red:")
        self.srd(36, 22, 2304)
        a("s_waitcnt vmcnt(0)")
        if self.o.get("inc2", 0):
            self.gather_inc("L_r2_poll", G, 9, 52)
        else:
            self.gather_sum("L_r2_poll", G, 9, 52)
        self.stamp(7)
        a("v_cvt_pk_bf16_f32 v%d, v%d, v%d\nv_and_b32 v%d, s40, v%d" % (G, G, G, G, G))
        a("v_add_f32 v53, v53, v%d" % G)
        a("v_cvt_pk_bf16_f32 v53, v53, v53")
        a("s_mov_b64 exec, s[42:43]")
        a("buffer_store_short v53, v51, s[36:39], 0 offen")
        a("s_cmp_lg_u32 s59, 0\ns_cbranch_scc1 L_red_end")
        a("s_mov_b64 exec, 1\nv_mov_b32 v16, s61\nv_mov_b32 v17, 0")
        a("buffer_store_dword v16, v17, s[28:31], 0 offen offset:%d sc1" % WS_EPOCH)
        a("L_red_end:")
        self.stamp(11)
        if self.diag:
            self.flush_stamps([7, 11])
            a("s_cmp_lg_u32 s3, 0\ns_cbranch_scc1 L_end")
            self.flush_stamps([0, 1, 2, 3, 4, 5, 6, 12, 14])
        a("s_endpgm")

    def build(self):
        a = self.a
        a("s_load_dwordx16 s[4:19], s[0:1], 0\ns_load_dwordx8 s[20:27], s[0:1], 64")
        a("s_cmp_ge_u32 s2, 256\ns_cbranch_scc1 L_end")
        if self.diag:
            for k in range(NSTAMP):
                a("s_mov_b64 s[%d:%d], 0" % (64 + 2 * k, 65 + 2 * k))
        self.stamp(0)
        if self.o.get("padto", 0) or self.o.get("dbgtime", 0) or self.o.get("padmin", 0):
            a("s_memrealtime s[90:91]")
        a("v_lshrrev_b32 v1, 6, v0\nv_and_b32 v0, 63, v0")
        a("v_readfirstlane_b32 s3, v1")
        a("v_mov_b32 v4, 0\nv_mov_b32 v5, 0\nv_mov_b32 v6, 0\nv_mov_b32 v7, 0")
        a("ds_write_b128 v4, v[4:7] offset:%d\nds_write_b128 v4, v[4:7] offset:%d" % (L_FLAG, L_FLAG + 16))
        if self.o.get("order", 1) == 1:
            a("s_cmp_lt_u32 s3, 4\ns_cbranch_scc1 L_service")
            self.streaming()
            a("L_service:")
            self.service()
        else:
            a("s_cmp_ge_u32 s3, 4\ns_cbranch_scc1 L_stream")
            self.service()
            self.streaming()
        a("L_end:\ns_endpgm")
        return wrap(a.text(), 256, 512, LDS_BYTES, 256, 100, accum=256)


if __name__ == "__main__":
    import argparse
    ap = argparse.ArgumentParser()
    ap.add_argument("out")
    ap.add_argument("--diag", action="store_true")
    ap.add_argument("--opt", action="append", default=[])
    args = ap.parse_args()
    opts = {}
    for o in args.opt:
        k, v = o.split("=", 1)
        try: v = int(v)
        except ValueError: pass
        opts[k] = v
    open(args.out, "w").write(Gen(diag=args.diag, nback=opts.get('nback', 5), win=opts.get('win', 8), opts=opts).build())
```

```python
import sys, struct, math
from asmlib import *

def f32(x):
    return struct.unpack("<I", struct.pack("<f", x))[0]

WS_EPOCH = 0x0
WS_CTR = 0x1000
WS_MQ = 0x180000
SB = 0x10000
WS_M1 = SB + 0x0
TSTR = 72 * 128
WS_M2 = SB + 0x60000
WS_M4 = SB + 0xC0000
WS_M3 = 0x200000
RESET_PER_WG = 4096
WS_STAMP = 0x8000000
NSTAMP = 16
L_Q = 0x0
L_XN = 0x200
L_ACT = 0xB00
L_PML = 0xB80
L_FLAG = 0xBC0
L_PACC = 0xC00
L_ZERO = 0x1C00
L_OPD = 0x1E00
L_WQ = 0x2000
L_WB = 0x6800
LDS_BYTES = L_WB + 72 * 1024
A0, NA, BO0 = 64, 162, 226
NOB = 42
SPIN = 200000
LOG2E = 1.4426950408889634
EPOCH_INC = 0x9E3779B9


class Gen:
    def __init__(self, diag=False, nback=4, win=8, opts=None):
        self.a = Asm()
        self.diag = diag
        self.nback = nback
        self.win = win
        self.o = opts or {}

    def stamp(self, k):
        if self.diag:
            self.a("s_memrealtime s[%d:%d]" % (64 + 2 * k, 65 + 2 * k))

    def flush_stamps(self, ks):
        if not self.diag:
            return
        a = self.a
        a("s_waitcnt lgkmcnt(0)")
        a("s_mov_b64 exec, 1")
        a("s_mul_i32 s100, s2, %d\ns_add_u32 s100, s100, 0x%x" % (NSTAMP * 8, WS_STAMP))
        a("v_mov_b32 v252, 0")
        for k in ks:
            a("v_mov_b32 v250, s%d\nv_mov_b32 v251, s%d" % (64 + 2 * k, 65 + 2 * k))
            a("buffer_store_dwordx2 v[250:251], v252, s[28:31], s100 offen offset:%d" % (8 * k))
            a("s_nop 1")

    def srd(self, d, lo, size, add=None):
        a = self.a
        if add is None:
            a("s_mov_b32 s%d, s%d\ns_mov_b32 s%d, s%d" % (d, lo, d + 1, lo + 1))
        else:
            a("s_add_u32 s%d, s%d, %s\ns_addc_u32 s%d, s%d, 0" % (d, lo, add, d + 1, lo + 1))
        a("s_mov_b32 s%d, 0x%x\ns_mov_b32 s%d, 0x20000" % (d + 2, size, d + 3))

    def xrow(self, op, x, t, halves=True, rows=True):
        a = self.a
        if rows:
            a("v_mov_b32 v%d, v%d\ns_nop 1\nv_permlane16_swap_b32 v%d, v%d\ns_nop 0\n%s v%d, v%d, v%d" % (t, x, x, t, op, x, x, t))
        if halves:
            a("v_mov_b32 v%d, v%d\ns_nop 1\nv_permlane32_swap_b32 v%d, v%d\ns_nop 0\n%s v%d, v%d, v%d" % (t, x, x, t, op, x, x, t))

    def dpp(self, op, d, s0, s1, ctrl, bank=0xf):
        self.a("%s_dpp v%d, v%d, v%d %s row_mask:0xf bank_mask:0x%x" % (op, d, s0, s1, ctrl, bank))

    def row_reduce(self, op, regs):
        for ctrl in ("row_ror:8", "row_ror:4", "row_ror:2", "row_ror:1"):
            if len(regs) < 3:
                self.a("s_nop 1")
            for r in regs:
                self.dpp(op, r, r, r, ctrl)

    def oct_reduce(self, op, regs):
        for ctrl in ("row_half_mirror", "quad_perm:[1,0,3,2]", "quad_perm:[2,3,0,1]"):
            if len(regs) < 3:
                self.a("s_nop 1")
            for r in regs:
                self.dpp(op, r, r, r, ctrl)

    def layernorm(self, X, T, ldsaddr):
        a = self.a
        s, t, m, r = T, T + 1, T + 2, T + 3
        D = T + 4
        a("v_add_f32 v%d, v%d, v%d" % (s, X, X + 1))
        a("v_add_f32 v%d, v%d, v%d" % (t, X + 2, X + 3))
        for i in range(4, 18, 2):
            a("v_add_f32 v%d, v%d, v%d\nv_add_f32 v%d, v%d, v%d" % (s, s, X + i, t, t, X + i + 1))
        a("v_add_f32 v%d, v%d, v%d" % (s, s, t))
        self.row_reduce("v_add_f32", [s])
        self.xrow("v_add_f32", s, t, halves=False)
        a("v_mul_f32 v%d, 0x%x, v%d" % (m, f32(1.0 / 576), s))
        for i in range(18):
            a("v_sub_f32 v%d, v%d, v%d" % (D + i, X + i, m))
        a("v_mul_f32 v%d, v%d, v%d\nv_mul_f32 v%d, v%d, v%d" % (s, D, D, t, D + 1, D + 1))
        for i in range(2, 18, 2):
            a("v_fmac_f32 v%d, v%d, v%d\nv_fmac_f32 v%d, v%d, v%d" % (s, D + i, D + i, t, D + i + 1, D + i + 1))
        a("v_add_f32 v%d, v%d, v%d" % (s, s, t))
        self.row_reduce("v_add_f32", [s])
        self.xrow("v_add_f32", s, t, halves=False)
        a("v_mul_f32 v%d, 0x%x, v%d" % (s, f32(1.0 / 576), s))
        a("v_cvt_pk_bf16_f32 v%d, v%d, v%d" % (t, m, s))
        a("s_mov_b32 s40, 0xffff0000")
        a("v_lshlrev_b32 v%d, 16, v%d\nv_and_b32 v%d, s40, v%d" % (m, t, s, t))
        a("v_add_f32 v%d, 0x%x, v%d" % (s, f32(1e-5), s))
        a("v_cvt_pk_bf16_f32 v%d, v%d, v%d" % (s, s, s))
        a("v_and_b32 v%d, s40, v%d" % (s, s))
        a("v_sqrt_f32 v%d, v%d\ns_nop 0" % (s, s))
        a("v_cvt_pk_bf16_f32 v%d, v%d, v%d" % (s, s, s))
        a("v_and_b32 v%d, s40, v%d" % (s, s))
        a("v_rcp_f32 v%d, v%d" % (r, s))
        for i in range(18):
            a("v_sub_f32 v%d, v%d, v%d" % (D + i, X + i, m))
        for j in range(9):
            a("v_cvt_pk_bf16_f32 v%d, v%d, v%d" % (D + 2 * j + 1, D + 2 * j, D + 2 * j + 1))
        for j in range(9):
            a("v_lshlrev_b32 v%d, 16, v%d\nv_and_b32 v%d, s40, v%d" % (D + 2 * j, D + 2 * j + 1, D + 2 * j + 1, D + 2 * j + 1))
        for i in range(18):
            a("v_mul_f32 v%d, v%d, v%d" % (D + i, D + i, r))
        for j in range(9):
            a("v_cvt_pk_bf16_f32 v%d, v%d, v%d" % (D + 2 * j, D + 2 * j, D + 2 * j + 1))
        for j in range(9):
            a("ds_write_b32 v%d, v%d offset:%d" % (ldsaddr, D + 2 * j, j * 128))

    def poll_begin(self, name):
        self.a("s_mov_b32 s60, 0\n%s:" % name)

    def poll_end(self, name, regs, t):
        a = self.a
        a("s_waitcnt vmcnt(0)")
        regs = list(regs)
        first = True
        while regs:
            if first:
                if len(regs) >= 3:
                    a("v_max3_u32 v%d, v%d, v%d, v%d" % (t, regs[0], regs[1], regs[2])); regs = regs[3:]
                else:
                    a("v_max_u32 v%d, v%d, v%d" % (t, regs[0], regs[-1])); regs = regs[2:]
                first = False
            elif len(regs) >= 2:
                a("v_max3_u32 v%d, v%d, v%d, v%d" % (t, t, regs[0], regs[1])); regs = regs[2:]
            else:
                a("v_max_u32 v%d, v%d, v%d" % (t, t, regs[0])); regs = []
        a("v_cmp_eq_u32 vcc, -1, v%d" % t)
        a("s_add_u32 s60, s60, 1\ns_cmp_gt_u32 s60, %d\ns_cbranch_scc1 %s_x" % (SPIN, name))
        a("s_cbranch_vccnz %s\n%s_x:" % (name, name))

    def ticket(self, KR, VR, ring):
        a = self.a
        QA, QB, SA, SBR, T0, T1, MT, M, ML, LS, ACC, AF, MK = 10, 14, 18, 22, 26, 27, 28, 29, 30, 31, 32, 36, 5
        for j in range(4):
            if ring and j > 0:
                a("s_waitcnt vmcnt(7)")
            if ring and j == self.o.get("cpos", 3):
                self.claim()
            k = KR + 4 * j
            for e in range(4):
                a("v_dot2_f32_bf16 v%d, v%d, v%d, %s" % (SA + j, k + e, QA + e, "0" if e == 0 else "v%d" % (SA + j)))
                a("v_dot2_f32_bf16 v%d, v%d, v%d, %s" % (SBR + j, k + e, QB + e, "0" if e == 0 else "v%d" % (SBR + j)))
            if ring:
                a("buffer_load_dwordx4 v[%d:%d], v1, s[36:39], s45 offen offset:%d nt" % (k, k + 3, j * 1024))
        for j in range(4):
            self.dpp("v_add_f32", SA + j, SA + j, SA + j, "row_ror:8", 0x3)
        for j in range(4):
            self.dpp("v_add_f32", SA + j, SBR + j, SBR + j, "row_ror:8", 0xc)
        self.oct_reduce("v_add_f32", [SA + j for j in range(4)])
        for rnd in range(2):
            a("v_cvt_pk_bf16_f32 v%d, v%d, v%d\nv_cvt_pk_bf16_f32 v%d, v%d, v%d" % (T0, SA, SA + 1, T1, SA + 2, SA + 3))
            a("v_lshlrev_b32 v%d, 16, v%d\nv_and_b32 v%d, s46, v%d" % (SA, T0, SA + 1, T0))
            a("v_lshlrev_b32 v%d, 16, v%d\nv_and_b32 v%d, s46, v%d" % (SA + 2, T1, SA + 3, T1))
            if rnd == 0:
                for j in range(4):
                    a("v_mul_f32 v%d, s47, v%d" % (SA + j, SA + j))
        a("v_max3_f32 v%d, v%d, v%d, v%d\nv_max_f32 v%d, v%d, v%d" % (MT, SA, SA + 1, SA + 2, MT, MT, SA + 3))
        a("v_cmp_gt_f32 vcc, v%d, v%d" % (MT, M))
        lab = a.label("L_nors")
        a("s_cbranch_vccz %s\ns_call_b64 s[50:51], L_rescale\n%s:" % (lab, lab))
        for j in range(4):
            a("v_fma_f32 v%d, v%d, s48, -v%d" % (SA + j, SA + j, ML))
        for j in range(4):
            a("v_exp_f32 v%d, v%d" % (SA + j, SA + j))
        a("s_nop 0")
        for j in range(4):
            a("v_cvt_pk_bf16_f32 v%d, v%d, v%d" % (SBR + j, SA + j, SA + j))
        a("v_add_f32 v%d, v%d, v%d\nv_add_f32 v%d, v%d, v%d" % (T0, SA, SA + 1, T1, SA + 2, SA + 3))
        extra = {0: "v_add_f32 v%d, v%d, v%d\nv_mov_b32 v%d, v%d" % (T0, T0, T1, T1, T0),
                 1: "v_permlane16_swap_b32 v%d, v%d\nv_add_f32 v%d, v%d, v%d\nv_mov_b32 v%d, v%d" % (T0, T1, T0, T0, T1, T1, T0),
                 2: "v_permlane32_swap_b32 v%d, v%d\nv_add_f32 v%d, v%d, v%d\nv_add_f32 v%d, v%d, v%d" % (T0, T1, T0, T0, T1, LS, LS, T0),
                 3: "ds_write_b64 v9, v[%d:%d]" % (ML, LS)}
        for j in range(4):
            a(extra[j])
            for e in range(4):
                a("v_and_b32 v%d, v%d, v%d" % (AF + 4 * j + e, MK + e, SBR + j))
        a("s_nop 0")
        for j in range(4):
            if ring:
                a("s_waitcnt vmcnt(7)")
            if ring and j + 4 == self.o.get("cpos", 3):
                self.claim()
            v = VR + 4 * j
            a("v_mfma_f32_16x16x32_bf16 v[%d:%d], v[%d:%d], v[%d:%d], v[%d:%d]" % (ACC, ACC + 3, AF + 4 * j, AF + 4 * j + 3, v, v + 3, ACC, ACC + 3))
            if ring:
                a("buffer_load_dwordx4 v[%d:%d], v1, s[40:43], s45 offen offset:%d nt" % (v, v + 3, j * 1024))

    def claim(self):
        a = self.a
        if self.o.get("alpha", 0):
            a("s_mov_b32 s57, s97\ns_cmp_lg_u32 s62, s97\ns_cbranch_scc1 L_nclaim\ns_atomic_add s57, s[54:55], 0x0 glc\nL_nclaim:")
        else:
            a("s_mov_b32 s57, 1\ns_cmp_eq_u32 s62, 0\ns_cbranch_scc1 L_nclaim\ns_atomic_add s57, s[54:55], 0x0 glc\nL_nclaim:")

    def streaming(self):
        a = self.a
        NB = self.nback
        NS = self.o.get("nstatic", 11)
        LIMF = self.o.get("limf", 512)
        assert NS - self.o.get('oskip', 0) >= NB + 2
        RING, BACK = 52, 84
        a("L_stream:")
        a("s_sub_u32 s44, s3, 4")
        a("v_lshlrev_b32 v1, 4, v0")
        a("s_lshr_b32 s56, s2, 3\ns_lshl_b32 s46, s56, 21")
        SP = self.o.get("spat", 1)
        SSTEP = 0x20000 if SP else 0x4000
        a("s_and_b32 s45, s2, 7\ns_mul_i32 s45, s45, %d\ns_add_u32 s45, s45, s44\ns_lshl_b32 s45, s45, 12" % (4 if SP else NS * 4))
        a("s_waitcnt lgkmcnt(0)")
        self.srd(36, 6, 0x200000, "s46")
        self.srd(40, 8, 0x200000, "s46")
        n = 0
        for tk in range(NB + 1):
            base = BACK + 32 * tk if tk < NB else RING
            for kv in range(2):
                for j in range(4):
                    if n >= self.win:
                        a("s_waitcnt vmcnt(%d)" % (self.win - 1))
                    r = base + 16 * kv + 4 * j
                    a("buffer_load_dwordx4 v[%d:%d], v1, s[%d:%d], s45 offen offset:%d nt" % (r, r + 3, 36 + 4 * kv, 39 + 4 * kv, j * 1024))
                    n += 1
                    if n == self.o.get("qgo", (NB - 1) * 8):
                        a("ds_write_b32 v2, v3 offset:%d" % (L_FLAG + 12))
                    if n == self.win:
                        if not self.o.get("ackstamp", 0):
                            self.stamp(15)
                        self.srd(28, 26, 0x10000000)
                        a("v_and_b32 v26, 1, v0\nv_lshlrev_b32 v26, 4, v26\nv_mov_b32 v27, 0xffff\nv_lshlrev_b32 v27, v26, v27")
                        a("v_bfe_u32 v26, v0, 1, 2")
                        for e in range(4):
                            a("v_cmp_eq_u32 vcc, %d, v26\ns_nop 1\nv_cndmask_b32 v%d, 0, v27, vcc" % (e, 5 + e))
                        a("v_mov_b32 v29, 0x%x\nv_mov_b32 v30, 0x%x\nv_mov_b32 v31, 0" % (f32(-1e38), f32(-1e38 * LOG2E)))
                        a("v_mov_b32 v32, 0\nv_mov_b32 v33, 0\nv_mov_b32 v34, 0\nv_mov_b32 v35, 0")
                        a("s_mov_b32 s46, 0xffff0000\ns_mov_b32 s47, 0x%x\ns_mov_b32 s48, 0x%x" % (f32(128 ** -0.5), f32(LOG2E)))
                        a("s_mov_b32 s52, 0\ns_mov_b32 s53, -1")
                        a("v_and_b32 v9, 15, v0\nv_lshlrev_b32 v9, 4, v9")
                        a("v_mov_b32 v2, 0\nv_mov_b32 v3, 1\nv_mov_b32 v4, 0")
                        a("s_lshl_b32 s56, s56, 8\ns_add_u32 s56, s56, 0x%x\ns_add_u32 s54, s26, s56\ns_addc_u32 s55, s27, 0" % WS_CTR)
                        a("s_lshr_b32 s59, s2, 3\ns_add_u32 s61, s2, s59\ns_and_b32 s61, s61, 7\ns_cmp_lt_u32 s61, 2\ns_cselect_b32 s61, %d, %d" % (NS - NB - 1 - self.o.get("oskip", 0), NS - NB - 1))
                        a("s_sub_u32 s59, 0, s59\ns_and_b32 s59, s59, 7\ns_lshl_b32 s59, s59, 2")
                        a("s_barrier")
            if tk < NB:
                a("s_add_u32 s45, s45, 0x%x" % SSTEP)
        self.stamp(8)
        if self.o.get("abl", 0) != 1:
            self.lds_wait(L_FLAG + 20, 1, 1, t=26)
        self.stamp(9)
        a("ds_read_b128 v[10:13], v9 offset:%d\nds_read_b128 v[14:17], v9 offset:%d" % (L_Q, L_Q + 256))
        a("s_mov_b32 s49, 0")
        a("s_waitcnt lgkmcnt(0)")
        a("v_and_b32 v9, 8, v0\ns_lshl_b32 s57, s44, 4\ns_add_u32 s57, s57, %d\nv_add_u32 v9, s57, v9\ns_lshl_b32 s57, s44, 10\nv_add_u32 v4, s57, v1" % L_PML)
        a("s_mov_b32 s57, 0\ns_mov_b32 s96, 0")
        a("L_sloop:")
        a("s_waitcnt vmcnt(7) lgkmcnt(0)")
        a("s_add_u32 s45, s45, 0x%x" % SSTEP)
        OS = self.o.get("oskip", 0)
        AL = self.o.get("alpha", 0)
        if AL:
            a("s_sub_u32 s98, s57, s96\ns_mov_b32 s96, s57\ns_sub_i32 s99, s98, 34\ns_max_i32 s99, s99, 0\ns_mul_i32 s99, s99, %d\ns_lshr_b32 s99, s99, 1" % AL)
            a("s_add_u32 s98, s98, s57\ns_add_u32 s98, s98, s99\ns_cmp_gt_u32 s99, 0\ns_cselect_b32 s98, s98, 0")
            a("s_cmp_gt_u32 s49, s61\ns_cselect_b32 s98, s98, 0\ns_cmp_gt_u32 s98, %d\ns_cselect_b32 s97, 0x1000, 1" % (512 - NS * 32 + 8 * OS))
        if OS:
            a("s_and_b32 s58, s57, 7\ns_add_u32 s58, s58, s59\ns_and_b32 s58, s58, 31\ns_lshr_b32 s56, s57, 3\ns_lshl_b32 s56, s56, 5\ns_add_u32 s58, s58, s56\ns_add_u32 s58, s58, %d" % ((NS - OS) * 32))
            a("s_add_u32 s56, s57, %d\ns_cmp_lt_u32 s57, %d\ns_cselect_b32 s57, s58, s56\ns_lshl_b32 s57, s57, 12" % (NS * 32 - 8 * OS, 8 * OS))
        else:
            a("s_add_u32 s57, s57, %d\ns_lshl_b32 s57, s57, 12" % (NS * 32))
        a("s_cmp_lt_u32 s49, s61\ns_cselect_b32 s45, s45, s57")
        a("s_add_u32 s56, s49, 1\ns_cmp_ge_u32 s56, s61\ns_cselect_b32 s62, 1, 0")
        a("s_cmp_lt_u32 s45, 0x200000\ns_cbranch_scc1 L_sgo")
        a("s_mov_b32 s38, 0\ns_mov_b32 s42, 0\ns_mov_b32 s62, 0")
        a("s_mov_b64 exec, 1")
        a("ds_add_u32 v2, v3 offset:%d" % (L_FLAG + 4))
        a("ds_write_b32 v2, v3 offset:%d" % (L_FLAG + 16))
        a("s_mov_b64 exec, -1")
        a("L_sgo:")
        a("s_cmp_lg_u32 s49, %d\ns_cbranch_scc1 L_sgo2" % self.o.get("rchk", 4))
        a("ds_write_b32 v2, v3 offset:%d" % (L_FLAG + 16))
        a("L_sgo2:")
        self.ticket(RING, RING + 16, True)
        a("s_cmp_lt_u32 s49, %d\ns_cbranch_scc1 L_bsel" % NB)
        a("s_add_u32 s49, s49, 1\ns_cmp_lg_u32 s38, 0\ns_cbranch_scc1 L_sloop")
        a("L_sfin:")
        a("s_nop 3")
        a("ds_write_b128 v4, v[32:35] offset:%d" % L_PACC)
        a("s_mov_b64 exec, 1")
        a("ds_add_u32 v2, v3 offset:%d" % L_FLAG)
        self.stamp(10)
        if self.diag:
            if self.o.get("abl", 0):
                a("s_cmp_lg_u32 s3, 7\ns_cbranch_scc1 L_nw7")
                a("s_waitcnt lgkmcnt(0)\ns_mov_b64 s[70:71], s[84:85]")
                self.flush_stamps([3])
                a("L_nw7:")
            a("s_cmp_lg_u32 s3, 4\ns_cbranch_scc1 L_end")
            self.flush_stamps([8, 9, 10] + ([] if self.o.get('ackstamp', 0) else [15]))
        a("s_endpgm")
        a("L_scont:")
        a("s_add_u32 s49, s49, 1\ns_cmp_lg_u32 s38, 0\ns_cbranch_scc1 L_sloop")
        a("s_cmp_ge_u32 s49, %d\ns_cbranch_scc1 L_sfin" % NB)
        a("L_bsel:")
        for k in range(1, NB):
            a("s_cmp_eq_u32 s49, %d\ns_cbranch_scc1 L_back%d" % (k, k))
        for k in range(NB):
            a("L_back%d:" % k)
            self.ticket(BACK + 32 * k, BACK + 32 * k + 16, False)
            a("s_branch L_scont")
        a("L_rescale:")
        a("v_max_f32 v28, v28, v29")
        self.xrow("v_max_f32", 28, 26)
        a("v_mov_b32 v29, v28\nv_mul_f32 v27, s48, v28\nv_sub_f32 v26, v30, v27\nv_exp_f32 v26, v26\nv_mov_b32 v30, v27")
        a("v_mul_f32 v31, v31, v26")
        a("v_readlane_b32 s63, v26, 0\nv_readlane_b32 s56, v26, 8\ns_nop 1")
        a("v_mov_b32 v26, s63\nv_mov_b32 v27, s56\nv_cndmask_b32 v26, v26, v27, s[52:53]")
        for r in range(4):
            a("v_mul_f32 v%d, v%d, v26" % (32 + r, 32 + r))
        a("s_setpc_b64 s[50:51]")

    def lds_wait(self, off, val, sleep, t=5):
        a = self.a
        lab = a.label("L_lw")
        a("v_mov_b32 v%d, 0\ns_mov_b32 s60, 0\n%s:" % (t, lab))
        a("ds_read_b32 v%d, v%d offset:%d\ns_waitcnt lgkmcnt(0)" % (t + 1, t, off))
        a("v_cmp_le_u32 vcc, %s, v%d" % (val, t + 1))
        a("s_add_u32 s60, s60, 1\ns_cmp_gt_u32 s60, %d\ns_cbranch_scc1 %s_x\ns_cbranch_vccnz %s_x" % (SPIN * 20, lab, lab))
        if sleep:
            a("s_sleep %d" % sleep)
        a("s_branch %s\n%s_x:" % (lab, lab))

    def qproj(self):
        a = self.a
        a("v_lshrrev_b32 v3, 5, v0\nv_mul_u32_u24 v3, 1152, v3\nv_and_b32 v4, 31, v0\nv_lshl_add_u32 v3, v4, 2, v3")
        a("v_mov_b32 v6, 0")
        a("s_lshr_b32 s46, s2, 3\ns_and_b32 s47, s46, 15\ns_lshr_b32 s48, s46, 4")
        a("s_bfe_u32 s49, s2, 0x10002\ns_lshl_b32 s44, s48, 1\ns_add_u32 s49, s49, s44")
        a("s_and_b32 s50, s2, 3")
        a("s_waitcnt lgkmcnt(0)")
        self.srd(36, 4, 2304)
        self.srd(28, 26, 0x10000000)
        for j in range(9):
            a("buffer_load_dword v%d, v3, s[36:39], 0 offen offset:%d" % (16 + 2 * j + 1, j * 128))
        a("buffer_load_dword v7, v6, s[28:31], 0 offen offset:%d sc1" % WS_EPOCH)
        self.srd(32, 24, 256)
        a("s_and_b32 s44, s2, 7\ns_cmp_eq_u32 s44, 0\ns_cselect_b64 exec, 1, 0")
        a("s_lshl_b32 s44, s46, 8\ns_add_u32 s44, s44, 0x%x" % WS_CTR)
        a("buffer_store_dword v6, v6, s[28:31], s44 offen sc1")
        a("s_mov_b64 exec, -1")
        a("s_mov_b32 s40, 0xffff0000")
        a("s_barrier")
        a("s_waitcnt vmcnt(0)")
        for j in range(9):
            a("v_lshlrev_b32 v%d, 16, v%d\nv_and_b32 v%d, s40, v%d" % (16 + 2 * j, 16 + 2 * j + 1, 16 + 2 * j + 1, 16 + 2 * j + 1))
        a("v_add_u32 v7, 0x%x, v7" % EPOCH_INC)
        a("v_add_u32 v8, %d, v3" % L_XN)
        self.layernorm(16, 40, 8)
        a("v_and_b32 v9, 1, v0\nv_mul_u32_u24 v9, 1152, v9\nv_lshl_add_u32 v9, v2, 3, v9\ns_mul_i32 s44, s50, 288\nv_add_u32 v9, s44, v9")
        a("v_lshrrev_b32 v10, 2, v0\nv_lshlrev_b32 v10, 7, v10\nv_and_b32 v11, 3, v0\nv_lshl_add_u32 v10, v11, 3, v10")
        a("s_waitcnt lgkmcnt(0)")
        FB, FA, D = 64, 84, 160
        for ks in range(9):
            a("ds_read_b64 v[%d:%d], v9 offset:%d" % (FB + 2 * ks, FB + 2 * ks + 1, L_XN + ks * 32))
        self.lds_wait(L_FLAG + 8, 3, 0, t=12)
        for ks in range(9):
            for t in range(4):
                r = FA + 8 * ks + 2 * t
                a("ds_read_b64_tr_b16 v[%d:%d], v10 offset:%d" % (r, r + 1, L_WQ + ks * 2048 + t * 32))
            if ks % 3 == 2:
                a("s_waitcnt lgkmcnt(0)")
                for k2 in range(ks - 2, ks + 1):
                    for t in range(4):
                        r = FA + 8 * k2 + 2 * t
                        a("v_mfma_f32_16x16x16_bf16 v[%d:%d], v[%d:%d], v[%d:%d], %s" % (D + 4 * t, D + 4 * t + 3, r, r + 1, FB + 2 * k2, FB + 2 * k2 + 1, "0" if k2 == 0 else "v[%d:%d]" % (D + 4 * t, D + 4 * t + 3)))
        a("s_lshl_b32 s45, s47, 14\ns_lshl_b32 s44, s50, 11\ns_add_u32 s45, s45, s44\ns_lshl_b32 s44, s49, 9\ns_add_u32 s45, s45, s44\ns_add_u32 s45, s45, 0x%x" % WS_MQ)
        a("v_and_b32 v10, 1, v0\nv_lshlrev_b32 v10, 13, v10\nv_lshl_add_u32 v10, v2, 5, v10\nv_bfe_u32 v11, v0, 1, 1\nv_lshl_add_u32 v10, v11, 4, v10")
        a("v_cmp_eq_u32 vcc, 1, v11")
        a("s_mov_b32 s52, 0x000f000f\ns_mov_b32 s53, 0x000f000f")
        for t in range(4):
            a("v_mov_b32 v%d, v7\nv_mov_b32 v%d, v7" % (17 + 4 * t, 19 + 4 * t))
        for t in range(4):
            a("v_cndmask_b32 v%d, v%d, v%d, vcc\nv_cndmask_b32 v%d, v%d, v%d, vcc" % (16 + 4 * t, D + 4 * t, D + 4 * t + 2, 18 + 4 * t, D + 4 * t + 1, D + 4 * t + 3))
        a("s_mov_b64 exec, s[52:53]")
        for t in range(4):
            a("buffer_store_dwordx4 v[%d:%d], v10, s[28:31], s45 offen offset:%d sc1" % (16 + 4 * t, 19 + 4 * t, t * 128))
        a("s_mov_b64 exec, -1")
        self.stamp(1)
        a("s_lshl_b32 s44, s47, 1\ns_add_u32 s44, s44, s48\ns_lshl_b32 s44, s44, 13\ns_add_u32 s44, s44, 0x%x\ns_add_u32 s45, s44, 4096" % WS_MQ)
        a("v_lshlrev_b32 v10, 4, v0\nv_lshlrev_b32 v11, 2, v0")
        G = 64
        self.lds_wait(L_FLAG + 12, 1, 2, t=12)
        a("s_mov_b32 s60, 0\nL_qpoll:")
        for i in range(8):
            a("buffer_load_dwordx4 v[%d:%d], v10, s[28:31], s%d offen offset:%d sc1" % (G + 4 * i, G + 4 * i + 3, 44 + i // 4, (i % 4) * 1024))
        a("s_waitcnt vmcnt(0)")
        for i in range(8):
            a("v_xor_b32 v%d, v%d, v7\nv_xor_b32 v%d, v%d, v7" % (G + 4 * i + 1, G + 4 * i + 1, G + 4 * i + 3, G + 4 * i + 3))
        a("v_or_b32 v12, v%d, v%d" % (G + 1, G + 3))
        for i in range(1, 8):
            a("v_or3_b32 v12, v12, v%d, v%d" % (G + 4 * i + 1, G + 4 * i + 3))
        a("v_cmp_ne_u32 vcc, 0, v12")
        a("s_add_u32 s60, s60, 1\ns_cmp_gt_u32 s60, %d\ns_cbranch_scc1 L_qpoll_x\ns_cbranch_vccnz L_qpoll\nL_qpoll_x:" % SPIN)
        for hf in range(2):
            for c in (0, 2):
                b0 = G + 4 * hf + c
                a("v_add_f32 v%d, v%d, v%d\nv_add_f32 v%d, v%d, v%d" % (b0, b0, b0 + 8, b0 + 16, b0 + 16, b0 + 24))
        for hf in range(2):
            for c in (0, 2):
                b0 = G + 4 * hf + c
                a("v_add_f32 v%d, v%d, v%d" % (b0, b0, b0 + 16))
        a("v_cvt_pk_bf16_f32 v12, v%d, v%d\nv_cvt_pk_bf16_f32 v13, v%d, v%d" % (G, G + 2, G + 4, G + 6))
        a("ds_write_b32 v11, v12 offset:%d\nds_write_b32 v11, v13 offset:%d" % (L_Q, L_Q + 256))
        a("v_mov_b32 v12, 1\nds_write_b32 v6, v12 offset:%d" % (L_FLAG + 20))
        a("v_readfirstlane_b32 s61, v7")
        a("s_waitcnt lgkmcnt(0)")
        self.stamp(2)

    def finish_attn(self):
        a = self.a
        a("L_finish:")
        self.stamp(14)
        self.lds_wait(L_FLAG + 16, 1, 8, t=4)
        a("v_mov_b32 v4, 0\ns_mov_b32 s60, 0\nL_rpoll:")
        a("buffer_load_dword v5, v4, s[32:35], 0 offen sc1\ns_waitcnt vmcnt(0)")
        a("v_cmp_gt_u32 vcc, 192, v5")
        a("s_add_u32 s60, s60, 1\ns_cmp_gt_u32 s60, %d\ns_cbranch_scc1 L_rpoll_x\ns_cbranch_vccz L_rpoll_x\ns_sleep 64\ns_branch L_rpoll\nL_rpoll_x:" % SPIN)
        a("v_mov_b32 v5, 1\ns_mov_b64 exec, 1\nds_add_u32 v4, v5 offset:%d\ns_mov_b64 exec, -1" % L_FLAG)
        if self.o.get("cpf", 1):
            a("s_getpc_b64 s[44:45]\nL_cpf:")
            a("v_lshlrev_b32 v6, 7, v0\nv_min_u32 v6, L_end-L_cpf, v6")
            a("global_load_dword v255, v6, s[44:45]")
            if self.diag:
                a("v_lshlrev_b32 v6, 7, v0\nv_add_u32 v6, 8192, v6\nv_min_u32 v6, L_end-L_cpf, v6")
                a("global_load_dword v255, v6, s[44:45]")
        a("s_lshr_b32 s44, s2, 3\ns_and_b32 s45, s44, 15\ns_lshr_b32 s44, s44, 4\ns_lshl_b32 s44, s44, 3\ns_and_b32 s46, s2, 7\ns_add_u32 s44, s44, s46")
        a("v_mul_u32_u24 v8, 6144, v2\nv_lshl_add_u32 v8, v1, 4, v8")
        a("s_mul_i32 s46, s44, 384\ns_mul_i32 s45, s45, 24576\ns_add_u32 s46, s46, s45\ns_add_u32 s46, s46, 0x%x" % WS_M1)
        a("v_and_b32 v10, 32, v0\nv_and_b32 v6, 1, v0\nv_lshl_add_u32 v10, v6, 4, v10\nv_bfe_u32 v6, v0, 1, 4\nv_add_u32 v10, v10, v6\nv_lshlrev_b32 v10, 4, v10")
        a("v_lshrrev_b32 v11, 5, v0\nv_lshlrev_b32 v11, 3, v11")
        a("s_mov_b32 s48, 0x00ff00ff\ns_mov_b32 s49, 0x00ff00ff")
        self.stamp(1)
        self.lds_wait(L_FLAG, 6, self.o.get('fsl', 0), t=4)
        self.stamp(3)
        for wv in range(4):
            a("ds_read_b64 v[%d:%d], v11 offset:%d" % (12 + 2 * wv, 13 + 2 * wv, L_PML + 16 * wv))
        for wv in range(4):
            a("ds_read_b128 v[%d:%d], v10 offset:%d" % (20 + 4 * wv, 23 + 4 * wv, L_PACC + 1024 * wv))
        a("s_waitcnt lgkmcnt(0)")
        a("v_max3_f32 v36, v12, v14, v16\nv_max_f32 v36, v36, v18")
        for wv in range(4):
            a("v_sub_f32 v%d, v%d, v36" % (12 + 2 * wv, 12 + 2 * wv))
        for wv in range(4):
            a("v_exp_f32 v%d, v%d" % (12 + 2 * wv, 12 + 2 * wv))
        a("s_nop 0")
        for r in range(4):
            a("v_mul_f32 v%d, v12, v%d" % (40 + r, 20 + r))
        for wv in range(1, 4):
            for r in range(4):
                a("v_fmac_f32 v%d, v%d, v%d" % (40 + r, 12 + 2 * wv, 20 + 4 * wv + r))
        a("buffer_store_dwordx4 v[40:43], v8, s[28:31], s46 offen sc1")
        a("v_mul_f32 v37, v12, v13")
        for wv in range(1, 4):
            a("v_fmac_f32 v37, v%d, v%d" % (12 + 2 * wv, 13 + 2 * wv))
        a("v_mov_b32 v38, v36\nv_mov_b32 v39, v37")
        a("s_mov_b64 exec, s[48:49]")
        a("buffer_store_dwordx4 v[36:39], v8, s[28:31], s46 offen offset:256 sc1")
        self.stamp(4)
        if self.o.get("trigack", 0):
            a("s_waitcnt vmcnt(0)")
        a("s_mov_b64 exec, 1\nv_mov_b32 v5, 1\nds_add_u32 v4, v5 offset:%d" % L_FLAG)
        a("s_mov_b64 exec, -1")
        if self.o.get("ackstamp", 0):
            a("s_waitcnt vmcnt(0)")
            self.stamp(15)
        a("s_setpc_b64 s[50:51]")

    def service(self):
        a = self.a
        a("s_setprio 2")
        if self.o.get("abl", 0) == 1:
            a("s_waitcnt lgkmcnt(0)")
            self.srd(28, 26, 0x10000000)
            a("s_barrier")
            a("s_cmp_lg_u32 s3, 0\ns_cbranch_scc1 L_end")
            self.flush_stamps([0])
            a("s_endpgm")
        a("v_and_b32 v1, 15, v0\nv_lshrrev_b32 v2, 4, v0")
        a("s_cmp_lg_u32 s3, 0\ns_cbranch_scc1 L_svc_other")
        self.qproj()
        a("s_branch L_svc_a")
        a("L_svc_other:")
        a("v_lshrrev_b32 v4, 3, v0\nv_lshlrev_b32 v4, 13, v4\nv_and_b32 v5, 7, v0\nv_lshl_add_u32 v4, v5, 4, v4")
        a("s_bfe_u32 s47, s2, 0x40003\ns_lshr_b32 s48, s2, 7\ns_bfe_u32 s49, s2, 0x10002\ns_lshl_b32 s44, s48, 1\ns_add_u32 s49, s49, s44\ns_and_b32 s50, s2, 3")
        a("s_lshl_b32 s45, s47, 2\ns_add_u32 s45, s45, s49\ns_lshl_b32 s45, s45, 7\ns_mul_i32 s44, s50, 3\ns_add_u32 s44, s44, s3\ns_sub_u32 s44, s44, 1\ns_mul_i32 s44, s44, %d\ns_add_u32 s45, s45, s44" % (48 * 8192))
        a("s_mul_i32 s46, s3, 6144\ns_add_u32 s46, s46, %d" % (L_WQ - 6144))
        a("s_waitcnt lgkmcnt(0)")
        self.srd(40, 10, 576 * 8192)
        for i in range(6):
            a("s_mov_b32 m0, s46\ns_add_u32 s46, s46, 1024")
            a("buffer_load_dwordx4 v4, s[40:43], s45 offen nt lds")
            a("s_add_u32 s45, s45, %d" % (8 * 8192))
        self.srd(28, 26, 0x10000000)
        self.srd(32, 24, 256)
        a("s_mov_b32 s61, 0")
        a("v_mov_b32 v6, 0\nv_mov_b32 v7, 1")
        a("s_barrier")
        a("s_waitcnt vmcnt(0)")
        a("s_mov_b64 exec, 1\nds_add_u32 v6, v7 offset:%d\ns_mov_b64 exec, -1" % (L_FLAG + 8))
        self.lds_wait(L_FLAG + self.o.get("bgflag", 8), 1, 4, t=12)
        a("L_svc_a:")
        if self.o.get("abl", 0) == 2:
            a("s_cmp_lg_u32 s3, 0\ns_cbranch_scc1 L_end")
            self.flush_stamps([0, 1, 2, 12, 13, 14] + ([15] if self.o.get('ackstamp', 0) else []))
            a("s_endpgm")
        a("s_lshr_b32 s45, s2, 3\ns_add_u32 s58, s2, s45\ns_and_b32 s46, s58, 7\ns_lshl_b32 s58, s46, 5\ns_add_u32 s58, s58, s45")
        if self.o.get("xmap", 1):
            a("s_and_b32 s44, s2, 7\ns_lshl_b32 s47, s46, 2\ns_lshr_b32 s48, s45, 3\ns_add_u32 s47, s47, s48\ns_sub_u32 s47, s47, 8")
            a("s_mul_i32 s48, s44, 18\ns_mul_i32 s49, s44, 6\ns_add_u32 s49, s49, 126\ns_cmp_lt_u32 s47, 18\ns_cselect_b32 s48, s48, s49\ns_add_u32 s48, s48, s47\ns_add_u32 s48, s48, %d" % A0)
            a("s_cmp_lt_u32 s46, 2\ns_cselect_b32 s58, s58, s48")
        a("s_cmp_lt_u32 s58, %d\ns_cbranch_scc1 L_ob" % A0)
        a("s_cmp_lg_u32 s3, 1\ns_cbranch_scc1 L_svc_r")
        a("v_mov_b32 v10, 0")
        a("v_mov_b32 v4, -1\nv_mov_b32 v5, -1\nv_mov_b32 v6, -1\nv_mov_b32 v7, -1\nv_lshlrev_b32 v8, 4, v0")
        a("s_mul_i32 s44, s58, %d\ns_add_u32 s44, s44, 0x%x" % (RESET_PER_WG, SB - A0 * RESET_PER_WG + (1 << 32)))
        for i in range(RESET_PER_WG // 1024):
            if i == 4:
                a("s_add_u32 s44, s44, 4096")
            if not self.o.get("noreset", 0):
                a("buffer_store_dwordx4 v[4:7], v8, s[28:31], s44 offen offset:%d sc1" % ((i % 4) * 1024))
        a("v_mov_b32 v9, 1")
        a("s_waitcnt vmcnt(0) lgkmcnt(0)")
        a("s_mov_b64 exec, 1")
        if self.o.get("padmin", 0):
            a("s_and_b32 s92, s90, 0x7fffffff\ns_not_b32 s92, s92\nv_mov_b32 v11, s92\nbuffer_atomic_umax v11, v10, s[32:35], 0 offen offset:16")
            a("s_and_b32 s92, s90, 0x7fffffff\nv_mov_b32 v12, s92\nbuffer_atomic_umax v12, v10, s[32:35], 0 offen offset:20\ns_waitcnt vmcnt(0)")
        a("buffer_atomic_add v9, v10, s[32:35], 0 offen")
        a("s_mov_b64 exec, -1")
        a("L_svc_r:")
        a("s_cmp_lt_u32 s58, %d\ns_cbranch_scc1 L_a" % BO0)
        a("s_branch L_ob")
        self.box_reset()
        self.w64()
        self.finish_attn()
        self.mm_store()
        self.role_ob()
        self.role_a()

    def box_reset(self):
        a = self.a
        a("L_box:")
        a("v_mov_b32 v12, -1\nv_mov_b32 v13, -1\nv_mov_b32 v14, -1\nv_mov_b32 v15, -1\nv_lshlrev_b32 v8, 4, v0\nv_mov_b32 v9, 0\nv_mov_b32 v7, 1")
        a("s_cmp_eq_u32 s53, 0\ns_cbranch_scc1 L_box_x")
        a("s_cmp_eq_u32 s49, 0\ns_cbranch_scc1 L_box_l")
        a("s_mov_b64 exec, 1\nds_add_u32 v9, v7 offset:%d\ns_mov_b64 exec, -1\nv_mov_b32 v7, 0" % L_FLAG)
        self.lds_wait(L_FLAG + self.o.get("boxflag", 4), self.o.get("boxcnt", 4), 2, t=10)
        a("L_box_l:")
        if not self.o.get("nobox", 0):
            a("buffer_store_dwordx4 v[12:15], v8, s[28:31], s52 offen sc1")
        if self.o.get("halfmsg", 0):
            a("s_cmp_gt_u32 s52, 0x1fffff\ns_cselect_b32 s46, 1024, 0\ns_cselect_b32 s47, 1, 0\ns_add_u32 s52, s52, s46\ns_sub_u32 s53, s53, s47")
        a("s_add_u32 s52, s52, 1024\ns_sub_u32 s53, s53, 1\ns_waitcnt vmcnt(%d)\ns_cmp_lg_u32 s53, 0\ns_cbranch_scc1 L_box_l" % self.o.get("box_win", 20))
        a("L_box_x:")
        a("s_waitcnt vmcnt(0)")
        a("s_mov_b64 exec, 1\nds_add_u32 v9, v7 offset:%d\ns_mov_b64 exec, -1" % L_FLAG)
        a("s_setpc_b64 s[50:51]")

    def w64_setup(self):
        a = self.a
        a("s_lshl_b32 s46, s3, 3\nv_lshrrev_b32 v5, 3, v0\nv_add_u32 v5, s46, v5\nv_mul_u32_u24 v5, 7282, v5\nv_lshlrev_b32 v8, 4, v0")
        for i in range(18):
            if i:
                a("v_add_u32 v5, %d, v5" % (32 * 7282))
            a("v_bfe_u32 v4, v5, 17, 2\nv_lshlrev_b32 v4, 5, v4\nv_xor_b32 v%d, v4, v8" % (204 + i))
        a("v_lshrrev_b32 v10, 2, v0\nv_mul_u32_u24 v10, 1152, v10\nv_and_b32 v11, 3, v0\nv_lshl_add_u32 v10, v11, 3, v10\nv_bfe_u32 v11, v0, 3, 2\nv_add_u32 v10, %d, v10" % L_WB)
        a("v_xor_b32 v226, s3, v11\nv_lshl_add_u32 v226, v226, 5, v10")
        a("s_lshl_b32 s46, s3, 8\nv_add_u32 v10, s46, v10")
        for j in range(4):
            a("v_xor_b32 v%d, %d, v11\nv_lshl_add_u32 v%d, v%d, 5, v10" % (222 + j, j, 222 + j, 222 + j))

    def w64(self):
        a = self.a
        WF = 64
        BI = self.o.get("bh", 0) // 4
        def lds(lo, hi):
            a("s_lshl_b32 s47, s3, 10\ns_add_u32 s46, s47, %d\ns_add_u32 s47, s47, s45" % (L_WB + lo * 4096))
            if lo:
                a("s_add_u32 s47, s47, %d" % (lo * 4096))
            for i in range(lo, hi):
                a("s_mov_b32 m0, s46\ns_add_u32 s46, s46, 4096")
                a("buffer_load_dwordx4 v%d, s[36:39], s47 offen nt lds" % (204 + i))
                lab = a.label("L_wn")
                a("s_add_u32 s47, s47, 4096\ns_cbranch_vccz %s\ns_waitcnt vmcnt(%d)\n%s:" % (lab, self.o.get("op_win", 5) - 1, lab))
        a("L_w64:\nL_wi:")
        lds(0, 18)
        a("s_setpc_b64 s[50:51]")
        a("L_wf:")
        if self.o.get("ws", 0): self.stamp(14)
        a("v_mov_b32 v8, 0\nv_mov_b32 v9, 1\ns_waitcnt vmcnt(0)")
        if self.o.get("ws", 0): self.stamp(1)
        a("s_mov_b64 exec, 1\nds_add_u32 v8, v9 offset:%d\ns_mov_b64 exec, -1" % (L_FLAG + 24))
        self.lds_wait(L_FLAG + 24, "s48", 0, t=10)
        if self.o.get("ws", 0): self.stamp(2)
        for tt in range(9):
            for ks in range(2):
                for hh in range(2):
                    r = WF + tt * 8 + ks * 4 + hh * 2
                    areg, off = (222 + tt % 4, (tt // 4) * 128) if tt < 8 else (226, 1024)
                    a("ds_read_b64_tr_b16 v[%d:%d], v%d offset:%d" % (r, r + 1, areg, (32 * ks + 16 * hh) * 1152 + off))
            if tt % 2 == 1:
                a("s_waitcnt lgkmcnt(4)")
        a("s_waitcnt lgkmcnt(0)")
        a("s_setpc_b64 s[50:51]")

    def zero_area(self):
        self.a("v_mov_b32 v8, 0\nv_mov_b32 v9, 0\nv_mov_b32 v10, 0\nv_mov_b32 v11, 0\nv_lshlrev_b32 v12, 3, v0\nds_write_b64 v12, v[8:9] offset:%d" % L_ZERO)

    def mm_store(self):
        a = self.a
        WF, BF = 64, 140
        a("L_mm:")
        a("s_barrier")
        order = [(t, ks) for t in range(8) for ks in range(2)]
        def rd(i):
            t, ks = order[i]
            a("ds_read_b128 v[%d:%d], v%d offset:%d" % (BF + 4 * i, BF + 4 * i + 3, 56 + t, ks * 64))
        for i in range(12):
            rd(i)
        for i, (t, ks) in enumerate(order):
            a("s_waitcnt lgkmcnt(%d)" % (min(16, i + 12) - i - 1))
            w = WF + 8 * t + 4 * ks
            a("v_mfma_f32_16x16x32_bf16 v[12:15], v[%d:%d], v[%d:%d], %s" % (w, w + 3, BF + 4 * i, BF + 4 * i + 3, "0" if i == 0 else "v[12:15]"))
            if i < 2:
                w = WF + 64 + 4 * ks
                a("v_mfma_f32_16x16x32_bf16 v[16:19], v[%d:%d], v[%d:%d], %s" % (w, w + 3, BF + 4 * i, BF + 4 * i + 3, "0" if i == 0 else "v[16:19]"))
            if i + 12 < 16:
                rd(i + 12)
        a("s_mov_b64 exec, s[56:57]")
        a("buffer_store_dwordx4 v[16:19], v49, s[28:31], s55 offen sc1")
        a("s_mov_b64 exec, -1")
        a("s_nop 4")
        a("buffer_store_dwordx4 v[12:15], v52, s[28:31], s54 offen sc1")
        a("s_setpc_b64 s[50:51]")

    def role_ob(self):
        a = self.a
        a("L_ob:")
        a("s_sub_u32 s59, s58, %d\ns_cmp_lt_u32 s58, %d\ns_cselect_b32 s59, s58, s59" % (BO0 - NOB, A0))
        self.w64_setup()
        a("s_mul_i32 s45, s59, 73728\ns_mov_b32 s48, 4")
        a("s_cmp_ge_u32 s58, %d\ns_cbranch_scc1 L_ob_s" % A0)
        self.srd(36, 12, 4096 * 1152)
        a("s_mov_b64 vcc, 1\ns_call_b64 s[50:51], L_wi\ns_call_b64 s[50:51], L_wf")
        a("s_mov_b64 exec, 1\nds_add_u32 v8, v9 offset:%d\ns_mov_b64 exec, -1" % (L_FLAG + 28))
        self.lds_wait(L_FLAG + 28, 4, 1, t=10)
        a("L_ob_s:")
        self.srd(36, 20, 4608 * 1152)
        self.zero_area()
        a("v_and_b32 v12, 1, v0\nv_lshlrev_b32 v13, 7, v12\nv_lshl_add_u32 v13, v2, 4, v13\nv_add_u32 v13, %d, v13" % L_OPD)
        a("v_lshrrev_b32 v14, 1, v1\nv_mov_b32 v15, %d" % (L_ZERO + 64))
        for t in range(8):
            a("v_cmp_eq_u32 vcc, %d, v14\ns_nop 1\nv_cndmask_b32 v%d, v15, v13, vcc" % (t, 56 + t))
        a("v_bfe_u32 v52, v0, 3, 1\nv_lshl_add_u32 v52, v52, 2, v2\nv_mul_u32_u24 v52, %d, v52\nv_and_b32 v14, 7, v0\nv_lshl_add_u32 v52, v14, 4, v52" % TSTR)
        a("v_lshlrev_b32 v49, 5, v2\nv_lshl_add_u32 v49, v12, 4, v49")
        a("v_mul_u32_u24 v51, 384, v2\nv_lshl_add_u32 v50, v1, 4, v51")
        a("v_lshrrev_b32 v4, 3, v1\nv_lshlrev_b32 v54, 6, v4\nv_and_b32 v4, 3, v0\nv_lshl_add_u32 v54, v4, 4, v54\nv_bfe_u32 v5, v0, 2, 1\nv_lshl_add_u32 v54, v5, 3, v54\nv_lshl_add_u32 v54, v2, 1, v54")
        a("s_sub_u32 s63, s3, 1\ns_lshl_b32 s55, s63, 7\nv_add_u32 v54, s55, v54")
        a("v_lshrrev_b32 v6, %d, v0\nv_lshlrev_b32 v53, 10, v6" % (6 if self.o.get("halfmsg", 0) else 5))
        a("v_and_b32 v6, 1, v2\nv_lshl_add_u32 v53, v6, 11, v53\nv_lshl_add_u32 v53, v1, 4, v53\ns_lshl_b32 s55, s3, 8\nv_add_u32 v53, s55, v53")
        a("v_bfe_u32 v7, v0, 3, 1\nv_lshlrev_b32 v55, 6, v7\nv_lshl_add_u32 v55, v5, 3, v55\nv_bfe_u32 v7, v0, 1, 1\nv_lshl_add_u32 v55, v7, 2, v55\nv_lshl_add_u32 v55, v6, 1, v55\nv_lshl_add_u32 v55, v12, 7, v55")
        a("s_lshl_b32 s55, s3, 4\nv_add_u32 v55, s55, v55")
        a("s_lshl_b32 s55, s59, 7\ns_add_u32 s55, s55, 0x%x\ns_mul_i32 s54, s3, %d\ns_add_u32 s54, s54, s55\ns_mul_i32 s46, s3, %d\ns_add_u32 s55, s55, s46\ns_add_u32 s55, s55, %d" % (WS_M2, 8 * TSTR, TSTR, 32 * TSTR))
        a("s_mov_b32 s56, 0x00030003\ns_mov_b32 s57, 0x00030003")
        a("s_waitcnt lgkmcnt(0)")
        a("s_cmp_lg_u32 s3, 0\ns_cbranch_scc1 L_ob_1")
        a("s_call_b64 s[50:51], L_finish")
        a("s_branch L_ob_p")
        a("L_ob_1:")
        a("s_cmp_eq_u32 s3, 3\ns_cbranch_scc1 L_ob_x")
        a("s_cmp_ge_u32 s58, %d\ns_cbranch_scc1 L_ob_g" % NOB)
        a("s_mov_b64 vcc, 1\ns_call_b64 s[50:51], L_wi")
        a("s_branch L_ob_g")
        a("L_ob_x:")
        a("s_mul_i32 s52, s59, 18432\ns_add_u32 s52, s52, 0x%x\ns_sub_u32 s53, s58, %d\ns_cmp_lt_u32 s53, %d\ns_cselect_b32 s53, 0, 18\ns_cmp_lt_u32 s58, %d\ns_cselect_b32 s49, 1, 0" % (WS_M3, NOB, A0 - NOB, A0))
        a("s_call_b64 s[50:51], L_box")
        a("L_ob_g:")
        self.lds_wait(L_FLAG, 7, 1)
        a("L_ob_p:")
        a("s_mul_i32 s45, s59, 73728\ns_mov_b32 s48, 4")
        a("s_cmp_ge_u32 s58, %d\ns_cbranch_scc1 L_ob_li" % A0)
        a("s_mov_b32 s48, 8")
        a("s_cmp_ge_u32 s63, 2\ns_cbranch_scc1 L_ob_2")
        a("s_mul_i32 s52, s59, 6144\ns_mul_i32 s53, s63, 3072\ns_add_u32 s52, s52, s53\ns_add_u32 s52, s52, 0x%x" % WS_M1)
        self.poll_begin("L_op_poll")
        a("buffer_load_dwordx2 v[12:13], v51, s[28:31], s52 offen offset:256 sc1")
        a("buffer_load_dwordx2 v[14:15], v51, s[28:31], s52 offen offset:%d sc1" % (256 + 1536))
        a("buffer_load_dwordx4 v[16:19], v50, s[28:31], s52 offen sc1")
        a("buffer_load_dwordx4 v[20:23], v50, s[28:31], s52 offen offset:1536 sc1")
        self.poll_end("L_op_poll", range(12, 24), 24)
        self.stamp(5)
        a("v_max_f32 v24, v12, v14")
        a("v_mov_b32 v25, v24\ns_nop 1\nv_permlane16_swap_b32 v24, v25\nv_max_f32 v24, v24, v25")
        a("v_mov_b32 v25, v24\ns_nop 1\nv_permlane32_swap_b32 v24, v25\nv_max_f32 v24, v24, v25")
        a("v_sub_f32 v12, v12, v24\nv_sub_f32 v14, v14, v24\nv_exp_f32 v12, v12\nv_exp_f32 v14, v14\ns_nop 0")
        a("v_mul_f32 v13, v12, v13\nv_fmac_f32 v13, v14, v15")
        for r in range(4):
            a("v_mul_f32 v%d, v12, v%d" % (16 + r, 16 + r))
        a("v_mov_b32 v25, v13")
        for r in range(4):
            a("v_fmac_f32 v%d, v14, v%d" % (16 + r, 20 + r))
        a("v_permlane16_swap_b32 v13, v25\nv_add_f32 v13, v13, v25")
        a("v_permlane32_swap_b32 v16, v18\nv_mov_b32 v25, v13\nv_permlane32_swap_b32 v17, v19")
        a("v_add_f32 v16, v16, v18\nv_add_f32 v17, v17, v19")
        a("v_permlane32_swap_b32 v13, v25\nv_add_f32 v13, v13, v25")
        a("v_permlane16_swap_b32 v16, v17\nv_rcp_f32 v13, v13\nv_add_f32 v16, v16, v17")
        a("v_mul_f32 v16, v16, v13\nv_cvt_pk_bf16_f32 v16, v16, v16")
        a("ds_write_b16 v54, v16 offset:%d" % L_OPD)
        a("s_waitcnt lgkmcnt(0)")
        a("L_ob_2:")
        a("s_call_b64 s[50:51], L_mm")
        self.stamp(6)
        a("s_cmp_ge_u32 s58, %d\ns_cbranch_scc1 L_ob_end" % NOB)
        a("s_cmp_lt_u32 s63, 2\ns_cbranch_scc1 L_ob_3")
        a("L_ob_li:")
        a("s_mov_b64 vcc, 0\ns_call_b64 s[50:51], L_wi")
        a("L_ob_3:")
        a("s_call_b64 s[50:51], L_wf")
        a("L_ob_b:")
        self.stamp(12)
        a("s_add_u32 s54, s54, 0x%x\ns_add_u32 s55, s55, 0x%x" % (WS_M4 - WS_M2, WS_M4 - WS_M2))
        a("s_mul_i32 s40, s59, 18432\ns_add_u32 s40, s40, 0x%x" % WS_M3)
        for i in range(1, 5):
            a("s_add_u32 s%d, s40, %d" % (40 + i, 4096 * i))
        a("s_mov_b32 s46, 0xffff\ns_mov_b32 s47, 0xffff")
        a("s_mov_b32 s48, 0x%x\ns_mov_b32 s49, 0x%x" % (f32(0.044715), f32(-2.0 * math.sqrt(2.0 / math.pi) * LOG2E)))
        a("s_mov_b32 s52, 0xaaaaaaaa\ns_mov_b32 s53, 0xaaaaaaaa\ns_mov_b32 s62, 0x33333333\ns_mov_b32 s63, 0x33333333")
        a("s_mov_b32 s45, 0x%x" % f32(1.0 / 576))
        G = 20
        a("v_mov_b32 v36, 0\nv_mov_b32 v37, 0\nv_mov_b32 v38, 0\nv_mov_b32 v39, 0")
        self.poll_begin("L_b_poll")
        for i in range(5):
            if i == 4:
                a("s_mov_b64 exec, s[46:47]")
            a("buffer_load_dwordx4 v[%d:%d], v53, s[28:31], s%d offen sc1" % (G + 4 * i, G + 4 * i + 3, 40 + i))
        a("s_mov_b64 exec, -1")
        for i in range(1, 5):
            a("s_waitcnt vmcnt(%d)" % (4 - i))
            a("v_pk_add_f32 v[%d:%d], v[%d:%d], v[%d:%d]" % (G, G + 1, G, G + 1, G + 4 * i, G + 4 * i + 1))
            a("v_pk_add_f32 v[%d:%d], v[%d:%d], v[%d:%d]" % (G + 2, G + 3, G + 2, G + 3, G + 4 * i + 2, G + 4 * i + 3))
        a("s_add_u32 s60, s60, 1\ns_cmp_gt_u32 s60, %d" % SPIN)
        a("v_permlane16_swap_b32 v20, v21\nv_permlane16_swap_b32 v22, v23")
        a("v_add_f32 v20, v20, v21\nv_add_f32 v22, v22, v23")
        a("v_cmp_u_f32 vcc, v20, v22")
        a("v_mul_f32 v12, s45, v20\nv_mul_f32 v13, s45, v22")
        a("s_cbranch_scc1 L_b_poll_x\ns_cbranch_vccnz L_b_poll\nL_b_poll_x:")
        self.stamp(13)
        a("v_fma_f32 v13, -v12, v12, v13\ns_mov_b64 vcc, s[52:53]")
        a("v_mov_b32_dpp v14, v12 row_newbcast:7 row_mask:0xf bank_mask:0xf")
        a("v_max_f32 v13, 0, v13\nv_add_f32 v13, 0x%x, v13" % f32(1e-5))
        a("v_cndmask_b32_dpp v14, v12, v14, vcc row_newbcast:3 row_mask:0xf bank_mask:0xf")
        a("v_rsq_f32 v13, v13\nv_sub_f32 v14, 0, v14")
        a("v_fmac_f32_dpp v22, v22, v14 quad_perm:[2,2,2,2] row_mask:0xf bank_mask:0xf")
        a("v_fmac_f32_dpp v20, v20, v14 quad_perm:[2,2,2,2] row_mask:0xf bank_mask:0xf")
        a("v_mov_b32_dpp v15, v13 row_newbcast:7 row_mask:0xf bank_mask:0xf")
        a("v_cndmask_b32_dpp v15, v13, v15, vcc row_newbcast:3 row_mask:0xf bank_mask:0xf")
        a("s_mov_b64 vcc, s[62:63]")
        a("v_cndmask_b32_dpp v20, v22, v20, vcc quad_perm:[0,1,0,1] row_mask:0xf bank_mask:0xf")
        a("v_mul_f32 v20, v20, v15")
        a("v_mov_b32 v21, v20\nv_mul_f32 v13, v20, v20\nv_fma_f32 v13, v13, s48, 1.0\nv_mul_f32 v14, s49, v20\nv_mul_f32 v13, v13, v14")
        a("v_exp_f32 v13, v13\nv_permlane32_swap_b32 v20, v21\nv_add_f32 v13, 1.0, v13\nv_rcp_f32 v13, v13\nv_mul_f32 v20, v20, v21\nv_mul_f32 v20, v20, v13")
        a("v_cvt_pk_bf16_f32 v20, v20, v20")
        a("s_mov_b32 exec_hi, 0")
        a("ds_write_b16 v55, v20 offset:%d" % L_OPD)
        a("s_mov_b32 exec_hi, -1")
        a("s_waitcnt lgkmcnt(0)")
        a("s_call_b64 s[50:51], L_mm")
        self.stamp(7)
        a("L_ob_end:")
        if self.diag:
            a("s_cmp_lg_u32 s3, 1\ns_cbranch_scc1 L_opd0")
            self.flush_stamps([5])
            a("L_opd0:")
            a("s_cmp_lg_u32 s3, 0\ns_cbranch_scc1 L_end")
            self.flush_stamps([0, 1, 2, 3, 4, 6, 7, 12, 13, 14])
        a("s_endpgm")

    def gather_sum(self, name, G, n, sbase, between=None, sleep=0):
        a = self.a
        def loads():
            for i in range(n):
                a("buffer_load_dwordx4 v[%d:%d], v50, s[28:31], s%d offen offset:%d sc1" % (G + 4 * i, G + 4 * i + 3, sbase + i // 4, (i % 4) * 1024))
        if between is not None:
            loads()
            between()
            a("s_mov_b32 s60, 0\ns_branch %s_c\n%s:" % (name, name))
            if sleep:
                a("s_sleep %d" % sleep)
            loads()
            a("%s_c:" % name)
        else:
            self.poll_begin(name)
            loads()
        for i in range(1, n):
            a("s_waitcnt vmcnt(%d)" % (n - 1 - i))
            a("v_pk_add_f32 v[%d:%d], v[%d:%d], v[%d:%d]" % (G, G + 1, G, G + 1, G + 4 * i, G + 4 * i + 1))
            a("v_pk_add_f32 v[%d:%d], v[%d:%d], v[%d:%d]" % (G + 2, G + 3, G + 2, G + 3, G + 4 * i + 2, G + 4 * i + 3))
        a("s_add_u32 s60, s60, 1\ns_cmp_gt_u32 s60, %d" % SPIN)
        a("v_permlane32_swap_b32 v%d, v%d\nv_permlane32_swap_b32 v%d, v%d" % (G, G + 2, G + 1, G + 3))
        a("v_add_f32 v%d, v%d, v%d\nv_add_f32 v%d, v%d, v%d" % (G, G, G + 2, G + 1, G + 1, G + 3))
        a("s_nop 1")
        a("v_permlane16_swap_b32 v%d, v%d" % (G, G + 1))
        a("v_add_f32 v%d, v%d, v%d" % (G, G, G + 1))
        a("s_nop 1")
        self.dpp("v_add_f32", G, G, G, "row_ror:8")
        a("v_cmp_u_f32 vcc, v%d, v%d" % (G, G))
        a("s_cbranch_scc1 %s_x" % name)
        a("s_cbranch_vccnz %s\n%s_x:" % (name, name))

    def gather_inc(self, name, G, n, sbase, between=None, sleep=0):
        a = self.a
        P = G + 4
        for r in range(4):
            a("v_mov_b32 v%d, 0" % (G + r))
        a("s_mov_b32 s44, 0x%x\ns_mov_b32 s60, 0" % ((1 << n) - 1))
        def ld(i):
            a("buffer_load_dwordx4 v[%d:%d], v50, s[28:31], s%d offen offset:%d sc1" % (P + 4 * i, P + 4 * i + 3, sbase + i // 4, (i % 4) * 1024))
        if between is not None:
            for i in range(n):
                ld(i)
            between()
            a("s_branch %s_c" % name)
        a("%s:" % name)
        if sleep:
            a("s_sleep %d" % sleep)
        for i in range(n):
            a("s_bitcmp0_b32 s44, %d\ns_cbranch_scc1 %s_l%d" % (i, name, i))
            ld(i)
            a("%s_l%d:" % (name, i))
        a("%s_c:" % name)
        a("s_waitcnt vmcnt(0)")
        for i in range(n):
            p = P + 4 * i
            a("s_bitcmp0_b32 s44, %d\ns_cbranch_scc1 %s_k%d" % (i, name, i))
            a("v_max3_u32 v49, v%d, v%d, v%d\nv_max_u32 v49, v49, v%d\nv_cmp_eq_u32 vcc, -1, v49\ns_cbranch_vccnz %s_k%d" % (p, p + 1, p + 2, p + 3, name, i))
            a("v_pk_add_f32 v[%d:%d], v[%d:%d], v[%d:%d]\nv_pk_add_f32 v[%d:%d], v[%d:%d], v[%d:%d]" % (G, G + 1, G, G + 1, p, p + 1, G + 2, G + 3, G + 2, G + 3, p + 2, p + 3))
            a("s_bitset0_b32 s44, %d" % i)
            a("%s_k%d:" % (name, i))
        a("s_add_u32 s60, s60, 1\ns_cmp_gt_u32 s60, %d\ns_cbranch_scc1 %s_x" % (SPIN, name))
        a("s_cmp_lg_u32 s44, 0\ns_cbranch_scc1 %s\n%s_x:" % (name, name))
        a("v_permlane32_swap_b32 v%d, v%d\nv_permlane32_swap_b32 v%d, v%d" % (G, G + 2, G + 1, G + 3))
        a("v_add_f32 v%d, v%d, v%d\nv_add_f32 v%d, v%d, v%d" % (G, G, G + 2, G + 1, G + 1, G + 3))
        a("s_nop 1")
        a("v_permlane16_swap_b32 v%d, v%d" % (G, G + 1))
        a("v_add_f32 v%d, v%d, v%d" % (G, G, G + 1))
        a("s_nop 1")
        self.dpp("v_add_f32", G, G, G, "row_ror:8")

    def role_a(self):
        a = self.a
        GU, G, BF = 64, 128, 168
        ONES, ST = L_OPD + 320, L_ACT
        a("L_a:")
        a("s_sub_u32 s59, s58, %d\ns_mul_i32 s62, s59, 3641\ns_lshr_b32 s62, s62, 16\ns_mul_i32 s63, s62, 18\ns_sub_u32 s63, s59, s63" % A0)
        a("s_lshl_b32 s59, s62, 2\ns_add_u32 s59, s59, s3")
        self.srd(36, 4, 2304)
        a("v_bfe_u32 v16, v0, 1, 2\nv_mov_b32 v17, s3\ns_cmp_eq_u32 s62, 8\ns_cselect_b64 vcc, -1, 0\nv_and_b32 v20, 1, v0")
        a("v_cndmask_b32 v18, v16, v17, vcc\nv_cndmask_b32 v19, v17, v16, vcc")
        a("v_mul_u32_u24 v51, 1152, v20\nv_lshl_add_u32 v51, v18, 5, v51\nv_lshl_add_u32 v51, v19, 3, v51\nv_lshl_add_u32 v51, v2, 1, v51")
        a("s_lshl_b32 s45, s62, 7\nv_add_u32 v51, s45, v51")
        a("v_bfe_u32 v5, v0, 2, 1\nv_and_b32 v4, 3, v0")
        a("buffer_load_ushort v53, v51, s[36:39], 0 offen")
        a("v_lshlrev_b32 v50, 4, v0")
        self.zero_area()
        a("v_mov_b32 v13, 0x3f803f80\nv_lshlrev_b32 v14, 2, v0\ns_mov_b32 exec_hi, 0\nds_write_b32 v14, v13 offset:%d\nds_write_b32 v14, v8 offset:%d\ns_mov_b32 exec_hi, -1" % (ONES, ST))
        a("v_lshlrev_b32 v54, 7, v20\nv_lshl_add_u32 v54, v19, 4, v54\nv_lshl_add_u32 v54, v2, 1, v54\nv_lshrrev_b32 v16, 1, v18\nv_lshl_add_u32 v54, v16, 6, v54\nv_and_b32 v16, 1, v18\nv_lshl_add_u32 v54, v16, 3, v54")
        a("v_lshlrev_b32 v55, 4, v20\nv_lshl_add_u32 v55, v2, 2, v55")
        a("v_lshlrev_b32 v13, 7, v4\nv_cmp_eq_u32 vcc, 2, v4\nv_mov_b32 v14, 320\ns_nop 0\nv_cndmask_b32 v13, v13, v14, vcc\nv_lshl_add_u32 v13, v2, 4, v13\nv_add_u32 v13, %d, v13" % L_OPD)
        a("v_mov_b32 v15, %d\nv_cmp_eq_u32 vcc, 3, v4\nv_lshlrev_b32 v60, 4, v5\nv_add_u32 v60, %d, v60\nv_cndmask_b32 v13, v13, v15, vcc\nv_cndmask_b32 v60, v15, v60, vcc" % (L_ZERO + 192, ST))
        a("v_lshrrev_b32 v14, 2, v1")
        for t in range(4):
            a("v_cmp_eq_u32 vcc, %d, v14\ns_nop 1\nv_cndmask_b32 v%d, v15, v13, vcc" % (t, 56 + t))
        a("v_lshrrev_b32 v6, 2, v0\nv_lshlrev_b32 v7, 9, v6\nv_lshl_add_u32 v7, v4, 3, v7\nv_add_u32 v7, %d, v7\nv_and_b32 v6, 7, v6\ns_lshl_b32 s45, s3, 2\nv_xor_b32 v6, s45, v6" % L_WB)
        for t in range(4):
            a("v_xor_b32 v8, %d, v6\nv_lshl_add_u32 v%d, v8, 5, v7" % (t, 44 + t))
        a("v_lshrrev_b32 v6, 5, v0\nv_mul_u32_u24 v7, 9216, v6\nv_and_b32 v8, 31, v0\nv_lshl_add_u32 v7, v8, 4, v7\nv_lshlrev_b32 v6, 5, v6\nv_xor_b32 v244, v7, v6")
        for t in range(1, 4):
            a("v_xor_b32 v%d, %d, v244" % (244 + t, 64 * t))
        a("s_waitcnt vmcnt(0) lgkmcnt(0)")
        a("v_lshlrev_b32 v53, 16, v53")
        a("s_cmp_lt_u32 s3, 2\ns_cselect_b32 s36, s16, s18\ns_cselect_b32 s37, s17, s19\ns_mov_b32 s38, %d\ns_mov_b32 s39, 0x20000" % (576 * 9216))
        a("s_cmp_lg_u32 s3, 0\ns_cbranch_scc1 L_a_1")
        a("s_call_b64 s[50:51], L_finish")
        a("s_branch L_a_2")
        a("L_a_1:")
        if self.o.get("a12", 0):
            a("s_cmp_eq_u32 s3, 3\ns_cbranch_scc1 L_a_3")
            if self.o.get("a12", 0) == 2:
                a("s_cmp_eq_u32 s3, 2\ns_cbranch_scc1 L_a_w")
            self.lds_wait(L_FLAG + 4, self.o.get("a12cnt", 4), 1, t=12)
            a("s_branch L_a_2\nL_a_3:")
        else:
            a("s_cmp_lg_u32 s3, 3\ns_cbranch_scc1 L_a_w")
        a("s_lshl_b32 s52, s62, 2\ns_add_u32 s52, s52, s63\ns_mul_i32 s52, s52, %d\ns_add_u32 s52, s52, 0x%x\ns_cmp_lt_u32 s63, 4\ns_cselect_b32 s53, 9, 0\ns_mov_b32 s49, 0" % (TSTR, WS_M4))
        a("s_call_b64 s[50:51], L_box")
        a("L_a_w:")
        self.lds_wait(L_FLAG, 7, 1, t=12)
        a("L_a_2:")
        a("s_lshl_b32 s45, s62, 1\ns_and_b32 s46, s3, 1\ns_add_u32 s45, s45, s46\ns_mul_i32 s45, s45, %d\ns_lshl_b32 s46, s63, 9\ns_add_u32 s45, s45, s46" % (32 * 9216))
        a("s_lshl_b32 s46, s3, 14\ns_add_u32 s46, s46, %d" % L_WB)
        for n in range(16):
            a("s_mov_b32 m0, s46\ns_add_u32 s46, s46, 1024")
            if not self.o.get("noA", 0):
                a("buffer_load_dwordx4 v%d, s[36:39], s45 offen nt lds" % (244 + n % 4))
            a("s_add_u32 s45, s45, %d" % (2 * 9216))
        a("s_mov_b32 s40, 0xffff0000")
        a("s_mul_i32 s52, s59, %d\ns_add_u32 s52, s52, 0x%x\ns_add_u32 s53, s52, 4096\ns_add_u32 s54, s52, 8192" % (TSTR, WS_M2))
        a("s_lshl_b32 s41, s63, 2\ns_add_u32 s41, s41, s3\ns_mul_i32 s41, s41, 9\ns_add_u32 s41, s41, s62\ns_lshl_b32 s41, s41, 11\ns_add_u32 s41, s41, 0x%x" % WS_M3)
        a("s_mov_b32 s42, 0x00ff00ff\ns_mov_b32 s43, 0x00ff00ff\ns_mov_b32 s46, 0x00030003\ns_mov_b32 s47, 0x00030003")
        a("s_waitcnt vmcnt(0)")
        a("s_barrier")
        self.stamp(12)
        def trreads():
            for mat in range(2):
                for tt in range(4):
                    for ks in range(2):
                        for hh in range(2):
                            r = GU + mat * 32 + tt * 8 + ks * 4 + hh * 2
                            a("ds_read_b64_tr_b16 v[%d:%d], v%d offset:%d" % (r, r + 1, 44 + tt, mat * 32768 + (32 * ks + 16 * hh) * 512))
                    if tt % 2 == 1:
                        a("s_waitcnt lgkmcnt(4)")
        if self.o.get("inc1", 0):
            self.gather_inc("L_r1_poll", G, 8, 52, between=trreads, sleep=self.o.get("sl1", 0))
        else:
            self.gather_sum("L_r1_poll", G, 8, 52, between=trreads, sleep=self.o.get("sl1", 0))
        self.stamp(5)
        a("v_cvt_pk_bf16_f32 v%d, v%d, v%d\nv_and_b32 v%d, s40, v%d" % (G, G, G, G, G))
        a("v_add_f32 v53, v53, v%d" % G)
        a("v_cvt_pk_bf16_f32 v12, v53, v53\nv_and_b32 v53, s40, v12")
        a("s_mov_b64 exec, s[42:43]\nds_write_b16 v54, v12 offset:%d\ns_mov_b64 exec, -1" % L_OPD)
        a("v_mov_b32 v13, v53\nv_mul_f32 v14, v53, v53\ns_nop 1\nv_permlane32_swap_b32 v13, v14\nv_add_f32 v13, v13, v14")
        a("v_mov_b32 v14, v13\ns_nop 1\nv_permlane16_swap_b32 v13, v14\nv_add_f32 v13, v13, v14\ns_nop 1")
        self.dpp("v_add_f32", 13, 13, 13, "quad_perm:[2,3,0,1]")
        a("s_nop 1")
        self.dpp("v_add_f32", 13, 13, 13, "row_ror:4")
        a("s_mov_b64 exec, s[46:47]\nds_add_f32 v55, v13 offset:%d\ns_mov_b64 exec, -1" % ST)
        a("s_waitcnt lgkmcnt(0)")
        a("s_barrier")
        a("ds_read_b128 v[12:15], v60\nds_read_b128 v[16:19], v60")
        for i in range(8):
            a("ds_read_b128 v[%d:%d], v%d offset:%d" % (BF + 4 * i, BF + 4 * i + 3, 56 + i // 2, (i % 2) * 64))
        for i in range(8):
            a("s_waitcnt lgkmcnt(%d)" % (7 - i))
            for mat in range(2):
                w = GU + mat * 32 + 4 * i
                d = 12 + 4 * mat
                a("v_mfma_f32_16x16x32_bf16 v[%d:%d], v[%d:%d], v[%d:%d], v[%d:%d]" % (d, d + 3, w, w + 3, BF + 4 * i, BF + 4 * i + 3, d, d + 3))
        a("s_add_u32 s52, s52, 0x%x\ns_add_u32 s53, s53, 0x%x\ns_add_u32 s54, s54, 0x%x" % ((WS_M4 - WS_M2,) * 3))
        a("s_nop 3")
        a("buffer_store_dwordx4 v[12:15], v50, s[28:31], s41 offen sc1")
        if not self.o.get("halfmsg", 0):
            a("buffer_store_dwordx4 v[16:19], v50, s[28:31], s41 offen offset:1024 sc1")
        self.stamp(6)
        a("s_cmp_eq_u32 s3, s63\ns_cbranch_scc1 L_a_red")
        if self.diag:
            a("s_cmp_lg_u32 s3, 0\ns_cbranch_scc1 L_end")
            self.flush_stamps([0, 1, 2, 3, 4, 5, 6, 12, 14])
        a("s_endpgm")
        a("L_a_red:")
        self.srd(36, 22, 2304)
        a("s_waitcnt vmcnt(0)")
        if self.o.get("inc2", 0):
            self.gather_inc("L_r2_poll", G, 9, 52)
        else:
            self.gather_sum("L_r2_poll", G, 9, 52)
        self.stamp(7)
        a("v_cvt_pk_bf16_f32 v%d, v%d, v%d\nv_and_b32 v%d, s40, v%d" % (G, G, G, G, G))
        a("v_add_f32 v53, v53, v%d" % G)
        a("v_cvt_pk_bf16_f32 v53, v53, v53")
        a("s_mov_b64 exec, s[42:43]")
        a("buffer_store_short v53, v51, s[36:39], 0 offen")
        a("s_cmp_lg_u32 s59, 0\ns_cbranch_scc1 L_red_end")
        a("s_mov_b64 exec, 1\nv_mov_b32 v16, s61\nv_mov_b32 v17, 0")
        a("buffer_store_dword v16, v17, s[28:31], 0 offen offset:%d sc1" % WS_EPOCH)
        a("L_red_end:")
        self.stamp(11)
        if self.diag:
            self.flush_stamps([7, 11])
            a("s_cmp_lg_u32 s3, 0\ns_cbranch_scc1 L_end")
            self.flush_stamps([0, 1, 2, 3, 4, 5, 6, 12, 14])
        a("s_endpgm")

    def build(self):
        a = self.a
        a("s_load_dwordx16 s[4:19], s[0:1], 0\ns_load_dwordx8 s[20:27], s[0:1], 64")
        a("s_cmp_ge_u32 s2, 256\ns_cbranch_scc1 L_end")
        if self.diag:
            for k in range(NSTAMP):
                a("s_mov_b64 s[%d:%d], 0" % (64 + 2 * k, 65 + 2 * k))
        self.stamp(0)
        if self.o.get("padto", 0) or self.o.get("dbgtime", 0) or self.o.get("padmin", 0):
            a("s_memrealtime s[90:91]")
        a("v_lshrrev_b32 v1, 6, v0\nv_and_b32 v0, 63, v0")
        a("v_readfirstlane_b32 s3, v1")
        a("v_mov_b32 v4, 0\nv_mov_b32 v5, 0\nv_mov_b32 v6, 0\nv_mov_b32 v7, 0")
        a("ds_write_b128 v4, v[4:7] offset:%d\nds_write_b128 v4, v[4:7] offset:%d" % (L_FLAG, L_FLAG + 16))
        if self.o.get("order", 1) == 1:
            a("s_cmp_lt_u32 s3, 4\ns_cbranch_scc1 L_service")
            self.streaming()
            a("L_service:")
            self.service()
        else:
            a("s_cmp_ge_u32 s3, 4\ns_cbranch_scc1 L_stream")
            self.service()
            self.streaming()
        a("L_end:\ns_endpgm")
        return wrap(a.text(), 256, 512, LDS_BYTES, 256, 102, accum=256)


if __name__ == "__main__":
    import argparse
    ap = argparse.ArgumentParser()
    ap.add_argument("out")
    ap.add_argument("--diag", action="store_true")
    ap.add_argument("--opt", action="append", default=[])
    args = ap.parse_args()
    opts = {}
    for o in args.opt:
        k, v = o.split("=", 1)
        try: v = int(v)
        except ValueError: pass
        opts[k] = v
    open(args.out, "w").write(Gen(diag=args.diag, nback=opts.get('nback', 5), win=opts.get('win', 8), opts=opts).build())
```

```python
import sys, struct, math
from asmlib import *

def f32(x):
    return struct.unpack("<I", struct.pack("<f", x))[0]

WS_EPOCH = 0x0
WS_XC = 0x4000
WS_CTR = 0x1000
WS_MQ = 0x180000
SB = 0x10000
WS_M1 = SB + 0x0
TSTR = 72 * 128
WS_M2 = SB + 0x60000
WS_M4 = SB + 0xC0000
WS_M3 = 0x200000
WS_MU = SB + 0xB1000
WS_ST = SB + 0xB2000
RESET_PER_WG = 4096
WS_STAMP = 0x8000000
NSTAMP = 16
L_Q = 0x0
L_XN = 0x200
L_MX = 0xB00
L_PML = 0xB80
L_FLAG = 0xBC0
L_PACC = 0xC00
L_ZERO = 0x1C00
L_OPD = 0x1E00
L_WQ = 0x2000
L_WB = 0x6800
LDS_BYTES = L_WB + 72 * 1024
L_RM = L_OPD + 256
SPIN = 200000
LOG2E = 1.4426950408889634
EPOCH_INC = 0x9E3779B9


class Gen:
    def __init__(self, diag=False, nback=4, win=8, opts=None):
        self.a = Asm()
        self.diag = diag
        self.nback = nback
        self.win = win
        self.o = opts or {}

    def stamp(self, k):
        if self.diag:
            self.a("s_memrealtime s[%d:%d]" % (64 + 2 * k, 65 + 2 * k))

    def flush_stamps(self, ks):
        if not self.diag:
            return
        a = self.a
        a("s_waitcnt lgkmcnt(0)")
        a("s_mov_b64 exec, 1")
        a("s_mul_i32 s100, s2, %d\ns_add_u32 s100, s100, 0x%x" % (NSTAMP * 8, WS_STAMP))
        a("v_mov_b32 v252, 0")
        for k in ks:
            a("v_mov_b32 v250, s%d\nv_mov_b32 v251, s%d" % (64 + 2 * k, 65 + 2 * k))
            a("buffer_store_dwordx2 v[250:251], v252, s[28:31], s100 offen offset:%d" % (8 * k))
            a("s_nop 1")

    def srd(self, d, lo, size, add=None):
        a = self.a
        if add is None:
            a("s_mov_b32 s%d, s%d\ns_mov_b32 s%d, s%d" % (d, lo, d + 1, lo + 1))
        else:
            a("s_add_u32 s%d, s%d, %s\ns_addc_u32 s%d, s%d, 0" % (d, lo, add, d + 1, lo + 1))
        a("s_mov_b32 s%d, 0x%x\ns_mov_b32 s%d, 0x20000" % (d + 2, size, d + 3))

    def xrow(self, op, x, t, halves=True, rows=True):
        a = self.a
        if rows:
            a("v_mov_b32 v%d, v%d\ns_nop 1\nv_permlane16_swap_b32 v%d, v%d\ns_nop 0\n%s v%d, v%d, v%d" % (t, x, x, t, op, x, x, t))
        if halves:
            a("v_mov_b32 v%d, v%d\ns_nop 1\nv_permlane32_swap_b32 v%d, v%d\ns_nop 0\n%s v%d, v%d, v%d" % (t, x, x, t, op, x, x, t))

    def dpp(self, op, d, s0, s1, ctrl, bank=0xf):
        self.a("%s_dpp v%d, v%d, v%d %s row_mask:0xf bank_mask:0x%x" % (op, d, s0, s1, ctrl, bank))

    def row_reduce(self, op, regs):
        for ctrl in ("row_ror:8", "row_ror:4", "row_ror:2", "row_ror:1"):
            if len(regs) < 3:
                self.a("s_nop 1")
            for r in regs:
                self.dpp(op, r, r, r, ctrl)

    def oct_reduce(self, op, regs):
        for ctrl in ("row_half_mirror", "quad_perm:[1,0,3,2]", "quad_perm:[2,3,0,1]"):
            if len(regs) < 3:
                self.a("s_nop 1")
            for r in regs:
                self.dpp(op, r, r, r, ctrl)

    def layernorm(self, X, T, ldsaddr):
        a = self.a
        s, t, m, r = T, T + 1, T + 2, T + 3
        D = T + 4
        a("v_add_f32 v%d, v%d, v%d" % (s, X, X + 1))
        a("v_add_f32 v%d, v%d, v%d" % (t, X + 2, X + 3))
        for i in range(4, 18, 2):
            a("v_add_f32 v%d, v%d, v%d\nv_add_f32 v%d, v%d, v%d" % (s, s, X + i, t, t, X + i + 1))
        a("v_add_f32 v%d, v%d, v%d" % (s, s, t))
        self.row_reduce("v_add_f32", [s])
        self.xrow("v_add_f32", s, t, halves=False)
        a("v_mul_f32 v%d, 0x%x, v%d" % (m, f32(1.0 / 576), s))
        a("v_lshrrev_b32 v%d, 5, v0\nv_lshlrev_b32 v%d, 2, v%d\nds_write_b32 v%d, v%d offset:%d" % (r, r, r, r, m, L_MX))
        for i in range(18):
            a("v_sub_f32 v%d, v%d, v%d" % (D + i, X + i, m))
        a("v_mul_f32 v%d, v%d, v%d\nv_mul_f32 v%d, v%d, v%d" % (s, D, D, t, D + 1, D + 1))
        for i in range(2, 18, 2):
            a("v_fmac_f32 v%d, v%d, v%d\nv_fmac_f32 v%d, v%d, v%d" % (s, D + i, D + i, t, D + i + 1, D + i + 1))
        a("v_add_f32 v%d, v%d, v%d" % (s, s, t))
        self.row_reduce("v_add_f32", [s])
        self.xrow("v_add_f32", s, t, halves=False)
        a("v_mul_f32 v%d, 0x%x, v%d" % (s, f32(1.0 / 576), s))
        a("v_cvt_pk_bf16_f32 v%d, v%d, v%d" % (t, m, s))
        a("s_mov_b32 s40, 0xffff0000")
        a("v_lshlrev_b32 v%d, 16, v%d\nv_and_b32 v%d, s40, v%d" % (m, t, s, t))
        a("v_add_f32 v%d, 0x%x, v%d" % (s, f32(1e-5), s))
        a("v_cvt_pk_bf16_f32 v%d, v%d, v%d" % (s, s, s))
        a("v_and_b32 v%d, s40, v%d" % (s, s))
        a("v_sqrt_f32 v%d, v%d\ns_nop 0" % (s, s))
        a("v_cvt_pk_bf16_f32 v%d, v%d, v%d" % (s, s, s))
        a("v_and_b32 v%d, s40, v%d" % (s, s))
        a("v_rcp_f32 v%d, v%d" % (r, s))
        for i in range(18):
            a("v_sub_f32 v%d, v%d, v%d" % (D + i, X + i, m))
        for j in range(9):
            a("v_cvt_pk_bf16_f32 v%d, v%d, v%d" % (D + 2 * j + 1, D + 2 * j, D + 2 * j + 1))
        for j in range(9):
            a("v_lshlrev_b32 v%d, 16, v%d\nv_and_b32 v%d, s40, v%d" % (D + 2 * j, D + 2 * j + 1, D + 2 * j + 1, D + 2 * j + 1))
        for i in range(18):
            a("v_mul_f32 v%d, v%d, v%d" % (D + i, D + i, r))
        for j in range(9):
            a("v_cvt_pk_bf16_f32 v%d, v%d, v%d" % (D + 2 * j, D + 2 * j, D + 2 * j + 1))
        for j in range(9):
            a("ds_write_b32 v%d, v%d offset:%d" % (ldsaddr, D + 2 * j, j * 128))

    def poll_begin(self, name):
        self.a("s_mov_b32 s60, 0\n%s:" % name)

    def poll_end(self, name, regs, t):
        a = self.a
        a("s_waitcnt vmcnt(0)")
        regs = list(regs)
        first = True
        while regs:
            if first:
                if len(regs) >= 3:
                    a("v_max3_u32 v%d, v%d, v%d, v%d" % (t, regs[0], regs[1], regs[2])); regs = regs[3:]
                else:
                    a("v_max_u32 v%d, v%d, v%d" % (t, regs[0], regs[-1])); regs = regs[2:]
                first = False
            elif len(regs) >= 2:
                a("v_max3_u32 v%d, v%d, v%d, v%d" % (t, t, regs[0], regs[1])); regs = regs[2:]
            else:
                a("v_max_u32 v%d, v%d, v%d" % (t, t, regs[0])); regs = []
        a("v_cmp_eq_u32 vcc, -1, v%d" % t)
        a("s_add_u32 s60, s60, 1\ns_cmp_gt_u32 s60, %d\ns_cbranch_scc1 %s_x" % (SPIN, name))
        a("s_cbranch_vccnz %s\n%s_x:" % (name, name))

    def ticket(self, KR, VR, ring):
        a = self.a
        QA, QB, SA, SBR, T0, T1, MT, M, ML, LS, ACC, AF, MK = 10, 14, 18, 22, 26, 27, 28, 29, 30, 31, 32, 36, 5
        for j in range(4):
            if ring and j > 0:
                a("s_waitcnt vmcnt(7)")
            if ring and j == self.o.get("cpos", 3):
                self.claim()
            k = KR + 4 * j
            for e in range(4):
                a("v_dot2_f32_bf16 v%d, v%d, v%d, %s" % (SA + j, k + e, QA + e, "0" if e == 0 else "v%d" % (SA + j)))
                a("v_dot2_f32_bf16 v%d, v%d, v%d, %s" % (SBR + j, k + e, QB + e, "0" if e == 0 else "v%d" % (SBR + j)))
            if ring:
                a("buffer_load_dwordx4 v[%d:%d], v1, s[36:39], s45 offen offset:%d nt" % (k, k + 3, j * 1024))
        for j in range(4):
            self.dpp("v_add_f32", SA + j, SA + j, SA + j, "row_ror:8", 0x3)
        for j in range(4):
            self.dpp("v_add_f32", SA + j, SBR + j, SBR + j, "row_ror:8", 0xc)
        self.oct_reduce("v_add_f32", [SA + j for j in range(4)])
        for rnd in range(2):
            a("v_cvt_pk_bf16_f32 v%d, v%d, v%d\nv_cvt_pk_bf16_f32 v%d, v%d, v%d" % (T0, SA, SA + 1, T1, SA + 2, SA + 3))
            a("v_lshlrev_b32 v%d, 16, v%d\nv_and_b32 v%d, s46, v%d" % (SA, T0, SA + 1, T0))
            a("v_lshlrev_b32 v%d, 16, v%d\nv_and_b32 v%d, s46, v%d" % (SA + 2, T1, SA + 3, T1))
            if rnd == 0:
                for j in range(4):
                    a("v_mul_f32 v%d, s47, v%d" % (SA + j, SA + j))
        a("v_max3_f32 v%d, v%d, v%d, v%d\nv_max_f32 v%d, v%d, v%d" % (MT, SA, SA + 1, SA + 2, MT, MT, SA + 3))
        a("v_cmp_gt_f32 vcc, v%d, v%d" % (MT, M))
        lab = a.label("L_nors")
        a("s_cbranch_vccz %s\ns_call_b64 s[50:51], L_rescale\n%s:" % (lab, lab))
        for j in range(4):
            a("v_fma_f32 v%d, v%d, s48, -v%d" % (SA + j, SA + j, ML))
        for j in range(4):
            a("v_exp_f32 v%d, v%d" % (SA + j, SA + j))
        a("s_nop 0")
        for j in range(4):
            a("v_cvt_pk_bf16_f32 v%d, v%d, v%d" % (SBR + j, SA + j, SA + j))
        a("v_add_f32 v%d, v%d, v%d\nv_add_f32 v%d, v%d, v%d" % (T0, SA, SA + 1, T1, SA + 2, SA + 3))
        extra = {0: "v_add_f32 v%d, v%d, v%d\nv_mov_b32 v%d, v%d" % (T0, T0, T1, T1, T0),
                 1: "v_permlane16_swap_b32 v%d, v%d\nv_add_f32 v%d, v%d, v%d\nv_mov_b32 v%d, v%d" % (T0, T1, T0, T0, T1, T1, T0),
                 2: "v_permlane32_swap_b32 v%d, v%d\nv_add_f32 v%d, v%d, v%d\nv_add_f32 v%d, v%d, v%d" % (T0, T1, T0, T0, T1, LS, LS, T0),
                 3: "ds_write_b64 v9, v[%d:%d]" % (ML, LS)}
        for j in range(4):
            a(extra[j])
            for e in range(4):
                a("v_and_b32 v%d, v%d, v%d" % (AF + 4 * j + e, MK + e, SBR + j))
        a("s_nop 0")
        for j in range(4):
            if ring:
                a("s_waitcnt vmcnt(7)")
            if ring and j + 4 == self.o.get("cpos", 3):
                self.claim()
            v = VR + 4 * j
            a("v_mfma_f32_16x16x32_bf16 v[%d:%d], v[%d:%d], v[%d:%d], v[%d:%d]" % (ACC, ACC + 3, AF + 4 * j, AF + 4 * j + 3, v, v + 3, ACC, ACC + 3))
            if ring:
                a("buffer_load_dwordx4 v[%d:%d], v1, s[40:43], s45 offen offset:%d nt" % (v, v + 3, j * 1024))

    def claim(self):
        a = self.a
        if self.o.get("alpha", 0):
            a("s_mov_b32 s57, s97\ns_cmp_lg_u32 s62, s97\ns_cbranch_scc1 L_nclaim\ns_atomic_add s57, s[54:55], 0x0 glc\nL_nclaim:")
        else:
            a("s_mov_b32 s57, 1\ns_cmp_eq_u32 s62, 0\ns_cbranch_scc1 L_nclaim\ns_atomic_add s57, s[54:55], 0x0 glc\nL_nclaim:")

    def streaming(self):
        a = self.a
        NB = self.nback
        NS = self.o.get("nstatic", 11)
        LIMF = self.o.get("limf", 512)
        assert NS - self.o.get('oskip', 3) >= NB + 2
        RING, BACK = 52, 84
        a("L_stream:")
        a("s_sub_u32 s44, s3, 4")
        a("v_lshlrev_b32 v1, 4, v0")
        a("s_lshr_b32 s56, s2, 3\ns_lshl_b32 s46, s56, 21")
        SP = self.o.get("spat", 1)
        SSTEP = 0x20000 if SP else 0x4000
        a("s_and_b32 s45, s2, 7\ns_mul_i32 s45, s45, %d\ns_add_u32 s45, s45, s44\ns_lshl_b32 s45, s45, 12" % (4 if SP else NS * 4))
        a("s_waitcnt lgkmcnt(0)")
        self.srd(36, 6, 0x200000, "s46")
        self.srd(40, 8, 0x200000, "s46")
        n = 0
        for tk in range(NB + 1):
            base = BACK + 32 * tk if tk < NB else RING
            for kv in range(2):
                for j in range(4):
                    if n >= self.win:
                        a("s_waitcnt vmcnt(%d)" % (self.win - 1))
                    r = base + 16 * kv + 4 * j
                    a("buffer_load_dwordx4 v[%d:%d], v1, s[%d:%d], s45 offen offset:%d nt" % (r, r + 3, 36 + 4 * kv, 39 + 4 * kv, j * 1024))
                    n += 1
                    if n == self.o.get("qgo", (NB - 1) * 8):
                        a("ds_write_b32 v2, v3 offset:%d" % (L_FLAG + 12))
                    if n == self.win:
                        self.srd(28, 26, 0x10000000)
                        a("v_and_b32 v26, 1, v0\nv_lshlrev_b32 v26, 4, v26\nv_mov_b32 v27, 0xffff\nv_lshlrev_b32 v27, v26, v27")
                        a("v_bfe_u32 v26, v0, 1, 2")
                        for e in range(4):
                            a("v_cmp_eq_u32 vcc, %d, v26\ns_nop 1\nv_cndmask_b32 v%d, 0, v27, vcc" % (e, 5 + e))
                        a("v_mov_b32 v29, 0x%x\nv_mov_b32 v30, 0x%x\nv_mov_b32 v31, 0" % (f32(-1e38), f32(-1e38 * LOG2E)))
                        a("v_mov_b32 v32, 0\nv_mov_b32 v33, 0\nv_mov_b32 v34, 0\nv_mov_b32 v35, 0")
                        a("s_mov_b32 s46, 0xffff0000\ns_mov_b32 s47, 0x%x\ns_mov_b32 s48, 0x%x" % (f32(128 ** -0.5), f32(LOG2E)))
                        a("s_mov_b32 s52, 0\ns_mov_b32 s53, -1")
                        a("v_and_b32 v9, 15, v0\nv_lshlrev_b32 v9, 4, v9")
                        a("v_mov_b32 v2, 0\nv_mov_b32 v3, 1\nv_mov_b32 v4, 0")
                        a("s_lshl_b32 s56, s56, 8\ns_add_u32 s56, s56, 0x%x\ns_add_u32 s54, s26, s56\ns_addc_u32 s55, s27, 0" % WS_CTR)
                        a("s_lshr_b32 s59, s2, 3\ns_add_u32 s61, s2, s59\ns_and_b32 s61, s61, 7\ns_cmp_lt_u32 s61, 2\ns_cselect_b32 s61, %d, %d" % (NS - NB - 1 - self.o.get("oskip", 3), NS - NB - 1))
                        a("s_sub_u32 s59, 0, s59\ns_and_b32 s59, s59, 7\ns_lshl_b32 s59, s59, 2")
                        a("s_barrier")
            if tk < NB:
                a("s_add_u32 s45, s45, 0x%x" % SSTEP)
        self.stamp(8)
        if self.o.get("abl", 0) != 1:
            self.lds_wait(L_FLAG + 20, 1, 1, t=26)
        self.stamp(9)
        a("ds_read_b128 v[10:13], v9 offset:%d\nds_read_b128 v[14:17], v9 offset:%d" % (L_Q, L_Q + 256))
        a("s_mov_b32 s49, 0")
        a("s_waitcnt lgkmcnt(0)")
        a("v_and_b32 v9, 8, v0\ns_lshl_b32 s57, s44, 4\ns_add_u32 s57, s57, %d\nv_add_u32 v9, s57, v9\ns_lshl_b32 s57, s44, 10\nv_add_u32 v4, s57, v1" % L_PML)
        a("s_mov_b32 s57, 0\ns_mov_b32 s96, 0")
        a("L_sloop:")
        a("s_waitcnt vmcnt(7) lgkmcnt(0)")
        a("s_add_u32 s45, s45, 0x%x" % SSTEP)
        OS = self.o.get("oskip", 3)
        AL = self.o.get("alpha", 0)
        if AL:
            a("s_sub_u32 s98, s57, s96\ns_mov_b32 s96, s57\ns_sub_i32 s99, s98, %d\ns_max_i32 s99, s99, 0\ns_mul_i32 s99, s99, %d\ns_lshr_b32 s99, s99, 1" % (self.o.get("athr", 34), AL))
            a("s_add_u32 s98, s98, s57\ns_add_u32 s98, s98, s99\ns_cmp_gt_u32 s99, 0\ns_cselect_b32 s98, s98, 0")
            a("s_cmp_gt_u32 s49, s61\ns_cselect_b32 s98, s98, 0\ns_cmp_gt_u32 s98, %d\ns_cselect_b32 s97, 0x1000, 1" % (512 - NS * 32 + 8 * OS))
        if OS:
            a("s_and_b32 s58, s57, 7\ns_add_u32 s58, s58, s59\ns_and_b32 s58, s58, 31\ns_lshr_b32 s56, s57, 3\ns_lshl_b32 s56, s56, 5\ns_add_u32 s58, s58, s56\ns_add_u32 s58, s58, %d" % ((NS - OS) * 32))
            a("s_add_u32 s56, s57, %d\ns_cmp_lt_u32 s57, %d\ns_cselect_b32 s57, s58, s56\ns_lshl_b32 s57, s57, 12" % (NS * 32 - 8 * OS, 8 * OS))
        else:
            a("s_add_u32 s57, s57, %d\ns_lshl_b32 s57, s57, 12" % (NS * 32))
        a("s_cmp_lt_u32 s49, s61\ns_cselect_b32 s45, s45, s57")
        a("s_add_u32 s56, s49, 1\ns_cmp_ge_u32 s56, s61\ns_cselect_b32 s62, 1, 0")
        a("s_cmp_lt_u32 s45, 0x200000\ns_cbranch_scc1 L_sgo")
        a("s_mov_b32 s38, 0\ns_mov_b32 s42, 0\ns_mov_b32 s62, 0")
        a("s_mov_b64 exec, 1")
        a("ds_add_u32 v2, v3 offset:%d" % (L_FLAG + 4))
        a("ds_write_b32 v2, v3 offset:%d" % (L_FLAG + 16))
        a("s_mov_b64 exec, -1")
        a("L_sgo:")
        a("s_cmp_lg_u32 s49, %d\ns_cbranch_scc1 L_sgo2" % self.o.get("rchk", 3))
        a("ds_write_b32 v2, v3 offset:%d" % (L_FLAG + 16))
        a("L_sgo2:")
        self.ticket(RING, RING + 16, True)
        a("s_cmp_lt_u32 s49, %d\ns_cbranch_scc1 L_bsel" % NB)
        a("s_add_u32 s49, s49, 1\ns_cmp_lg_u32 s38, 0\ns_cbranch_scc1 L_sloop")
        a("L_sfin:")
        a("s_nop 3")
        a("ds_write_b128 v4, v[32:35] offset:%d" % L_PACC)
        a("s_mov_b64 exec, 1")
        a("ds_add_u32 v2, v3 offset:%d" % L_FLAG)
        self.stamp(10)
        if self.diag:
            if self.o.get("abl", 0):
                a("s_cmp_lg_u32 s3, 7\ns_cbranch_scc1 L_nw7")
                a("s_waitcnt lgkmcnt(0)\ns_mov_b64 s[70:71], s[84:85]")
                self.flush_stamps([3])
                a("L_nw7:")
            a("s_cmp_lg_u32 s3, 4\ns_cbranch_scc1 L_end")
            self.flush_stamps([8, 9, 10])
        a("s_endpgm")
        a("L_scont:")
        a("s_add_u32 s49, s49, 1\ns_cmp_lg_u32 s38, 0\ns_cbranch_scc1 L_sloop")
        a("s_cmp_ge_u32 s49, %d\ns_cbranch_scc1 L_sfin" % NB)
        a("L_bsel:")
        for k in range(1, NB):
            a("s_cmp_eq_u32 s49, %d\ns_cbranch_scc1 L_back%d" % (k, k))
        for k in range(NB):
            a("L_back%d:" % k)
            self.ticket(BACK + 32 * k, BACK + 32 * k + 16, False)
            a("s_branch L_scont")
        a("L_rescale:")
        a("v_max_f32 v28, v28, v29")
        self.xrow("v_max_f32", 28, 26)
        a("v_mov_b32 v29, v28\nv_mul_f32 v27, s48, v28\nv_sub_f32 v26, v30, v27\nv_exp_f32 v26, v26\nv_mov_b32 v30, v27")
        a("v_mul_f32 v31, v31, v26")
        a("v_readlane_b32 s63, v26, 0\nv_readlane_b32 s56, v26, 8\ns_nop 1")
        a("v_mov_b32 v26, s63\nv_mov_b32 v27, s56\nv_cndmask_b32 v26, v26, v27, s[52:53]")
        for r in range(4):
            a("v_mul_f32 v%d, v%d, v26" % (32 + r, 32 + r))
        a("s_setpc_b64 s[50:51]")

    def lds_wait(self, off, val, sleep, t=5):
        a = self.a
        lab = a.label("L_lw")
        a("v_mov_b32 v%d, 0\ns_mov_b32 s60, 0\n%s:" % (t, lab))
        a("ds_read_b32 v%d, v%d offset:%d\ns_waitcnt lgkmcnt(0)" % (t + 1, t, off))
        a("v_cmp_le_u32 vcc, %s, v%d" % (val, t + 1))
        a("s_add_u32 s60, s60, 1\ns_cmp_gt_u32 s60, %d\ns_cbranch_scc1 %s_x\ns_cbranch_vccnz %s_x" % (SPIN * 20, lab, lab))
        if sleep:
            a("s_sleep %d" % sleep)
        a("s_branch %s\n%s_x:" % (lab, lab))

    def qproj(self):
        a = self.a
        a("v_lshrrev_b32 v3, 5, v0\nv_mul_u32_u24 v3, 1152, v3\nv_and_b32 v4, 31, v0\nv_lshl_add_u32 v3, v4, 2, v3")
        a("v_mov_b32 v6, 0")
        a("s_lshr_b32 s46, s2, 3\ns_and_b32 s47, s46, 15\ns_lshr_b32 s48, s46, 4")
        a("s_bfe_u32 s49, s2, 0x10002\ns_lshl_b32 s44, s48, 1\ns_add_u32 s49, s49, s44")
        a("s_and_b32 s50, s2, 3")
        a("s_waitcnt lgkmcnt(0)")
        self.srd(36, 4, 2304)
        self.srd(28, 26, 0x10000000)
        for j in range(9):
            a("buffer_load_dword v%d, v3, s[36:39], 0 offen offset:%d" % (16 + 2 * j + 1, j * 128))
        a("buffer_load_dword v7, v6, s[28:31], 0 offen offset:%d sc1" % WS_EPOCH)
        self.srd(32, 24, 256)
        a("s_and_b32 s44, s2, 7\ns_cmp_eq_u32 s44, 0\ns_cselect_b64 exec, 1, 0")
        a("s_lshl_b32 s44, s46, 8\ns_add_u32 s44, s44, 0x%x" % WS_CTR)
        a("buffer_store_dword v6, v6, s[28:31], s44 offen sc1")
        a("s_mov_b64 exec, -1")
        a("s_mov_b32 s40, 0xffff0000")
        a("s_barrier")
        a("s_waitcnt vmcnt(0)")
        for j in range(9):
            a("v_lshlrev_b32 v%d, 16, v%d\nv_and_b32 v%d, s40, v%d" % (16 + 2 * j, 16 + 2 * j + 1, 16 + 2 * j + 1, 16 + 2 * j + 1))
        a("v_add_u32 v7, 0x%x, v7" % EPOCH_INC)
        a("v_add_u32 v8, %d, v3" % L_XN)
        self.layernorm(16, 40, 8)
        a("v_and_b32 v9, 1, v0\nv_mul_u32_u24 v9, 1152, v9\nv_lshl_add_u32 v9, v2, 3, v9\ns_mul_i32 s44, s50, 288\nv_add_u32 v9, s44, v9")
        a("v_lshrrev_b32 v10, 2, v0\nv_lshlrev_b32 v10, 7, v10\nv_and_b32 v11, 3, v0\nv_lshl_add_u32 v10, v11, 3, v10")
        a("s_waitcnt lgkmcnt(0)")
        FB, FA, D = 64, 84, 160
        for ks in range(9):
            a("ds_read_b64 v[%d:%d], v9 offset:%d" % (FB + 2 * ks, FB + 2 * ks + 1, L_XN + ks * 32))
        self.lds_wait(L_FLAG + 8, 3, 0, t=12)
        for ks in range(9):
            for t in range(4):
                r = FA + 8 * ks + 2 * t
                a("ds_read_b64_tr_b16 v[%d:%d], v10 offset:%d" % (r, r + 1, L_WQ + ks * 2048 + t * 32))
            if ks % 3 == 2:
                a("s_waitcnt lgkmcnt(0)")
                for k2 in range(ks - 2, ks + 1):
                    for t in range(4):
                        r = FA + 8 * k2 + 2 * t
                        a("v_mfma_f32_16x16x16_bf16 v[%d:%d], v[%d:%d], v[%d:%d], %s" % (D + 4 * t, D + 4 * t + 3, r, r + 1, FB + 2 * k2, FB + 2 * k2 + 1, "0" if k2 == 0 else "v[%d:%d]" % (D + 4 * t, D + 4 * t + 3)))
        a("s_lshl_b32 s45, s47, 14\ns_lshl_b32 s44, s50, 11\ns_add_u32 s45, s45, s44\ns_lshl_b32 s44, s49, 9\ns_add_u32 s45, s45, s44\ns_add_u32 s45, s45, 0x%x" % WS_MQ)
        a("v_and_b32 v10, 1, v0\nv_lshlrev_b32 v10, 13, v10\nv_lshl_add_u32 v10, v2, 5, v10\nv_bfe_u32 v11, v0, 1, 1\nv_lshl_add_u32 v10, v11, 4, v10")
        a("v_cmp_eq_u32 vcc, 1, v11")
        a("s_mov_b32 s52, 0x000f000f\ns_mov_b32 s53, 0x000f000f")
        for t in range(4):
            a("v_mov_b32 v%d, v7\nv_mov_b32 v%d, v7" % (17 + 4 * t, 19 + 4 * t))
        for t in range(4):
            a("v_cndmask_b32 v%d, v%d, v%d, vcc\nv_cndmask_b32 v%d, v%d, v%d, vcc" % (16 + 4 * t, D + 4 * t, D + 4 * t + 2, 18 + 4 * t, D + 4 * t + 1, D + 4 * t + 3))
        a("s_mov_b64 exec, s[52:53]")
        for t in range(4):
            a("buffer_store_dwordx4 v[%d:%d], v10, s[28:31], s45 offen offset:%d sc1" % (16 + 4 * t, 19 + 4 * t, t * 128))
        a("s_getreg_b32 s44, hwreg(HW_REG_XCC_ID)\ns_and_b32 s45, s2, 7\ns_lshl_b32 s45, s45, 5\ns_add_u32 s45, s45, s46\ns_lshl_b32 s45, s45, 3\ns_add_u32 s45, s45, 0x%x" % WS_XC)
        a("s_mov_b64 exec, 1\nv_mov_b32 v32, s44\nv_mov_b32 v33, v7")
        a("buffer_store_dwordx2 v[32:33], v6, s[28:31], s45 offen sc1")
        a("s_mov_b64 exec, -1")
        a("s_lshl_b32 s44, s47, 1\ns_add_u32 s44, s44, s48\ns_lshl_b32 s44, s44, 13\ns_add_u32 s44, s44, 0x%x\ns_add_u32 s45, s44, 4096" % WS_MQ)
        a("v_lshlrev_b32 v10, 4, v0\nv_lshlrev_b32 v11, 2, v0")
        G = 64
        self.lds_wait(L_FLAG + 12, 1, 2, t=12)
        a("s_mov_b32 s60, 0\nL_qpoll:")
        for i in range(8):
            a("buffer_load_dwordx4 v[%d:%d], v10, s[28:31], s%d offen offset:%d sc1" % (G + 4 * i, G + 4 * i + 3, 44 + i // 4, (i % 4) * 1024))
        a("s_waitcnt vmcnt(0)")
        for i in range(8):
            a("v_xor_b32 v%d, v%d, v7\nv_xor_b32 v%d, v%d, v7" % (G + 4 * i + 1, G + 4 * i + 1, G + 4 * i + 3, G + 4 * i + 3))
        a("v_or_b32 v12, v%d, v%d" % (G + 1, G + 3))
        for i in range(1, 8):
            a("v_or3_b32 v12, v12, v%d, v%d" % (G + 4 * i + 1, G + 4 * i + 3))
        a("v_cmp_ne_u32 vcc, 0, v12")
        a("s_add_u32 s60, s60, 1\ns_cmp_gt_u32 s60, %d\ns_cbranch_scc1 L_qpoll_x\ns_cbranch_vccnz L_qpoll\nL_qpoll_x:" % SPIN)
        for hf in range(2):
            for c in (0, 2):
                b0 = G + 4 * hf + c
                a("v_add_f32 v%d, v%d, v%d\nv_add_f32 v%d, v%d, v%d" % (b0, b0, b0 + 8, b0 + 16, b0 + 16, b0 + 24))
        for hf in range(2):
            for c in (0, 2):
                b0 = G + 4 * hf + c
                a("v_add_f32 v%d, v%d, v%d" % (b0, b0, b0 + 16))
        a("v_cvt_pk_bf16_f32 v12, v%d, v%d\nv_cvt_pk_bf16_f32 v13, v%d, v%d" % (G, G + 2, G + 4, G + 6))
        a("ds_write_b32 v11, v12 offset:%d\nds_write_b32 v11, v13 offset:%d" % (L_Q, L_Q + 256))
        a("v_mov_b32 v12, 1\nds_write_b32 v6, v12 offset:%d" % (L_FLAG + 20))
        a("v_readfirstlane_b32 s61, v7")
        a("s_waitcnt lgkmcnt(0)")
        self.stamp(2)

    def finish_attn(self):
        a = self.a
        a("L_finish:")
        self.stamp(14)
        self.lds_wait(L_FLAG + 16, 1, 8, t=4)
        a("s_getreg_b32 s44, hwreg(HW_REG_XCC_ID)\ns_and_b32 s45, s2, 7\ns_lshl_b32 s45, s45, 8\ns_add_u32 s45, s45, 0x%x" % WS_XC)
        a("v_mov_b32 v4, 0\nv_and_b32 v5, 31, v0\nv_lshlrev_b32 v5, 3, v5\ns_mov_b32 s60, 0")
        a("L_rpoll:")
        a("buffer_load_dword v8, v4, s[32:35], 0 offen sc1")
        a("buffer_load_dwordx2 v[6:7], v5, s[28:31], s45 offen sc1\ns_waitcnt vmcnt(0)")
        a("v_cmp_gt_u32 vcc, 192, v8")
        a("s_add_u32 s60, s60, 1\ns_cmp_gt_u32 s60, %d\ns_cbranch_scc1 L_rpoll_x\ns_cbranch_vccz L_rpoll_x\ns_sleep 64\ns_branch L_rpoll\nL_rpoll_x:" % SPIN)
        a("v_xor_b32 v6, s44, v6\nv_xor_b32 v7, s61, v7\nv_or_b32 v6, v6, v7\nv_cmp_ne_u32 vcc, 0, v6")
        a("s_cmp_eq_u64 vcc, 0\ns_cselect_b32 s44, 1, 0\nv_mov_b32 v6, s44")
        if self.o.get("forceremote", 0):
            a("v_mov_b32 v6, 0")
        a("ds_write_b32 v4, v6 offset:%d" % (L_MX + 8))
        a("v_mov_b32 v5, 1\ns_mov_b64 exec, 1\nds_add_u32 v4, v5 offset:%d\ns_mov_b64 exec, -1" % L_FLAG)
        if self.o.get("cpf", 1):
            a("s_getpc_b64 s[44:45]\nL_cpf:")
            a("v_lshlrev_b32 v6, 7, v0\nv_min_u32 v6, L_end-L_cpf, v6")
            a("global_load_dword v255, v6, s[44:45]")
            if self.diag:
                a("v_lshlrev_b32 v6, 7, v0\nv_add_u32 v6, 8192, v6\nv_min_u32 v6, L_end-L_cpf, v6")
                a("global_load_dword v255, v6, s[44:45]")
        a("s_lshr_b32 s44, s2, 3\ns_and_b32 s45, s44, 15\ns_lshr_b32 s44, s44, 4\ns_lshl_b32 s44, s44, 3\ns_and_b32 s46, s2, 7\ns_add_u32 s44, s44, s46")
        a("v_mul_u32_u24 v8, 6144, v2\nv_lshl_add_u32 v8, v1, 4, v8")
        a("s_mul_i32 s46, s44, 384\ns_mul_i32 s45, s45, 24576\ns_add_u32 s46, s46, s45\ns_add_u32 s46, s46, 0x%x" % WS_M1)
        a("v_and_b32 v10, 32, v0\nv_and_b32 v6, 1, v0\nv_lshl_add_u32 v10, v6, 4, v10\nv_bfe_u32 v6, v0, 1, 4\nv_add_u32 v10, v10, v6\nv_lshlrev_b32 v10, 4, v10")
        a("v_lshrrev_b32 v11, 5, v0\nv_lshlrev_b32 v11, 3, v11")
        a("s_mov_b32 s48, 0x00ff00ff\ns_mov_b32 s49, 0x00ff00ff")
        self.stamp(1)
        self.lds_wait(L_FLAG, 6, self.o.get('fsl', 0), t=4)
        self.stamp(3)
        for wv in range(4):
            a("ds_read_b64 v[%d:%d], v11 offset:%d" % (12 + 2 * wv, 13 + 2 * wv, L_PML + 16 * wv))
        for wv in range(4):
            a("ds_read_b128 v[%d:%d], v10 offset:%d" % (20 + 4 * wv, 23 + 4 * wv, L_PACC + 1024 * wv))
        a("s_waitcnt lgkmcnt(0)")
        a("v_max3_f32 v36, v12, v14, v16\nv_max_f32 v36, v36, v18")
        for wv in range(4):
            a("v_sub_f32 v%d, v%d, v36" % (12 + 2 * wv, 12 + 2 * wv))
        for wv in range(4):
            a("v_exp_f32 v%d, v%d" % (12 + 2 * wv, 12 + 2 * wv))
        a("s_nop 0")
        for r in range(4):
            a("v_mul_f32 v%d, v12, v%d" % (40 + r, 20 + r))
        for wv in range(1, 4):
            for r in range(4):
                a("v_fmac_f32 v%d, v%d, v%d" % (40 + r, 12 + 2 * wv, 20 + 4 * wv + r))
        a("buffer_store_dwordx4 v[40:43], v8, s[28:31], s46 offen sc1")
        a("v_mul_f32 v37, v12, v13")
        for wv in range(1, 4):
            a("v_fmac_f32 v37, v%d, v%d" % (12 + 2 * wv, 13 + 2 * wv))
        a("v_mov_b32 v38, v36\nv_mov_b32 v39, v37")
        a("s_mov_b64 exec, s[48:49]")
        a("buffer_store_dwordx4 v[36:39], v8, s[28:31], s46 offen offset:256 sc1")
        self.stamp(4)
        if self.o.get("trigack", 0):
            a("s_waitcnt vmcnt(0)")
        a("s_mov_b64 exec, 1\nv_mov_b32 v5, 1\nds_add_u32 v4, v5 offset:%d" % L_FLAG)
        a("s_mov_b64 exec, -1")
        if self.o.get("ackstamp", 0):
            a("s_waitcnt vmcnt(0)")
            self.stamp(15)
        a("s_setpc_b64 s[50:51]")

    def service(self):
        a = self.a
        a("s_setprio 2")
        if self.o.get("abl", 0) == 1:
            a("s_waitcnt lgkmcnt(0)")
            self.srd(28, 26, 0x10000000)
            a("s_barrier")
            a("s_cmp_lg_u32 s3, 0\ns_cbranch_scc1 L_end")
            self.flush_stamps([0])
            a("s_endpgm")
        a("v_and_b32 v1, 15, v0\nv_lshrrev_b32 v2, 4, v0")
        a("s_cmp_lg_u32 s3, 0\ns_cbranch_scc1 L_svc_other")
        self.qproj()
        a("s_branch L_svc_a")
        a("L_svc_other:")
        a("v_lshrrev_b32 v4, 3, v0\nv_lshlrev_b32 v4, 13, v4\nv_and_b32 v5, 7, v0\nv_lshl_add_u32 v4, v5, 4, v4")
        a("s_bfe_u32 s47, s2, 0x40003\ns_lshr_b32 s48, s2, 7\ns_bfe_u32 s49, s2, 0x10002\ns_lshl_b32 s44, s48, 1\ns_add_u32 s49, s49, s44\ns_and_b32 s50, s2, 3")
        a("s_lshl_b32 s45, s47, 2\ns_add_u32 s45, s45, s49\ns_lshl_b32 s45, s45, 7\ns_mul_i32 s44, s50, 3\ns_add_u32 s44, s44, s3\ns_sub_u32 s44, s44, 1\ns_mul_i32 s44, s44, %d\ns_add_u32 s45, s45, s44" % (48 * 8192))
        a("s_mul_i32 s46, s3, 6144\ns_add_u32 s46, s46, %d" % (L_WQ - 6144))
        a("s_waitcnt lgkmcnt(0)")
        self.srd(40, 10, 576 * 8192)
        for i in range(6):
            a("s_mov_b32 m0, s46\ns_add_u32 s46, s46, 1024")
            a("buffer_load_dwordx4 v4, s[40:43], s45 offen nt lds")
            a("s_add_u32 s45, s45, %d" % (8 * 8192))
        self.srd(28, 26, 0x10000000)
        self.srd(32, 24, 256)
        a("s_mov_b32 s61, 0")
        a("v_mov_b32 v6, 0\nv_mov_b32 v7, 1")
        a("s_barrier")
        a("s_waitcnt vmcnt(0)")
        a("s_mov_b64 exec, 1\nds_add_u32 v6, v7 offset:%d\ns_mov_b64 exec, -1" % (L_FLAG + 8))
        self.lds_wait(L_FLAG + self.o.get("bgflag", 8), 1, 4, t=12)
        a("L_svc_a:")
        if self.o.get("abl", 0) == 2:
            a("s_cmp_lg_u32 s3, 0\ns_cbranch_scc1 L_end")
            self.flush_stamps([0, 1, 2, 12, 13, 14] + ([15] if self.o.get('ackstamp', 0) else []))
            a("s_endpgm")
        LOC = self.o.get("loc", 1)
        a("s_and_b32 s44, s2, 7\ns_lshr_b32 s45, s2, 3\ns_add_u32 s46, s44, s45\ns_and_b32 s46, s46, 7\ns_lshr_b32 s47, s45, 3")
        a("s_lshl_b32 s59, s46, 5\ns_add_u32 s59, s59, s45")
        a("s_lshl_b32 s48, s46, 2\ns_add_u32 s48, s48, s47")
        a("s_cmp_ge_u32 s46, 2\ns_cbranch_scc1 L_r_n")
        if LOC:
            a("s_mul_i32 s97, s44, 9\ns_add_u32 s97, s97, s48\ns_add_u32 s97, s97, 6\ns_cmp_lt_u32 s48, 3\ns_cselect_b32 s58, 1, 0")
        else:
            a("s_mov_b32 s97, s59\ns_cmp_lt_u32 s59, 24\ns_cselect_b32 s58, 1, 0")
        a("s_mov_b32 s62, 0\ns_mov_b32 s63, 0")
        a("s_branch L_role")
        a("L_r_n:")
        a("s_sub_u32 s48, s48, 8")
        if LOC:
            a("s_lshr_b32 s62, s48, 1\ns_and_b32 s63, s48, 1\ns_lshl_b32 s49, s44, 1\ns_add_u32 s63, s63, s49")
            a("s_mul_i32 s97, s44, 9\ns_add_u32 s97, s97, s48\ns_sub_u32 s97, s97, 18\ns_cmp_lt_u32 s48, 18\ns_cselect_b32 s58, 2, 3")
        else:
            a("s_lshl_b32 s49, s44, 3\ns_add_u32 s49, s49, s48\ns_sub_u32 s49, s49, 16")
            a("s_cmp_lt_u32 s48, 16\ns_cselect_b32 s62, s44, 8\ns_cselect_b32 s63, s48, s49")
            a("s_add_u32 s97, s49, 8\ns_cmp_lt_u32 s63, 16\ns_cselect_b32 s58, 2, 3")
        a("s_cmp_lg_u32 s3, 1\ns_cbranch_scc1 L_role")
        a("v_mov_b32 v10, 0\nv_mov_b32 v4, -1\nv_mov_b32 v5, -1\nv_mov_b32 v6, -1\nv_mov_b32 v7, -1\nv_lshlrev_b32 v8, 4, v0")
        a("s_mul_i32 s44, s44, 24\ns_add_u32 s44, s44, s48\ns_lshl_b32 s44, s44, 12\ns_add_u32 s44, s44, 0x%x" % SB)
        for i in range(4):
            a("buffer_store_dwordx4 v[4:7], v8, s[28:31], s44 offen offset:%d sc1" % (i * 1024))
        a("v_mov_b32 v9, 1\ns_waitcnt vmcnt(0)")
        a("s_mov_b64 exec, 1\nbuffer_atomic_add v9, v10, s[32:35], 0 offen\ns_mov_b64 exec, -1")
        a("s_branch L_role")
        self.box_reset()
        self.finish_attn()
        self.w64()
        self.mm_store()
        self.roles()

    def box_reset(self):
        a = self.a
        a("L_box:")
        a("v_mov_b32 v12, -1\nv_mov_b32 v13, -1\nv_mov_b32 v14, -1\nv_mov_b32 v15, -1\nv_lshlrev_b32 v8, 4, v0\nv_mov_b32 v9, 0\nv_mov_b32 v7, 1")
        a("s_cmp_eq_u32 s53, 0\ns_cbranch_scc1 L_box_x")
        a("s_cmp_eq_u32 s49, 0\ns_cbranch_scc1 L_box_l")
        a("s_mov_b64 exec, 1\nds_add_u32 v9, v7 offset:%d\ns_mov_b64 exec, -1\nv_mov_b32 v7, 0" % L_FLAG)
        self.lds_wait(L_FLAG + self.o.get("boxflag", 4), self.o.get("boxcnt", 4), 2, t=10)
        a("L_box_l:")
        for i in range(4):
            a("buffer_store_dwordx4 v[12:15], v8, s[28:31], s52 offen sc1\nbuffer_store_dwordx4 v[12:15], v8, s[28:31], s52 offen offset:1024 sc1")
            a("s_mov_b64 exec, 0xffff\nbuffer_store_dwordx4 v[12:15], v8, s[28:31], s52 offen offset:2048 sc1\ns_mov_b64 exec, -1\ns_add_u32 s52, s52, s53")
        a("L_box_x:")
        a("s_waitcnt vmcnt(0)")
        a("s_mov_b64 exec, 1\nds_add_u32 v9, v7 offset:%d\ns_mov_b64 exec, -1" % L_FLAG)
        a("s_setpc_b64 s[50:51]")

    def w64(self):
        a = self.a
        WF = 64
        a("L_w64:\nL_wi:")
        a("s_lshl_b32 s46, s3, 10\ns_add_u32 s46, s46, %d" % L_WB)
        for i in range(18):
            a("s_mov_b32 m0, s46\ns_add_u32 s46, s46, 4096")
            a("buffer_load_dwordx4 v%d, s[36:39], s45 offen nt lds" % (204 + i))
            lab = a.label("L_wn")
            a("s_cbranch_vccz %s\ns_waitcnt vmcnt(%d)\n%s:" % (lab, self.o.get("op_win", 6) - 1, lab))
        a("s_setpc_b64 s[50:51]")
        a("L_wf:")
        a("v_mov_b32 v8, 0\nv_mov_b32 v9, 1\ns_waitcnt vmcnt(0)")
        a("s_mov_b64 exec, 1\nds_add_u32 v8, v9 offset:%d\ns_mov_b64 exec, -1" % (L_FLAG + 24))
        self.lds_wait(L_FLAG + 24, "s48", 0, t=10)
        a("L_wr:")
        for tt in range(9):
            for ks in range(2):
                for hh in range(2):
                    r = WF + tt * 8 + ks * 4 + hh * 2
                    areg, off = (222 + tt % 4, (tt // 4) * 128) if tt < 8 else (226, 1024)
                    a("ds_read_b64_tr_b16 v[%d:%d], v%d offset:%d" % (r, r + 1, areg, (32 * ks + 16 * hh) * 1152 + off))
            if tt % 2 == 1:
                a("s_waitcnt lgkmcnt(4)")
        a("s_waitcnt lgkmcnt(0)")
        a("s_setpc_b64 s[50:51]")

    def mm_store(self):
        a = self.a
        WF, BF = 64, 140
        order = [(t, ks) for t in range(8) for ks in range(2)]
        def rd(i):
            t, ks = order[i]
            a("ds_read_b128 v[%d:%d], v%d offset:%d" % (BF + 4 * i, BF + 4 * i + 3, 56 + t, ks * 64))
        a("L_mmo:")
        a("s_barrier")
        a("ds_read_b128 v[28:31], v48\nds_read_b128 v[32:35], v48 offset:64")
        for i in range(12):
            rd(i)
        a("s_waitcnt lgkmcnt(13)")
        a("v_mfma_f32_16x16x32_bf16 v[20:23], v[228:231], v[28:31], 0\nv_mfma_f32_16x16x32_bf16 v[20:23], v[236:239], v[28:31], v[20:23]")
        a("s_waitcnt lgkmcnt(12)")
        a("v_mfma_f32_16x16x32_bf16 v[20:23], v[232:235], v[32:35], v[20:23]\nv_mfma_f32_16x16x32_bf16 v[20:23], v[240:243], v[32:35], v[20:23]")
        a("s_nop 4\ns_branch L_mm_c")
        a("L_mm:")
        a("s_barrier")
        for i in range(12):
            rd(i)
        a("L_mm_c:")
        for i, (t, ks) in enumerate(order):
            a("s_waitcnt lgkmcnt(%d)" % (min(16, i + 12) - i - 1))
            w = WF + 8 * t + 4 * ks
            a("v_mfma_f32_16x16x32_bf16 v[12:15], v[%d:%d], v[%d:%d], %s" % (w, w + 3, BF + 4 * i, BF + 4 * i + 3, "v[20:23]" if i == 0 else "v[12:15]"))
            if i < 2:
                w = WF + 64 + 4 * ks
                a("v_mfma_f32_16x16x32_bf16 v[16:19], v[%d:%d], v[%d:%d], %s" % (w, w + 3, BF + 4 * i, BF + 4 * i + 3, "v[20:23]" if i == 0 else "v[16:19]"))
            if i + 12 < 16:
                rd(i + 12)
        if self.o.get("loc", 1):
            a("s_cmp_lg_u32 s96, 0\ns_cbranch_scc1 L_mm_l")
        a("s_mov_b64 exec, s[56:57]")
        a("buffer_store_dwordx4 v[16:19], v49, s[28:31], s55 offen sc1")
        a("s_mov_b64 exec, -1")
        a("s_nop 4")
        a("buffer_store_dwordx4 v[12:15], v52, s[28:31], s54 offen sc1")
        a("s_setpc_b64 s[50:51]")
        if self.o.get("loc", 1):
            a("L_mm_l:")
            a("s_mov_b64 exec, s[56:57]")
            a("buffer_store_dwordx4 v[16:19], v49, s[28:31], s55 offen")
            a("s_mov_b64 exec, -1")
            a("s_nop 2")
            a("buffer_store_dwordx4 v[12:15], v52, s[28:31], s54 offen")
            a("s_setpc_b64 s[50:51]")

    def out_base(self, base_sreg):
        self.a("s_mul_i32 s54, s3, %d\ns_add_u32 s54, s54, s%d\ns_mul_i32 s55, s3, %d\ns_add_u32 s55, s55, s%d\ns_add_u32 s55, s55, %d" % (8 * TSTR, base_sreg, TSTR, base_sreg, 32 * TSTR))

    def xy(self, sl):
        a = self.a
        a("v_bfe_u32 v16, v0, 1, 2\nv_mov_b32 v17, s3\ns_cmp_eq_u32 s%d, 8\ns_cselect_b64 vcc, -1, 0\nv_and_b32 v24, 1, v0" % sl)
        a("v_cndmask_b32 v18, v16, v17, vcc\nv_cndmask_b32 v19, v17, v16, vcc")
        a("v_lshlrev_b32 v54, 7, v24\nv_lshl_add_u32 v54, v19, 4, v54\nv_lshl_add_u32 v54, v2, 1, v54\nv_lshrrev_b32 v16, 1, v18\nv_lshl_add_u32 v54, v16, 6, v54\nv_and_b32 v16, 1, v18\nv_lshl_add_u32 v54, v16, 3, v54")

    def roles(self):
        a = self.a
        G = 140
        a("L_role:")
        a("s_cmp_eq_u32 s58, 2\ns_cselect_b32 s47, %d, 0" % (9216 - 1152))
        a("s_lshl_b32 s46, s3, 3\nv_lshrrev_b32 v5, 3, v0\nv_add_u32 v5, s46, v5\nv_mul_u32_u24 v5, 7282, v5\nv_lshlrev_b32 v8, 4, v0\ns_lshl_b32 s46, s3, 10\nv_add_u32 v8, s46, v8")
        for i in range(18):
            if i:
                a("v_add_u32 v5, %d, v5\nv_add_u32 v8, 4096, v8" % (32 * 7282))
            a("v_bfe_u32 v4, v5, 17, 2\nv_lshlrev_b32 v4, 5, v4\nv_xor_b32 v4, v4, v8\nv_lshrrev_b32 v6, 16, v5\nv_mad_u32_u24 v%d, v6, s47, v4" % (204 + i))
        a("v_lshrrev_b32 v10, 2, v0\nv_mul_u32_u24 v10, 1152, v10\nv_and_b32 v11, 3, v0\nv_lshl_add_u32 v10, v11, 3, v10\nv_bfe_u32 v11, v0, 3, 2\nv_add_u32 v10, %d, v10" % L_WB)
        a("v_xor_b32 v226, s3, v11\nv_lshl_add_u32 v226, v226, 5, v10")
        a("s_lshl_b32 s46, s3, 8\nv_add_u32 v10, s46, v10")
        for j in range(4):
            a("v_xor_b32 v%d, %d, v11\nv_lshl_add_u32 v%d, v%d, 5, v10" % (222 + j, j, 222 + j, 222 + j))
        a("v_mov_b32 v8, 0\nv_mov_b32 v9, 0\nv_lshlrev_b32 v12, 3, v0\nds_write_b64 v12, v[8:9] offset:%d" % L_ZERO)
        a("v_and_b32 v12, 1, v0\nv_lshlrev_b32 v48, 7, v12\nv_lshl_add_u32 v48, v2, 4, v48\nv_add_u32 v48, %d, v48" % L_OPD)
        a("v_lshrrev_b32 v14, 1, v1\nv_mov_b32 v15, %d" % (L_ZERO + 64))
        for t in range(8):
            a("v_cmp_eq_u32 vcc, %d, v14\ns_nop 1\nv_cndmask_b32 v%d, v15, v48, vcc" % (t, 56 + t))
        a("v_bfe_u32 v52, v0, 3, 1\nv_lshl_add_u32 v52, v52, 2, v2\nv_mul_u32_u24 v52, %d, v52\nv_and_b32 v14, 7, v0\nv_lshl_add_u32 v52, v14, 4, v52" % TSTR)
        a("v_lshlrev_b32 v49, 5, v2\nv_lshl_add_u32 v49, v12, 4, v49")
        a("v_lshlrev_b32 v50, 4, v0")
        a("v_mul_u32_u24 v51, 384, v2\nv_lshl_add_u32 v53, v1, 4, v51")
        a("s_mov_b32 s56, 0x00030003\ns_mov_b32 s57, 0x00030003\ns_mov_b32 s96, 0")
        a("s_waitcnt lgkmcnt(0)")
        a("s_cmp_eq_u32 s58, 2\ns_cbranch_scc1 L_a")
        a("s_mul_i32 s98, s97, 57\ns_lshr_b32 s98, s98, 9\ns_mul_i32 s99, s98, 9\ns_sub_u32 s99, s97, s99")
        a("s_lshr_b32 s46, s98, 2\ns_mul_i32 s46, s46, 9\ns_add_u32 s46, s46, s99\ns_mul_i32 s101, s46, %d\ns_and_b32 s46, s98, 3\ns_mul_i32 s46, s46, 2304\ns_add_u32 s101, s101, s46\ns_add_u32 s101, s101, 0x%x" % (4 * TSTR, WS_M3))
        a("s_sub_u32 s63, s3, 1")
        a("s_cmp_eq_u32 s58, 3\ns_cbranch_scc1 L_ob_s")
        self.srd(36, 12, 4096 * 1152)
        a("s_mul_i32 s45, s59, 73728\ns_mov_b32 s48, 4")
        a("s_cmp_eq_u32 s3, 0\ns_cselect_b64 vcc, %d, 1\ns_call_b64 s[50:51], L_wi\ns_call_b64 s[50:51], L_wf" % self.o.get("w0pace", 0))
        a("s_lshl_b32 s46, s3, 4\nv_add_u32 v4, s46, v1\nv_mul_u32_u24 v4, 1152, v4\nv_lshl_add_u32 v4, v2, 4, v4\nv_add_u32 v4, %d, v4" % L_WB)
        a("v_mov_b32 v28, 0x3f803f80\nv_mov_b32 v29, v28\nv_mov_b32 v30, v28\nv_mov_b32 v31, v28")
        for h in range(2):
            for kk in range(9):
                a("ds_read_b128 v[%d:%d], v4 offset:%d" % (G + 4 * kk, G + 4 * kk + 3, (9 * h + kk) * 64))
            a("s_waitcnt lgkmcnt(0)")
            for kk in range(9):
                a("v_mfma_f32_16x16x32_bf16 v[12:15], v[%d:%d], v[28:31], %s" % (G + 4 * kk, G + 4 * kk + 3, "0" if h + kk == 0 else "v[12:15]"))
        a("s_lshr_b32 s46, s3, 1\ns_lshl_b32 s46, s46, 6\ns_and_b32 s47, s3, 1\ns_lshl_b32 s47, s47, 3\ns_add_u32 s46, s46, s47\nv_lshlrev_b32 v4, 4, v2\nv_add_u32 v4, s46, v4\ns_mov_b32 s40, 0xffff0000\ns_nop 3")
        for r in range(4):
            a("v_mul_f32 v%d, 0x%x, v%d" % (12 + r, f32(-1.0 / 576), 12 + r))
        a("v_cvt_pk_bf16_f32 v16, v12, v13\nv_cvt_pk_bf16_f32 v17, v14, v15")
        a("v_lshlrev_b32 v20, 16, v16\nv_and_b32 v21, s40, v16\nv_lshlrev_b32 v22, 16, v17\nv_and_b32 v23, s40, v17")
        for r in range(4):
            a("v_sub_f32 v%d, v%d, v%d" % (12 + r, 12 + r, 20 + r))
        a("v_cvt_pk_bf16_f32 v18, v12, v13\nv_cvt_pk_bf16_f32 v19, v14, v15")
        a("ds_write_b64 v4, v[16:17] offset:%d\nds_write_b64 v4, v[18:19] offset:%d" % (L_RM, L_RM + 128))
        a("s_mov_b64 exec, 1\nds_add_u32 v8, v9 offset:%d\ns_mov_b64 exec, -1" % (L_FLAG + 28))
        self.lds_wait(L_FLAG + 28, 4, 1, t=10)
        a("v_lshlrev_b32 v4, 4, v2")
        for q in range(4):
            a("ds_read_b128 v[%d:%d], v4 offset:%d" % (228 + 4 * q, 231 + 4 * q, L_RM + 64 * q))
        a("v_lshrrev_b32 v4, 3, v1\nv_lshlrev_b32 v55, 6, v4\nv_and_b32 v4, 3, v0\nv_lshl_add_u32 v55, v4, 4, v55\nv_bfe_u32 v5, v0, 2, 1\nv_lshl_add_u32 v55, v5, 3, v55\nv_lshl_add_u32 v55, v2, 1, v55")
        a("s_lshl_b32 s46, s63, 7\nv_add_u32 v55, s46, v55")
        a("s_lshl_b32 s46, s59, 7\ns_add_u32 s46, s46, 0x%x" % WS_M2)
        self.out_base(46)
        a("s_waitcnt lgkmcnt(0)")
        a("L_ob_s:")
        self.srd(36, 20, 4608 * 1152)
        self.xy(99)
        a("s_mul_i32 s45, s97, 73728")
        a("s_cmp_lg_u32 s3, 0\ns_cbranch_scc1 L_ob_1")
        a("s_call_b64 s[50:51], L_finish")
        a("s_branch L_ob_p")
        a("L_ob_1:")
        a("s_cmp_eq_u32 s3, 3\ns_cbranch_scc1 L_ob_x")
        a("s_cmp_lg_u32 s58, 1\ns_cbranch_scc1 L_ob_g")
        a("s_mov_b64 vcc, 1\ns_call_b64 s[50:51], L_wi")
        a("s_branch L_ob_g")
        a("L_ob_x:")
        a("s_mov_b32 s52, s101\ns_cmp_eq_u32 s58, 0\ns_cselect_b32 s53, 0, %d\ns_cmp_eq_u32 s58, 1\ns_cselect_b32 s49, 1, 0" % TSTR)
        a("s_call_b64 s[50:51], L_box")
        a("L_ob_g:")
        self.lds_wait(L_FLAG, 7, 1)
        a("L_ob_p:")
        a("s_mul_i32 s45, s97, 73728\ns_mov_b32 s48, 4")
        a("s_cmp_eq_u32 s58, 3\ns_cbranch_scc1 L_ob_li")
        a("s_mov_b32 s48, 8")
        a("s_cmp_ge_u32 s63, 2\ns_cbranch_scc1 L_ob_2")
        a("s_mul_i32 s52, s59, 6144\ns_mul_i32 s53, s63, 3072\ns_add_u32 s52, s52, s53\ns_add_u32 s52, s52, 0x%x" % WS_M1)
        self.poll_begin("L_op_poll")
        a("buffer_load_dwordx2 v[12:13], v51, s[28:31], s52 offen offset:256 sc1")
        a("buffer_load_dwordx2 v[14:15], v51, s[28:31], s52 offen offset:%d sc1" % (256 + 1536))
        a("buffer_load_dwordx4 v[16:19], v53, s[28:31], s52 offen sc1")
        a("buffer_load_dwordx4 v[20:23], v53, s[28:31], s52 offen offset:1536 sc1")
        self.poll_end("L_op_poll", range(12, 24), 24)
        self.stamp(5)
        a("v_max_f32 v24, v12, v14")
        a("v_mov_b32 v25, v24\ns_nop 1\nv_permlane16_swap_b32 v24, v25\nv_max_f32 v24, v24, v25")
        a("v_mov_b32 v25, v24\ns_nop 1\nv_permlane32_swap_b32 v24, v25\nv_max_f32 v24, v24, v25")
        a("v_sub_f32 v12, v12, v24\nv_sub_f32 v14, v14, v24\nv_exp_f32 v12, v12\nv_exp_f32 v14, v14\ns_nop 0")
        a("v_mul_f32 v13, v12, v13\nv_fmac_f32 v13, v14, v15")
        for r in range(4):
            a("v_mul_f32 v%d, v12, v%d" % (16 + r, 16 + r))
        a("v_mov_b32 v25, v13")
        for r in range(4):
            a("v_fmac_f32 v%d, v14, v%d" % (16 + r, 20 + r))
        a("v_permlane16_swap_b32 v13, v25\nv_add_f32 v13, v13, v25")
        a("v_permlane32_swap_b32 v16, v18\nv_mov_b32 v25, v13\nv_permlane32_swap_b32 v17, v19")
        a("v_add_f32 v16, v16, v18\nv_add_f32 v17, v17, v19")
        a("v_permlane32_swap_b32 v13, v25\nv_add_f32 v13, v13, v25")
        a("v_permlane16_swap_b32 v16, v17\nv_rcp_f32 v13, v13\nv_add_f32 v16, v16, v17")
        a("v_mul_f32 v16, v16, v13\nv_cvt_pk_bf16_f32 v16, v16, v16")
        a("ds_write_b16 v55, v16 offset:%d" % L_OPD)
        a("s_waitcnt lgkmcnt(0)")
        a("L_ob_2:")
        a("s_call_b64 s[50:51], L_mmo")
        self.stamp(6)
        a("s_lshl_b32 s46, s59, 5\ns_add_u32 s46, s46, 0x%x\ns_cmp_eq_u32 s3, 1\ns_cselect_b64 exec, 3, 0" % WS_MU)
        a("buffer_store_dwordx4 v[20:23], v50, s[28:31], s46 offen sc1")
        a("s_mov_b64 exec, -1")
        a("s_cmp_eq_u32 s58, 0\ns_cbranch_scc1 L_ob_end")
        a("s_cmp_lt_u32 s63, 2\ns_cbranch_scc1 L_ob_3")
        a("L_ob_li:")
        a("s_mov_b64 vcc, 0\ns_call_b64 s[50:51], L_wi")
        a("L_ob_3:")
        a("s_call_b64 s[50:51], L_wf")
        self.stamp(12)
        a("s_lshl_b32 s46, s97, 7\ns_add_u32 s46, s46, 0x%x" % WS_M4)
        self.out_base(46)
        a("s_mul_i32 s52, s3, %d\ns_add_u32 s52, s52, s101" % TSTR)
        a("s_mul_i32 s41, s98, 1152\ns_add_u32 s41, s41, 0x%x" % WS_ST)
        a("s_mov_b32 s42, 0x00ff00ff\ns_mov_b32 s43, 0x00ff00ff\ns_mov_b32 s46, -1\ns_mov_b32 s47, 15")
        a("s_mov_b32 s48, 0x%x\ns_mov_b32 s49, 0x%x" % (f32(0.044715), f32(-2.0 * math.sqrt(2.0 / math.pi) * LOG2E)))
        a("s_mov_b32 s44, 0xaaaaaaaa\ns_mov_b32 s45, 0xaaaaaaaa")
        a("v_lshrrev_b32 v4, 2, v0\nv_lshlrev_b32 v4, 7, v4\nv_and_b32 v5, 3, v0\nv_lshl_add_u32 v4, v5, 3, v4")
        for r in (12, 13, 20, 21, 22, 23, G + 8, G + 9, G + 10, G + 11):
            a("v_mov_b32 v%d, 0" % r)
        a("s_mov_b64 exec, s[46:47]")
        self.poll_begin("L_s_poll")
        a("buffer_load_dwordx2 v[12:13], v4, s[28:31], s41 offen sc1")
        self.poll_end("L_s_poll", [12, 13], 14)
        a("s_mov_b64 exec, -1")
        def b_loads():
            a("buffer_load_dwordx4 v[%d:%d], v50, s[28:31], s52 offen sc1" % (G, G + 3))
            a("buffer_load_dwordx4 v[%d:%d], v50, s[28:31], s52 offen offset:1024 sc1" % (G + 4, G + 7))
            a("s_mov_b64 exec, 0xffff")
            a("buffer_load_dwordx4 v[%d:%d], v50, s[28:31], s52 offen offset:2048 sc1" % (G + 8, G + 11))
            a("s_mov_b64 exec, -1")
        b_loads()
        a("v_permlane32_swap_b32 v12, v13\nv_add_f32 v12, v12, v13\nv_mov_b32 v13, v12\ns_nop 1\nv_permlane16_swap_b32 v12, v13\nv_add_f32 v12, v12, v13")
        self.row_reduce("v_add_f32", [12])
        a("v_mov_b32 v14, 0x%x\nv_fmac_f32 v14, 0x%x, v12\nv_rsq_f32 v14, v14\ns_nop 0\nv_mov_b32 v15, v14\ns_nop 1\nv_permlane32_swap_b32 v14, v15" % (f32(1e-5), f32(1.0 / 576)))
        a("v_cndmask_b32 v14, v14, v15, s[44:45]")
        a("s_mov_b32 s60, 0\ns_branch L_b_c\nL_b_poll:")
        b_loads()
        a("L_b_c:")
        for i in range(1, 3):
            a("s_waitcnt vmcnt(%d)" % (2 - i))
            a("v_pk_add_f32 v[%d:%d], v[%d:%d], v[%d:%d]" % (G, G + 1, G, G + 1, G + 4 * i, G + 4 * i + 1))
            a("v_pk_add_f32 v[%d:%d], v[%d:%d], v[%d:%d]" % (G + 2, G + 3, G + 2, G + 3, G + 4 * i + 2, G + 4 * i + 3))
        a("s_add_u32 s60, s60, 1\ns_cmp_gt_u32 s60, %d" % SPIN)
        a("v_permlane32_swap_b32 v%d, v%d\nv_permlane32_swap_b32 v%d, v%d" % (G, G + 2, G + 1, G + 3))
        a("v_add_f32 v%d, v%d, v%d\nv_add_f32 v%d, v%d, v%d\ns_nop 1" % (G, G, G + 2, G + 1, G + 1, G + 3))
        a("v_permlane16_swap_b32 v%d, v%d\nv_add_f32 v12, v%d, v%d" % (G, G + 1, G, G + 1))
        a("v_cmp_u_f32 vcc, v12, v12\nv_mul_f32 v12, v12, v14")
        a("s_cbranch_scc1 L_b_poll_x\ns_cbranch_vccnz L_b_poll\nL_b_poll_x:")
        self.stamp(13)
        a("v_mul_f32 v13, v12, v12\nv_fma_f32 v13, v13, s48, 1.0\nv_mul_f32 v15, s49, v12\nv_mul_f32 v13, v13, v15")
        a("v_exp_f32 v13, v13\nv_mul_f32_dpp v12, v12, v12 row_ror:8 row_mask:0xf bank_mask:0xf\nv_add_f32 v13, 1.0, v13\nv_rcp_f32 v13, v13\ns_mov_b64 exec, s[42:43]\nv_mul_f32 v12, v12, v13")
        a("v_cvt_pk_bf16_f32 v12, v12, v12")
        a("ds_write_b16 v54, v12 offset:%d" % L_OPD)
        a("s_mov_b64 exec, -1")
        a("s_waitcnt lgkmcnt(0)")
        a("s_call_b64 s[50:51], L_mm")
        self.stamp(7)
        a("L_ob_end:")
        if self.diag:
            a("s_cmp_lg_u32 s3, 1\ns_cbranch_scc1 L_opd0")
            self.flush_stamps([5])
            a("L_opd0:")
            a("s_cmp_lg_u32 s3, 0\ns_cbranch_scc1 L_end")
            self.flush_stamps([0, 1, 2, 3, 4, 6, 7, 12, 13, 14])
        a("s_endpgm")

        a("L_a:")
        a("s_lshl_b32 s59, s62, 2\ns_add_u32 s59, s59, s3")
        self.xy(62)
        self.srd(36, 4, 2304)
        a("v_mul_u32_u24 v51, 1152, v24\nv_lshl_add_u32 v51, v18, 5, v51\nv_lshl_add_u32 v51, v19, 3, v51\nv_lshl_add_u32 v51, v2, 1, v51")
        a("s_lshl_b32 s45, s62, 7\nv_add_u32 v51, s45, v51")
        a("buffer_load_ushort v53, v51, s[36:39], 0 offen")
        a("v_lshlrev_b32 v55, 2, v24")
        a("s_lshr_b32 s98, s63, 1\ns_lshr_b32 s46, s98, 2\ns_mul_i32 s46, s46, %d\ns_and_b32 s47, s98, 3\ns_mul_i32 s47, s47, 9\ns_add_u32 s47, s47, s62\ns_lshl_b32 s47, s47, 1\ns_and_b32 s99, s63, 1\ns_add_u32 s47, s47, s99\ns_lshl_b32 s47, s47, 7\ns_add_u32 s46, s46, s47\ns_add_u32 s46, s46, 0x%x" % (36 * TSTR, WS_M3))
        self.out_base(46)
        a("s_waitcnt vmcnt(0)")
        a("v_lshlrev_b32 v53, 16, v53")
        a("s_cmp_eq_u32 s99, 0\ns_cselect_b32 s36, s16, s18\ns_cselect_b32 s37, s17, s19\ns_mov_b32 s38, %d\ns_mov_b32 s39, 0x20000" % (576 * 9216))
        a("s_cmp_lg_u32 s3, 0\ns_cbranch_scc1 L_a_1")
        a("s_call_b64 s[50:51], L_finish")
        a("s_branch L_a_2")
        a("L_a_1:")
        if self.o.get("a12", 0):
            a("s_cmp_gt_u32 s3, %d\ns_cbranch_scc1 L_a_3" % self.o.get("a12"))
            self.lds_wait(L_FLAG + 4, self.o.get("a12cnt", 4), 1, t=12)
            a("s_branch L_a_2\nL_a_3:")
        a("s_cmp_lg_u32 s3, 3\ns_cbranch_scc1 L_a_w")
        a("s_lshl_b32 s52, s62, 2\ns_add_u32 s52, s52, s63\ns_mul_i32 s52, s52, %d\ns_add_u32 s52, s52, 0x%x\ns_cmp_lt_u32 s63, 4\ns_cselect_b32 s53, 2304, 0\ns_mov_b32 s49, 0" % (TSTR, WS_M4))
        a("s_call_b64 s[50:51], L_box")
        a("L_a_w:")
        self.lds_wait(L_FLAG, 7, 1, t=12)
        a("L_a_2:")
        a("s_mul_i32 s45, s62, %d\ns_mul_i32 s46, s98, 1152\ns_add_u32 s45, s45, s46" % (64 * 9216))
        a("s_mov_b64 vcc, 0\ns_call_b64 s[50:51], L_wi")
        a("ds_read_b32 v47, v55 offset:%d" % L_MX)
        a("s_mov_b32 s40, 0xffff0000")
        a("s_mul_i32 s44, s59, %d\ns_add_u32 s44, s44, 0x%x\ns_add_u32 s45, s44, 4096\ns_add_u32 s46, s44, 8192" % (TSTR, WS_M2))
        a("s_mul_i32 s41, s98, 9\ns_add_u32 s41, s41, s62\ns_lshl_b32 s41, s41, 7\ns_lshl_b32 s47, s3, 3\ns_add_u32 s41, s41, s47\ns_add_u32 s41, s41, 0x%x" % WS_ST)
        a("s_mov_b32 s42, 0x00ff00ff\ns_mov_b32 s43, 0x00ff00ff\ns_cmp_eq_u32 s99, 0\ns_cselect_b64 s[48:49], 3, 0")
        for r in range(20, 24):
            a("v_mov_b32 v%d, 0" % r)
        a("s_waitcnt vmcnt(0) lgkmcnt(0)")
        a("v_sub_f32 v47, v53, v47")
        a("s_barrier")
        if self.o.get("loc", 1):
            a("ds_read_b32 v44, v20 offset:%d" % (L_MX + 8))
        self.stamp(12)
        self.gather_sum("L_r1_poll", G, 8, 44, between=lambda: a("s_call_b64 s[50:51], L_wr" + ("\nv_readfirstlane_b32 s96, v44" if self.o.get("loc", 1) else "")))
        self.stamp(5)
        a("v_add_f32 v12, v47, v%d\nv_mov_b32 v46, v%d" % (G, G))
        a("v_cvt_pk_bf16_f32 v13, v12, v12\nv_mul_f32 v12, v12, v12")
        a("s_mov_b64 exec, s[42:43]\nds_write_b16 v54, v13 offset:%d\ns_mov_b64 exec, -1" % L_OPD)
        a("v_mov_b32 v14, v12\ns_nop 1\nv_permlane32_swap_b32 v12, v14\nv_add_f32 v12, v12, v14")
        a("v_mov_b32 v14, v12\ns_nop 1\nv_permlane16_swap_b32 v12, v14\nv_add_f32 v12, v12, v14\ns_nop 1")
        self.dpp("v_add_f32", 12, 12, 12, "quad_perm:[2,3,0,1]")
        a("s_nop 1")
        self.dpp("v_add_f32", 45, 12, 12, "row_ror:4")
        a("s_mov_b64 exec, s[48:49]")
        a("s_cmp_lg_u32 s96, 0\ns_cbranch_scc1 L_a_sl")
        a("buffer_store_dword v45, v55, s[28:31], s41 offen sc1\ns_branch L_a_sx")
        a("L_a_sl:\nbuffer_store_dword v45, v55, s[28:31], s41 offen\nL_a_sx:")
        a("s_mov_b64 exec, -1")
        a("s_waitcnt lgkmcnt(0)")
        a("s_call_b64 s[50:51], L_mm")
        self.stamp(6)
        a("s_cmp_eq_u32 s3, s63\ns_cbranch_scc1 L_a_red")
        if self.diag:
            a("s_cmp_lg_u32 s3, 0\ns_cbranch_scc1 L_end")
            self.flush_stamps([0, 1, 2, 3, 4, 5, 6, 12, 14])
        a("s_endpgm")
        a("L_a_red:")
        self.srd(36, 22, 2304)
        a("s_mov_b32 s47, 0x%x" % WS_MU)
        self.poll_begin("L_mu_poll")
        a("buffer_load_dword v12, v50, s[28:31], s47 offen sc1\nbuffer_load_dword v13, v50, s[28:31], s47 offen offset:1024 sc1")
        self.poll_end("L_mu_poll", [12, 13], 14)
        a("v_add_f32 v12, v12, v13")
        self.xrow("v_add_f32", 12, 13)
        for ctrl in ("row_ror:8", "row_ror:4", "row_ror:2"):
            a("s_nop 1")
            self.dpp("v_add_f32", 12, 12, 12, ctrl)
        a("v_sub_f32 v46, v46, v12")
        a("v_cvt_pk_bf16_f32 v46, v46, v46\nv_and_b32 v46, s40, v46\nv_add_f32 v53, v53, v46")
        a("v_cvt_pk_bf16_f32 v53, v53, v53\nv_and_b32 v53, s40, v53")
        a("s_add_u32 s44, s44, 0x%x\ns_add_u32 s45, s45, 0x%x\ns_add_u32 s46, s46, 0x%x" % ((WS_M4 - WS_M2,) * 3))
        self.gather_sum("L_r2_poll", G, 9, 44)
        self.stamp(7)
        a("v_cvt_pk_bf16_f32 v%d, v%d, v%d\nv_and_b32 v%d, s40, v%d" % (G, G, G, G, G))
        a("v_add_f32 v53, v53, v%d" % G)
        a("v_cvt_pk_bf16_f32 v53, v53, v53")
        a("s_mov_b64 exec, s[42:43]")
        a("buffer_store_short v53, v51, s[36:39], 0 offen")
        a("s_cmp_lg_u32 s59, 0\ns_cbranch_scc1 L_red_end")
        a("s_mov_b64 exec, 1\nv_mov_b32 v16, s61\nv_mov_b32 v17, 0")
        a("buffer_store_dword v16, v17, s[28:31], 0 offen offset:%d sc1" % WS_EPOCH)
        a("L_red_end:")
        self.stamp(11)
        if self.diag:
            self.flush_stamps([7, 11])
            a("s_cmp_lg_u32 s3, 0\ns_cbranch_scc1 L_end")
            self.flush_stamps([0, 1, 2, 3, 4, 5, 6, 12, 14])
        a("s_endpgm")

    def gather_sum(self, name, G, n, sbase, between=None, sleep=0):
        a = self.a
        def loads():
            for i in range(n):
                a("buffer_load_dwordx4 v[%d:%d], v50, s[28:31], s%d offen offset:%d sc1" % (G + 4 * i, G + 4 * i + 3, sbase + i // 4, (i % 4) * 1024))
        if between is not None:
            loads()
            between()
            a("s_mov_b32 s60, 0\ns_branch %s_c\n%s:" % (name, name))
            if sleep:
                a("s_sleep %d" % sleep)
            loads()
            a("%s_c:" % name)
        else:
            self.poll_begin(name)
            loads()
        for i in range(1, n):
            a("s_waitcnt vmcnt(%d)" % (n - 1 - i))
            a("v_pk_add_f32 v[%d:%d], v[%d:%d], v[%d:%d]" % (G, G + 1, G, G + 1, G + 4 * i, G + 4 * i + 1))
            a("v_pk_add_f32 v[%d:%d], v[%d:%d], v[%d:%d]" % (G + 2, G + 3, G + 2, G + 3, G + 4 * i + 2, G + 4 * i + 3))
        a("s_add_u32 s60, s60, 1\ns_cmp_gt_u32 s60, %d" % SPIN)
        a("v_permlane32_swap_b32 v%d, v%d\nv_permlane32_swap_b32 v%d, v%d" % (G, G + 2, G + 1, G + 3))
        a("v_add_f32 v%d, v%d, v%d\nv_add_f32 v%d, v%d, v%d" % (G, G, G + 2, G + 1, G + 1, G + 3))
        a("s_nop 1")
        a("v_permlane16_swap_b32 v%d, v%d" % (G, G + 1))
        a("v_add_f32 v%d, v%d, v%d" % (G, G, G + 1))
        a("s_nop 1")
        self.dpp("v_add_f32", G, G, G, "row_ror:8")
        a("v_cmp_u_f32 vcc, v%d, v%d" % (G, G))
        a("s_cbranch_scc1 %s_x" % name)
        a("s_cbranch_vccnz %s\n%s_x:" % (name, name))

    def build(self):
        a = self.a
        a("s_load_dwordx16 s[4:19], s[0:1], 0\ns_load_dwordx8 s[20:27], s[0:1], 64")
        a("s_cmp_ge_u32 s2, 256\ns_cbranch_scc1 L_end")
        if self.diag:
            for k in range(15):
                a("s_mov_b64 s[%d:%d], 0" % (64 + 2 * k, 65 + 2 * k))
        self.stamp(0)
        if self.o.get("padto", 0) or self.o.get("dbgtime", 0) or self.o.get("padmin", 0):
            a("s_memrealtime s[90:91]")
        a("v_lshrrev_b32 v1, 6, v0\nv_and_b32 v0, 63, v0")
        a("v_readfirstlane_b32 s3, v1")
        a("v_mov_b32 v4, 0\nv_mov_b32 v5, 0\nv_mov_b32 v6, 0\nv_mov_b32 v7, 0")
        a("ds_write_b128 v4, v[4:7] offset:%d\nds_write_b128 v4, v[4:7] offset:%d" % (L_FLAG, L_FLAG + 16))
        if self.o.get("order", 1) == 1:
            a("s_cmp_lt_u32 s3, 4\ns_cbranch_scc1 L_service")
            self.streaming()
            a("L_service:")
            self.service()
        else:
            a("s_cmp_ge_u32 s3, 4\ns_cbranch_scc1 L_stream")
            self.service()
            self.streaming()
        a("L_end:\ns_endpgm")
        return wrap(a.text(), 256, 512, LDS_BYTES, 256, 102, accum=256)


if __name__ == "__main__":
    import argparse
    ap = argparse.ArgumentParser()
    ap.add_argument("out")
    ap.add_argument("--diag", action="store_true")
    ap.add_argument("--opt", action="append", default=[])
    args = ap.parse_args()
    opts = {}
    for o in args.opt:
        k, v = o.split("=", 1)
        try: v = int(v)
        except ValueError: pass
        opts[k] = v
    open(args.out, "w").write(Gen(diag=args.diag, nback=opts.get('nback', 5), win=opts.get('win', 8), opts=opts).build())
```

```python
import sys, struct, math
from asmlib import *

def f32(x):
    return struct.unpack("<I", struct.pack("<f", x))[0]

WS_EPOCH = 0x0
WS_XC = 0x4000
WS_CTR = 0x1000
WS_MQ = 0x180000
SB = 0x10000
WS_M1 = SB + 0x0
TSTR = 72 * 128
WS_M2 = SB + 0x60000
WS_M4 = SB + 0xC0000
WS_M3 = 0x200000
WS_MU = SB + 0xB1000
WS_ST = SB + 0xB2000
RESET_PER_WG = 4096
WS_STAMP = 0x8000000
NSTAMP = 16
L_Q = 0x0
L_XN = 0x200
L_MX = 0xB00
L_PML = 0xB80
L_FLAG = 0xBC0
L_PACC = 0xC00
L_ZERO = 0x1C00
L_OPD = 0x1E00
L_WQ = 0x2000
L_WB = 0x6800
LDS_BYTES = L_WB + 72 * 1024
L_RM = L_OPD + 256
SPIN = 200000
LOG2E = 1.4426950408889634
EPOCH_INC = 0x9E3779B9


class Gen:
    def __init__(self, diag=False, nback=4, win=8, opts=None):
        self.a = Asm()
        self.diag = diag
        self.nback = nback
        self.win = win
        self.o = opts or {}

    def stamp(self, k):
        if self.diag:
            self.a("s_memrealtime s[%d:%d]" % (64 + 2 * k, 65 + 2 * k))

    def flush_stamps(self, ks):
        if not self.diag:
            return
        a = self.a
        a("s_waitcnt lgkmcnt(0)")
        a("s_mov_b64 exec, 1")
        a("s_mul_i32 s100, s2, %d\ns_add_u32 s100, s100, 0x%x" % (NSTAMP * 8, WS_STAMP))
        a("v_mov_b32 v252, 0")
        for k in ks:
            a("v_mov_b32 v250, s%d\nv_mov_b32 v251, s%d" % (64 + 2 * k, 65 + 2 * k))
            a("buffer_store_dwordx2 v[250:251], v252, s[28:31], s100 offen offset:%d" % (8 * k))
            a("s_nop 1")

    def srd(self, d, lo, size, add=None):
        a = self.a
        if add is None:
            a("s_mov_b32 s%d, s%d\ns_mov_b32 s%d, s%d" % (d, lo, d + 1, lo + 1))
        else:
            a("s_add_u32 s%d, s%d, %s\ns_addc_u32 s%d, s%d, 0" % (d, lo, add, d + 1, lo + 1))
        a("s_mov_b32 s%d, 0x%x\ns_mov_b32 s%d, 0x20000" % (d + 2, size, d + 3))

    def xrow(self, op, x, t, halves=True, rows=True):
        a = self.a
        if rows:
            a("v_mov_b32 v%d, v%d\ns_nop 1\nv_permlane16_swap_b32 v%d, v%d\ns_nop 0\n%s v%d, v%d, v%d" % (t, x, x, t, op, x, x, t))
        if halves:
            a("v_mov_b32 v%d, v%d\ns_nop 1\nv_permlane32_swap_b32 v%d, v%d\ns_nop 0\n%s v%d, v%d, v%d" % (t, x, x, t, op, x, x, t))

    def dpp(self, op, d, s0, s1, ctrl, bank=0xf):
        self.a("%s_dpp v%d, v%d, v%d %s row_mask:0xf bank_mask:0x%x" % (op, d, s0, s1, ctrl, bank))

    def row_reduce(self, op, regs):
        for ctrl in ("row_ror:8", "row_ror:4", "row_ror:2", "row_ror:1"):
            if len(regs) < 3:
                self.a("s_nop 1")
            for r in regs:
                self.dpp(op, r, r, r, ctrl)

    def oct_reduce(self, op, regs):
        for ctrl in ("row_half_mirror", "quad_perm:[1,0,3,2]", "quad_perm:[2,3,0,1]"):
            if len(regs) < 3:
                self.a("s_nop 1")
            for r in regs:
                self.dpp(op, r, r, r, ctrl)

    def layernorm(self, X, T, ldsaddr):
        a = self.a
        s, t, m, r = T, T + 1, T + 2, T + 3
        D = T + 4
        a("v_add_f32 v%d, v%d, v%d" % (s, X, X + 1))
        a("v_add_f32 v%d, v%d, v%d" % (t, X + 2, X + 3))
        for i in range(4, 18, 2):
            a("v_add_f32 v%d, v%d, v%d\nv_add_f32 v%d, v%d, v%d" % (s, s, X + i, t, t, X + i + 1))
        a("v_add_f32 v%d, v%d, v%d" % (s, s, t))
        self.row_reduce("v_add_f32", [s])
        self.xrow("v_add_f32", s, t, halves=False)
        a("v_mul_f32 v%d, 0x%x, v%d" % (m, f32(1.0 / 576), s))
        a("v_lshrrev_b32 v%d, 5, v0\nv_lshlrev_b32 v%d, 2, v%d\nds_write_b32 v%d, v%d offset:%d" % (r, r, r, r, m, L_MX))
        for i in range(18):
            a("v_sub_f32 v%d, v%d, v%d" % (D + i, X + i, m))
        a("v_mul_f32 v%d, v%d, v%d\nv_mul_f32 v%d, v%d, v%d" % (s, D, D, t, D + 1, D + 1))
        for i in range(2, 18, 2):
            a("v_fmac_f32 v%d, v%d, v%d\nv_fmac_f32 v%d, v%d, v%d" % (s, D + i, D + i, t, D + i + 1, D + i + 1))
        a("v_add_f32 v%d, v%d, v%d" % (s, s, t))
        self.row_reduce("v_add_f32", [s])
        self.xrow("v_add_f32", s, t, halves=False)
        a("v_mul_f32 v%d, 0x%x, v%d" % (s, f32(1.0 / 576), s))
        a("v_cvt_pk_bf16_f32 v%d, v%d, v%d" % (t, m, s))
        a("s_mov_b32 s40, 0xffff0000")
        a("v_lshlrev_b32 v%d, 16, v%d\nv_and_b32 v%d, s40, v%d" % (m, t, s, t))
        a("v_add_f32 v%d, 0x%x, v%d" % (s, f32(1e-5), s))
        a("v_cvt_pk_bf16_f32 v%d, v%d, v%d" % (s, s, s))
        a("v_and_b32 v%d, s40, v%d" % (s, s))
        a("v_sqrt_f32 v%d, v%d\ns_nop 0" % (s, s))
        a("v_cvt_pk_bf16_f32 v%d, v%d, v%d" % (s, s, s))
        a("v_and_b32 v%d, s40, v%d" % (s, s))
        a("v_rcp_f32 v%d, v%d" % (r, s))
        for i in range(18):
            a("v_sub_f32 v%d, v%d, v%d" % (D + i, X + i, m))
        for j in range(9):
            a("v_cvt_pk_bf16_f32 v%d, v%d, v%d" % (D + 2 * j + 1, D + 2 * j, D + 2 * j + 1))
        for j in range(9):
            a("v_lshlrev_b32 v%d, 16, v%d\nv_and_b32 v%d, s40, v%d" % (D + 2 * j, D + 2 * j + 1, D + 2 * j + 1, D + 2 * j + 1))
        for i in range(18):
            a("v_mul_f32 v%d, v%d, v%d" % (D + i, D + i, r))
        for j in range(9):
            a("v_cvt_pk_bf16_f32 v%d, v%d, v%d" % (D + 2 * j, D + 2 * j, D + 2 * j + 1))
        for j in range(9):
            a("ds_write_b32 v%d, v%d offset:%d" % (ldsaddr, D + 2 * j, j * 128))

    def poll_begin(self, name):
        self.a("s_mov_b32 s60, 0\n%s:" % name)

    def poll_end(self, name, regs, t):
        a = self.a
        a("s_waitcnt vmcnt(0)")
        regs = list(regs)
        first = True
        while regs:
            if first:
                if len(regs) >= 3:
                    a("v_max3_u32 v%d, v%d, v%d, v%d" % (t, regs[0], regs[1], regs[2])); regs = regs[3:]
                else:
                    a("v_max_u32 v%d, v%d, v%d" % (t, regs[0], regs[-1])); regs = regs[2:]
                first = False
            elif len(regs) >= 2:
                a("v_max3_u32 v%d, v%d, v%d, v%d" % (t, t, regs[0], regs[1])); regs = regs[2:]
            else:
                a("v_max_u32 v%d, v%d, v%d" % (t, t, regs[0])); regs = []
        a("v_cmp_eq_u32 vcc, -1, v%d" % t)
        a("s_add_u32 s60, s60, 1\ns_cmp_gt_u32 s60, %d\ns_cbranch_scc1 %s_x" % (SPIN, name))
        a("s_cbranch_vccnz %s\n%s_x:" % (name, name))

    def ticket(self, KR, VR, ring):
        a = self.a
        QA, QB, SA, SBR, T0, T1, MT, M, ML, LS, ACC, AF, MK = 10, 14, 18, 22, 26, 27, 28, 29, 30, 31, 32, 36, 5
        for j in range(4):
            if ring and j > 0:
                a("s_waitcnt vmcnt(7)")
            if ring and j == self.o.get("cpos", 3):
                self.claim()
            k = KR + 4 * j
            for e in range(4):
                a("v_dot2_f32_bf16 v%d, v%d, v%d, %s" % (SA + j, k + e, QA + e, "0" if e == 0 else "v%d" % (SA + j)))
                a("v_dot2_f32_bf16 v%d, v%d, v%d, %s" % (SBR + j, k + e, QB + e, "0" if e == 0 else "v%d" % (SBR + j)))
            if ring:
                a("buffer_load_dwordx4 v[%d:%d], v1, s[36:39], s45 offen offset:%d nt" % (k, k + 3, j * 1024))
        for j in range(4):
            self.dpp("v_add_f32", SA + j, SA + j, SA + j, "row_ror:8", 0x3)
        for j in range(4):
            self.dpp("v_add_f32", SA + j, SBR + j, SBR + j, "row_ror:8", 0xc)
        self.oct_reduce("v_add_f32", [SA + j for j in range(4)])
        for rnd in range(2):
            a("v_cvt_pk_bf16_f32 v%d, v%d, v%d\nv_cvt_pk_bf16_f32 v%d, v%d, v%d" % (T0, SA, SA + 1, T1, SA + 2, SA + 3))
            a("v_lshlrev_b32 v%d, 16, v%d\nv_and_b32 v%d, s46, v%d" % (SA, T0, SA + 1, T0))
            a("v_lshlrev_b32 v%d, 16, v%d\nv_and_b32 v%d, s46, v%d" % (SA + 2, T1, SA + 3, T1))
            if rnd == 0:
                for j in range(4):
                    a("v_mul_f32 v%d, s47, v%d" % (SA + j, SA + j))
        a("v_max3_f32 v%d, v%d, v%d, v%d\nv_max_f32 v%d, v%d, v%d" % (MT, SA, SA + 1, SA + 2, MT, MT, SA + 3))
        a("v_cmp_gt_f32 vcc, v%d, v%d" % (MT, M))
        lab = a.label("L_nors")
        a("s_cbranch_vccz %s\ns_call_b64 s[50:51], L_rescale\n%s:" % (lab, lab))
        for j in range(4):
            a("v_fma_f32 v%d, v%d, s48, -v%d" % (SA + j, SA + j, ML))
        for j in range(4):
            a("v_exp_f32 v%d, v%d" % (SA + j, SA + j))
        a("s_nop 0")
        for j in range(4):
            a("v_cvt_pk_bf16_f32 v%d, v%d, v%d" % (SBR + j, SA + j, SA + j))
        a("v_add_f32 v%d, v%d, v%d\nv_add_f32 v%d, v%d, v%d" % (T0, SA, SA + 1, T1, SA + 2, SA + 3))
        extra = {0: "v_add_f32 v%d, v%d, v%d\nv_mov_b32 v%d, v%d" % (T0, T0, T1, T1, T0),
                 1: "v_permlane16_swap_b32 v%d, v%d\nv_add_f32 v%d, v%d, v%d\nv_mov_b32 v%d, v%d" % (T0, T1, T0, T0, T1, T1, T0),
                 2: "v_permlane32_swap_b32 v%d, v%d\nv_add_f32 v%d, v%d, v%d\nv_add_f32 v%d, v%d, v%d" % (T0, T1, T0, T0, T1, LS, LS, T0),
                 3: "ds_write_b64 v9, v[%d:%d]" % (ML, LS)}
        for j in range(4):
            a(extra[j])
            for e in range(4):
                a("v_and_b32 v%d, v%d, v%d" % (AF + 4 * j + e, MK + e, SBR + j))
        a("s_nop 0")
        for j in range(4):
            if ring:
                a("s_waitcnt vmcnt(7)")
            if ring and j + 4 == self.o.get("cpos", 3):
                self.claim()
            v = VR + 4 * j
            a("v_mfma_f32_16x16x32_bf16 v[%d:%d], v[%d:%d], v[%d:%d], v[%d:%d]" % (ACC, ACC + 3, AF + 4 * j, AF + 4 * j + 3, v, v + 3, ACC, ACC + 3))
            if ring:
                a("buffer_load_dwordx4 v[%d:%d], v1, s[40:43], s45 offen offset:%d nt" % (v, v + 3, j * 1024))

    def claim(self):
        a = self.a
        if self.o.get("alpha", 0):
            a("s_mov_b32 s57, s97\ns_cmp_lg_u32 s62, s97\ns_cbranch_scc1 L_nclaim\ns_atomic_add s57, s[54:55], 0x0 glc\nL_nclaim:")
        else:
            a("s_mov_b32 s57, 1\ns_cmp_eq_u32 s62, 0\ns_cbranch_scc1 L_nclaim\ns_atomic_add s57, s[54:55], 0x0 glc\nL_nclaim:")

    def streaming(self):
        a = self.a
        NB = self.nback
        NS = self.o.get("nstatic", 11)
        LIMF = self.o.get("limf", 512)
        assert NS - self.o.get('oskip', 3) >= NB + 2
        RING, BACK = 52, 84
        a("L_stream:")
        a("s_sub_u32 s44, s3, 4")
        a("v_lshlrev_b32 v1, 4, v0")
        a("s_lshr_b32 s56, s2, 3\ns_lshl_b32 s46, s56, 21")
        SP = self.o.get("spat", 1)
        SSTEP = 0x20000 if SP else 0x4000
        a("s_add_u32 s45, s2, s56\ns_and_b32 s45, s45, 7\ns_mul_i32 s45, s45, %d\ns_add_u32 s45, s45, s44\ns_lshl_b32 s45, s45, 12" % (4 if SP else NS * 4))
        a("s_waitcnt lgkmcnt(0)")
        self.srd(36, 6, 0x200000, "s46")
        self.srd(40, 8, 0x200000, "s46")
        n = 0
        for tk in range(NB + 1):
            base = BACK + 32 * tk if tk < NB else RING
            for kv in range(2):
                for j in range(4):
                    if n >= self.win:
                        a("s_waitcnt vmcnt(%d)" % (self.win - 1))
                    r = base + 16 * kv + 4 * j
                    a("buffer_load_dwordx4 v[%d:%d], v1, s[%d:%d], s45 offen offset:%d nt" % (r, r + 3, 36 + 4 * kv, 39 + 4 * kv, j * 1024))
                    n += 1
                    if n == self.o.get("qgo", (NB - 1) * 8):
                        a("ds_write_b32 v2, v3 offset:%d" % (L_FLAG + 12))
                    if n == self.win:
                        self.srd(28, 26, 0x10000000)
                        a("v_and_b32 v26, 1, v0\nv_lshlrev_b32 v26, 4, v26\nv_mov_b32 v27, 0xffff\nv_lshlrev_b32 v27, v26, v27")
                        a("v_bfe_u32 v26, v0, 1, 2")
                        for e in range(4):
                            a("v_cmp_eq_u32 vcc, %d, v26\ns_nop 1\nv_cndmask_b32 v%d, 0, v27, vcc" % (e, 5 + e))
                        a("v_mov_b32 v29, 0x%x\nv_mov_b32 v30, 0x%x\nv_mov_b32 v31, 0" % (f32(-1e38), f32(-1e38 * LOG2E)))
                        a("v_mov_b32 v32, 0\nv_mov_b32 v33, 0\nv_mov_b32 v34, 0\nv_mov_b32 v35, 0")
                        a("s_mov_b32 s46, 0xffff0000\ns_mov_b32 s47, 0x%x\ns_mov_b32 s48, 0x%x" % (f32(128 ** -0.5), f32(LOG2E)))
                        a("s_mov_b32 s52, 0\ns_mov_b32 s53, -1")
                        a("v_and_b32 v9, 15, v0\nv_lshlrev_b32 v9, 4, v9")
                        a("v_mov_b32 v2, 0\nv_mov_b32 v3, 1\nv_mov_b32 v4, 0")
                        a("s_lshl_b32 s56, s56, 8\ns_add_u32 s56, s56, 0x%x\ns_add_u32 s54, s26, s56\ns_addc_u32 s55, s27, 0" % WS_CTR)
                        a("s_lshr_b32 s59, s2, 3\ns_add_u32 s61, s2, s59\ns_and_b32 s61, s61, 7\ns_cmp_lt_u32 s61, 2\ns_cselect_b32 s61, %d, %d" % (NS - NB - 1 - self.o.get("oskip", 3), NS - NB - 1))
                        a("s_barrier")
            if tk < NB:
                a("s_add_u32 s45, s45, 0x%x" % SSTEP)
        self.stamp(8)
        if self.o.get("abl", 0) != 1:
            self.lds_wait(L_FLAG + 20, 1, 1, t=26)
        self.stamp(9)
        a("ds_read_b128 v[10:13], v9 offset:%d\nds_read_b128 v[14:17], v9 offset:%d" % (L_Q, L_Q + 256))
        a("s_mov_b32 s49, 0")
        a("s_waitcnt lgkmcnt(0)")
        a("v_and_b32 v9, 8, v0\ns_lshl_b32 s57, s44, 4\ns_add_u32 s57, s57, %d\nv_add_u32 v9, s57, v9\ns_lshl_b32 s57, s44, 10\nv_add_u32 v4, s57, v1" % L_PML)
        a("s_mov_b32 s57, 0\ns_mov_b32 s96, 0")
        a("L_sloop:")
        a("s_waitcnt vmcnt(7) lgkmcnt(0)")
        a("s_add_u32 s45, s45, 0x%x" % SSTEP)
        OS = self.o.get("oskip", 3)
        AL = self.o.get("alpha", 0)
        if AL:
            ND = 512 - NS * 32 + 8 * OS
            a("s_lshl_b32 s98, s49, 5\ns_sub_i32 s98, s57, s98\ns_add_i32 s98, s98, %d" % (NS * 32 - 8 * OS + 1 - 32 * (NB + 2)))
            a("s_cmp_gt_i32 s98, %d\ns_cselect_b32 s99, s98, 0\ns_mul_i32 s99, s99, %d\ns_lshr_b32 s99, s99, 4\ns_add_u32 s98, s57, s99" % (self.o.get("athr", 32), AL))
            a("s_cmp_gt_u32 s99, 0\ns_cselect_b32 s98, s98, 0\ns_cmp_ge_u32 s49, s61\ns_cselect_b32 s98, s98, 0")
            a("s_cmp_gt_u32 s98, %d\ns_cselect_b32 s97, 0x1000, 1" % (ND - 32))
        if OS:
            a("s_and_b32 s58, s57, 7\ns_lshr_b32 s56, s57, 3\ns_lshl_b32 s56, s56, 5\ns_add_u32 s58, s58, s56\ns_add_u32 s58, s58, %d" % ((NS - OS) * 32))
            a("s_add_u32 s56, s57, %d\ns_cmp_lt_u32 s57, %d\ns_cselect_b32 s57, s58, s56\ns_lshl_b32 s57, s57, 12" % (NS * 32 - 8 * OS, 8 * OS))
        else:
            a("s_add_u32 s57, s57, %d\ns_lshl_b32 s57, s57, 12" % (NS * 32))
        a("s_cmp_lt_u32 s49, s61\ns_cselect_b32 s45, s45, s57")
        a("s_add_u32 s56, s49, 1\ns_cmp_ge_u32 s56, s61\ns_cselect_b32 s62, 1, 0")
        a("s_cmp_lt_u32 s45, 0x200000\ns_cbranch_scc1 L_sgo")
        a("s_mov_b32 s38, 0\ns_mov_b32 s42, 0\ns_mov_b32 s62, 0")
        a("s_mov_b64 exec, 1")
        a("ds_add_u32 v2, v3 offset:%d" % (L_FLAG + 4))
        a("ds_write_b32 v2, v3 offset:%d" % (L_FLAG + 16))
        a("s_mov_b64 exec, -1")
        a("L_sgo:")
        a("s_cmp_lg_u32 s49, %d\ns_cbranch_scc1 L_sgo2" % self.o.get("rchk", 3))
        a("ds_write_b32 v2, v3 offset:%d" % (L_FLAG + 16))
        a("L_sgo2:")
        self.ticket(RING, RING + 16, True)
        a("s_cmp_lt_u32 s49, %d\ns_cbranch_scc1 L_bsel" % NB)
        a("s_add_u32 s49, s49, 1\ns_cmp_lg_u32 s38, 0\ns_cbranch_scc1 L_sloop")
        a("L_sfin:")
        a("s_nop 3")
        a("ds_write_b128 v4, v[32:35] offset:%d" % L_PACC)
        a("s_mov_b64 exec, 1")
        a("ds_add_u32 v2, v3 offset:%d" % L_FLAG)
        self.stamp(10)
        if self.diag:
            if self.o.get("abl", 0):
                a("s_cmp_lg_u32 s3, 7\ns_cbranch_scc1 L_nw7")
                a("s_waitcnt lgkmcnt(0)\ns_mov_b64 s[70:71], s[84:85]")
                self.flush_stamps([3])
                a("L_nw7:")
            a("s_cmp_lg_u32 s3, 4\ns_cbranch_scc1 L_end")
            self.flush_stamps([8, 9, 10])
        a("s_endpgm")
        a("L_scont:")
        a("s_add_u32 s49, s49, 1\ns_cmp_lg_u32 s38, 0\ns_cbranch_scc1 L_sloop")
        a("s_cmp_ge_u32 s49, %d\ns_cbranch_scc1 L_sfin" % NB)
        a("L_bsel:")
        for k in range(1, NB):
            a("s_cmp_eq_u32 s49, %d\ns_cbranch_scc1 L_back%d" % (k, k))
        for k in range(NB):
            a("L_back%d:" % k)
            self.ticket(BACK + 32 * k, BACK + 32 * k + 16, False)
            a("s_branch L_scont")
        a("L_rescale:")
        a("v_max_f32 v28, v28, v29")
        self.xrow("v_max_f32", 28, 26)
        a("v_mov_b32 v29, v28\nv_mul_f32 v27, s48, v28\nv_sub_f32 v26, v30, v27\nv_exp_f32 v26, v26\nv_mov_b32 v30, v27")
        a("v_mul_f32 v31, v31, v26")
        a("v_readlane_b32 s63, v26, 0\nv_readlane_b32 s56, v26, 8\ns_nop 1")
        a("v_mov_b32 v26, s63\nv_mov_b32 v27, s56\nv_cndmask_b32 v26, v26, v27, s[52:53]")
        for r in range(4):
            a("v_mul_f32 v%d, v%d, v26" % (32 + r, 32 + r))
        a("s_setpc_b64 s[50:51]")

    def lds_wait(self, off, val, sleep, t=5):
        a = self.a
        lab = a.label("L_lw")
        a("v_mov_b32 v%d, 0\ns_mov_b32 s60, 0\n%s:" % (t, lab))
        a("ds_read_b32 v%d, v%d offset:%d\ns_waitcnt lgkmcnt(0)" % (t + 1, t, off))
        a("v_cmp_le_u32 vcc, %s, v%d" % (val, t + 1))
        a("s_add_u32 s60, s60, 1\ns_cmp_gt_u32 s60, %d\ns_cbranch_scc1 %s_x\ns_cbranch_vccnz %s_x" % (SPIN * 20, lab, lab))
        if sleep:
            a("s_sleep %d" % sleep)
        a("s_branch %s\n%s_x:" % (lab, lab))

    def qproj(self):
        a = self.a
        a("v_lshrrev_b32 v3, 5, v0\nv_mul_u32_u24 v3, 1152, v3\nv_and_b32 v4, 31, v0\nv_lshl_add_u32 v3, v4, 2, v3")
        a("v_mov_b32 v6, 0")
        a("s_lshr_b32 s46, s2, 3\ns_and_b32 s47, s46, 15\ns_lshr_b32 s48, s46, 4")
        a("s_bfe_u32 s49, s2, 0x10002\ns_lshl_b32 s44, s48, 1\ns_add_u32 s49, s49, s44")
        a("s_and_b32 s50, s2, 3")
        a("s_waitcnt lgkmcnt(0)")
        self.srd(36, 4, 2304)
        self.srd(28, 26, 0x10000000)
        for j in range(9):
            a("buffer_load_dword v%d, v3, s[36:39], 0 offen offset:%d" % (16 + 2 * j + 1, j * 128))
        a("buffer_load_dword v7, v6, s[28:31], 0 offen offset:%d sc1" % WS_EPOCH)
        self.srd(32, 24, 256)
        a("s_and_b32 s44, s2, 7\ns_cmp_eq_u32 s44, 0\ns_cselect_b64 exec, 1, 0")
        a("s_lshl_b32 s44, s46, 8\ns_add_u32 s44, s44, 0x%x" % WS_CTR)
        a("buffer_store_dword v6, v6, s[28:31], s44 offen sc1\nbuffer_store_dword v6, v6, s[28:31], s44 offen offset:128 sc1")
        a("s_mov_b64 exec, -1")
        a("s_mov_b32 s40, 0xffff0000")
        a("s_barrier")
        a("s_waitcnt vmcnt(0)")
        for j in range(9):
            a("v_lshlrev_b32 v%d, 16, v%d\nv_and_b32 v%d, s40, v%d" % (16 + 2 * j, 16 + 2 * j + 1, 16 + 2 * j + 1, 16 + 2 * j + 1))
        a("v_add_u32 v7, 0x%x, v7" % EPOCH_INC)
        a("v_add_u32 v8, %d, v3" % L_XN)
        self.layernorm(16, 40, 8)
        a("v_and_b32 v9, 1, v0\nv_mul_u32_u24 v9, 1152, v9\nv_lshl_add_u32 v9, v2, 3, v9\ns_mul_i32 s44, s50, 288\nv_add_u32 v9, s44, v9")
        a("v_lshrrev_b32 v10, 2, v0\nv_lshlrev_b32 v10, 7, v10\nv_and_b32 v11, 3, v0\nv_lshl_add_u32 v10, v11, 3, v10")
        a("s_waitcnt lgkmcnt(0)")
        FB, FA, D = 64, 84, 160
        for ks in range(9):
            a("ds_read_b64 v[%d:%d], v9 offset:%d" % (FB + 2 * ks, FB + 2 * ks + 1, L_XN + ks * 32))
        self.lds_wait(L_FLAG + 8, 3, 0, t=12)
        for ks in range(9):
            for t in range(4):
                r = FA + 8 * ks + 2 * t
                a("ds_read_b64_tr_b16 v[%d:%d], v10 offset:%d" % (r, r + 1, L_WQ + ks * 2048 + t * 32))
            if ks % 3 == 2:
                a("s_waitcnt lgkmcnt(0)")
                for k2 in range(ks - 2, ks + 1):
                    for t in range(4):
                        r = FA + 8 * k2 + 2 * t
                        a("v_mfma_f32_16x16x16_bf16 v[%d:%d], v[%d:%d], v[%d:%d], %s" % (D + 4 * t, D + 4 * t + 3, r, r + 1, FB + 2 * k2, FB + 2 * k2 + 1, "0" if k2 == 0 else "v[%d:%d]" % (D + 4 * t, D + 4 * t + 3)))
        a("s_lshl_b32 s45, s47, 14\ns_lshl_b32 s44, s50, 11\ns_add_u32 s45, s45, s44\ns_lshl_b32 s44, s49, 9\ns_add_u32 s45, s45, s44\ns_add_u32 s45, s45, 0x%x" % WS_MQ)
        a("v_and_b32 v10, 1, v0\nv_lshlrev_b32 v10, 13, v10\nv_lshl_add_u32 v10, v2, 5, v10\nv_bfe_u32 v11, v0, 1, 1\nv_lshl_add_u32 v10, v11, 4, v10")
        a("v_cmp_eq_u32 vcc, 1, v11")
        a("s_mov_b32 s52, 0x000f000f\ns_mov_b32 s53, 0x000f000f")
        for t in range(4):
            a("v_mov_b32 v%d, v7\nv_mov_b32 v%d, v7" % (17 + 4 * t, 19 + 4 * t))
        for t in range(4):
            a("v_cndmask_b32 v%d, v%d, v%d, vcc\nv_cndmask_b32 v%d, v%d, v%d, vcc" % (16 + 4 * t, D + 4 * t, D + 4 * t + 2, 18 + 4 * t, D + 4 * t + 1, D + 4 * t + 3))
        a("s_mov_b64 exec, s[52:53]")
        for t in range(4):
            a("buffer_store_dwordx4 v[%d:%d], v10, s[28:31], s45 offen offset:%d sc1" % (16 + 4 * t, 19 + 4 * t, t * 128))
        a("s_getreg_b32 s44, hwreg(HW_REG_XCC_ID)\ns_and_b32 s45, s2, 7\ns_lshl_b32 s45, s45, 5\ns_add_u32 s45, s45, s46\ns_lshl_b32 s45, s45, 3\ns_add_u32 s45, s45, 0x%x" % WS_XC)
        a("s_mov_b64 exec, 1\nv_mov_b32 v32, s44\nv_mov_b32 v33, v7")
        a("buffer_store_dwordx2 v[32:33], v6, s[28:31], s45 offen sc1")
        a("s_mov_b64 exec, -1")
        a("s_lshl_b32 s44, s47, 1\ns_add_u32 s44, s44, s48\ns_lshl_b32 s44, s44, 13\ns_add_u32 s44, s44, 0x%x\ns_add_u32 s45, s44, 4096" % WS_MQ)
        a("v_lshlrev_b32 v10, 4, v0\nv_lshlrev_b32 v11, 2, v0")
        G = 64
        self.lds_wait(L_FLAG + 12, 1, 2, t=12)
        a("s_mov_b32 s60, 0\nL_qpoll:")
        for i in range(8):
            a("buffer_load_dwordx4 v[%d:%d], v10, s[28:31], s%d offen offset:%d sc1" % (G + 4 * i, G + 4 * i + 3, 44 + i // 4, (i % 4) * 1024))
        a("s_waitcnt vmcnt(0)")
        for i in range(8):
            a("v_xor_b32 v%d, v%d, v7\nv_xor_b32 v%d, v%d, v7" % (G + 4 * i + 1, G + 4 * i + 1, G + 4 * i + 3, G + 4 * i + 3))
        a("v_or_b32 v12, v%d, v%d" % (G + 1, G + 3))
        for i in range(1, 8):
            a("v_or3_b32 v12, v12, v%d, v%d" % (G + 4 * i + 1, G + 4 * i + 3))
        a("v_cmp_ne_u32 vcc, 0, v12")
        a("s_add_u32 s60, s60, 1\ns_cmp_gt_u32 s60, %d\ns_cbranch_scc1 L_qpoll_x\ns_cbranch_vccnz L_qpoll\nL_qpoll_x:" % SPIN)
        for hf in range(2):
            for c in (0, 2):
                b0 = G + 4 * hf + c
                a("v_add_f32 v%d, v%d, v%d\nv_add_f32 v%d, v%d, v%d" % (b0, b0, b0 + 8, b0 + 16, b0 + 16, b0 + 24))
        for hf in range(2):
            for c in (0, 2):
                b0 = G + 4 * hf + c
                a("v_add_f32 v%d, v%d, v%d" % (b0, b0, b0 + 16))
        a("v_cvt_pk_bf16_f32 v12, v%d, v%d\nv_cvt_pk_bf16_f32 v13, v%d, v%d" % (G, G + 2, G + 4, G + 6))
        a("ds_write_b32 v11, v12 offset:%d\nds_write_b32 v11, v13 offset:%d" % (L_Q, L_Q + 256))
        a("v_mov_b32 v12, 1\nds_write_b32 v6, v12 offset:%d" % (L_FLAG + 20))
        a("v_readfirstlane_b32 s61, v7")
        a("s_waitcnt lgkmcnt(0)")
        self.stamp(2)

    def finish_attn(self):
        a = self.a
        a("L_finish:")
        self.stamp(14)
        self.lds_wait(L_FLAG + 16, 1, 8, t=4)
        a("s_getreg_b32 s44, hwreg(HW_REG_XCC_ID)\ns_and_b32 s45, s2, 7\ns_lshl_b32 s45, s45, 8\ns_add_u32 s45, s45, 0x%x" % WS_XC)
        a("v_mov_b32 v4, 0\nv_and_b32 v5, 31, v0\nv_lshlrev_b32 v5, 3, v5\ns_mov_b32 s60, 0")
        a("L_rpoll:")
        a("buffer_load_dword v8, v4, s[32:35], 0 offen sc1")
        a("buffer_load_dwordx2 v[6:7], v5, s[28:31], s45 offen sc1\ns_waitcnt vmcnt(0)")
        a("v_cmp_gt_u32 vcc, 192, v8")
        a("s_add_u32 s60, s60, 1\ns_cmp_gt_u32 s60, %d\ns_cbranch_scc1 L_rpoll_x\ns_cbranch_vccz L_rpoll_x\ns_sleep 64\ns_branch L_rpoll\nL_rpoll_x:" % SPIN)
        a("v_xor_b32 v6, s44, v6\nv_xor_b32 v7, s61, v7\nv_or_b32 v6, v6, v7\nv_cmp_ne_u32 vcc, 0, v6")
        a("s_cmp_eq_u64 vcc, 0\ns_cselect_b32 s44, 1, 0\nv_mov_b32 v6, s44")
        if self.o.get("forceremote", 0):
            a("v_mov_b32 v6, 0")
        a("ds_write_b32 v4, v6 offset:%d" % (L_MX + 8))
        a("v_mov_b32 v5, 1\ns_mov_b64 exec, 1\nds_add_u32 v4, v5 offset:%d\ns_mov_b64 exec, -1" % L_FLAG)
        if self.o.get("cpf", 1):
            a("s_getpc_b64 s[44:45]\nL_cpf:")
            a("v_lshlrev_b32 v6, 7, v0\nv_min_u32 v6, L_end-L_cpf, v6")
            a("global_load_dword v255, v6, s[44:45]")
            if self.diag:
                a("v_lshlrev_b32 v6, 7, v0\nv_add_u32 v6, 8192, v6\nv_min_u32 v6, L_end-L_cpf, v6")
                a("global_load_dword v255, v6, s[44:45]")
        a("s_lshr_b32 s44, s2, 3\ns_and_b32 s45, s44, 15\ns_lshr_b32 s44, s44, 4\ns_lshl_b32 s44, s44, 3\ns_and_b32 s46, s2, 7\ns_add_u32 s44, s44, s46")
        a("v_mul_u32_u24 v8, 6144, v2\nv_lshl_add_u32 v8, v1, 4, v8")
        a("s_mul_i32 s46, s44, 384\ns_mul_i32 s45, s45, 24576\ns_add_u32 s46, s46, s45\ns_add_u32 s46, s46, 0x%x" % WS_M1)
        a("v_and_b32 v10, 32, v0\nv_and_b32 v6, 1, v0\nv_lshl_add_u32 v10, v6, 4, v10\nv_bfe_u32 v6, v0, 1, 4\nv_add_u32 v10, v10, v6\nv_lshlrev_b32 v10, 4, v10")
        a("v_lshrrev_b32 v11, 5, v0\nv_lshlrev_b32 v11, 3, v11")
        a("s_mov_b32 s48, 0x00ff00ff\ns_mov_b32 s49, 0x00ff00ff")
        self.stamp(1)
        self.lds_wait(L_FLAG, 6, self.o.get('fsl', 0), t=4)
        self.stamp(3)
        for wv in range(4):
            a("ds_read_b64 v[%d:%d], v11 offset:%d" % (12 + 2 * wv, 13 + 2 * wv, L_PML + 16 * wv))
        for wv in range(4):
            a("ds_read_b128 v[%d:%d], v10 offset:%d" % (20 + 4 * wv, 23 + 4 * wv, L_PACC + 1024 * wv))
        a("s_waitcnt lgkmcnt(0)")
        a("v_max3_f32 v36, v12, v14, v16\nv_max_f32 v36, v36, v18")
        for wv in range(4):
            a("v_sub_f32 v%d, v%d, v36" % (12 + 2 * wv, 12 + 2 * wv))
        for wv in range(4):
            a("v_exp_f32 v%d, v%d" % (12 + 2 * wv, 12 + 2 * wv))
        a("s_nop 0")
        for r in range(4):
            a("v_mul_f32 v%d, v12, v%d" % (40 + r, 20 + r))
        for wv in range(1, 4):
            for r in range(4):
                a("v_fmac_f32 v%d, v%d, v%d" % (40 + r, 12 + 2 * wv, 20 + 4 * wv + r))
        a("buffer_store_dwordx4 v[40:43], v8, s[28:31], s46 offen sc1")
        a("v_mul_f32 v37, v12, v13")
        for wv in range(1, 4):
            a("v_fmac_f32 v37, v%d, v%d" % (12 + 2 * wv, 13 + 2 * wv))
        a("v_mov_b32 v38, v36\nv_mov_b32 v39, v37")
        a("s_mov_b64 exec, s[48:49]")
        a("buffer_store_dwordx4 v[36:39], v8, s[28:31], s46 offen offset:256 sc1")
        self.stamp(4)
        HB = self.o.get("hb", 0)
        if HB:
            a("s_lshr_b32 s46, s2, 3\ns_lshl_b32 s46, s46, 8\ns_add_u32 s46, s46, 0x%x\ns_add_u32 s46, s26, s46\ns_addc_u32 s47, s27, 0" % (WS_CTR + 128))
            a("s_mov_b32 s44, 1\ns_atomic_add s44, s[46:47], 0x0 glc")
            a("s_cmp_lt_u32 s58, 2\ns_cbranch_scc1 L_hb_x")
            a("s_waitcnt lgkmcnt(0)\ns_add_u32 s44, s44, 1\ns_mov_b32 s60, 0")
            a("L_hb:")
            a("s_cmp_ge_u32 s44, %d\ns_cbranch_scc1 L_hb_x" % HB)
            a("s_add_u32 s60, s60, 1\ns_cmp_gt_u32 s60, %d\ns_cbranch_scc1 L_hb_x" % self.o.get("hbmax", 12))
            a("s_mov_b32 s44, 0\ns_atomic_add s44, s[46:47], 0x0 glc\ns_waitcnt lgkmcnt(0)\ns_branch L_hb")
            a("L_hb_x:")
        a("s_mov_b64 exec, 1\nv_mov_b32 v5, 1\nds_add_u32 v4, v5 offset:%d" % L_FLAG)
        a("s_mov_b64 exec, -1")
        if HB:
            a("s_waitcnt lgkmcnt(0)")
        a("s_setpc_b64 s[50:51]")

    def service(self):
        a = self.a
        a("s_setprio 2")
        if self.o.get("abl", 0) == 1:
            a("s_waitcnt lgkmcnt(0)")
            self.srd(28, 26, 0x10000000)
            a("s_barrier")
            a("s_cmp_lg_u32 s3, 0\ns_cbranch_scc1 L_end")
            self.flush_stamps([0])
            a("s_endpgm")
        a("v_and_b32 v1, 15, v0\nv_lshrrev_b32 v2, 4, v0")
        a("s_cmp_lg_u32 s3, 0\ns_cbranch_scc1 L_svc_other")
        self.qproj()
        a("s_branch L_svc_a")
        a("L_svc_other:")
        a("v_lshrrev_b32 v4, 3, v0\nv_lshlrev_b32 v4, 13, v4\nv_and_b32 v5, 7, v0\nv_lshl_add_u32 v4, v5, 4, v4")
        a("s_bfe_u32 s47, s2, 0x40003\ns_lshr_b32 s48, s2, 7\ns_bfe_u32 s49, s2, 0x10002\ns_lshl_b32 s44, s48, 1\ns_add_u32 s49, s49, s44\ns_and_b32 s50, s2, 3")
        a("s_lshl_b32 s45, s47, 2\ns_add_u32 s45, s45, s49\ns_lshl_b32 s45, s45, 7\ns_mul_i32 s44, s50, 3\ns_add_u32 s44, s44, s3\ns_sub_u32 s44, s44, 1\ns_mul_i32 s44, s44, %d\ns_add_u32 s45, s45, s44" % (48 * 8192))
        a("s_mul_i32 s46, s3, 6144\ns_add_u32 s46, s46, %d" % (L_WQ - 6144))
        a("s_waitcnt lgkmcnt(0)")
        self.srd(40, 10, 576 * 8192)
        for i in range(6):
            a("s_mov_b32 m0, s46\ns_add_u32 s46, s46, 1024")
            a("buffer_load_dwordx4 v4, s[40:43], s45 offen nt lds")
            a("s_add_u32 s45, s45, %d" % (8 * 8192))
        self.srd(28, 26, 0x10000000)
        self.srd(32, 24, 256)
        a("s_mov_b32 s61, 0")
        a("v_mov_b32 v6, 0\nv_mov_b32 v7, 1")
        a("s_barrier")
        a("s_waitcnt vmcnt(0)")
        a("s_mov_b64 exec, 1\nds_add_u32 v6, v7 offset:%d\ns_mov_b64 exec, -1" % (L_FLAG + 8))
        self.lds_wait(L_FLAG + self.o.get("bgflag", 8), 1, 4, t=12)
        a("L_svc_a:")
        if self.o.get("abl", 0) == 2:
            a("s_cmp_lg_u32 s3, 0\ns_cbranch_scc1 L_end")
            self.flush_stamps([0, 1, 2, 12, 13, 14] + ([15] if self.o.get('ackstamp', 0) else []))
            a("s_endpgm")
        LOC = self.o.get("loc", 1)
        a("s_and_b32 s44, s2, 7\ns_lshr_b32 s45, s2, 3\ns_add_u32 s46, s44, s45\ns_and_b32 s46, s46, 7\ns_lshr_b32 s47, s45, 3")
        a("s_lshl_b32 s59, s46, 5\ns_add_u32 s59, s59, s45")
        a("s_lshl_b32 s48, s46, 2\ns_add_u32 s48, s48, s47")
        a("s_cmp_ge_u32 s46, 2\ns_cbranch_scc1 L_r_n")
        if LOC:
            a("s_mul_i32 s97, s44, 9\ns_add_u32 s97, s97, s48\ns_add_u32 s97, s97, 6\ns_cmp_lt_u32 s48, 3\ns_cselect_b32 s58, 1, 0")
        else:
            a("s_mov_b32 s97, s59\ns_cmp_lt_u32 s59, 24\ns_cselect_b32 s58, 1, 0")
        a("s_mov_b32 s62, 0\ns_mov_b32 s63, 0")
        a("s_branch L_role")
        a("L_r_n:")
        a("s_sub_u32 s48, s48, 8")
        if LOC:
            a("s_lshr_b32 s62, s48, 1\ns_and_b32 s63, s48, 1\ns_lshl_b32 s49, s44, 1\ns_add_u32 s63, s63, s49")
            a("s_mul_i32 s97, s44, 9\ns_add_u32 s97, s97, s48\ns_sub_u32 s97, s97, 18\ns_cmp_lt_u32 s48, 18\ns_cselect_b32 s58, 2, 3")
        else:
            a("s_lshl_b32 s49, s44, 3\ns_add_u32 s49, s49, s48\ns_sub_u32 s49, s49, 16")
            a("s_cmp_lt_u32 s48, 16\ns_cselect_b32 s62, s44, 8\ns_cselect_b32 s63, s48, s49")
            a("s_add_u32 s97, s49, 8\ns_cmp_lt_u32 s63, 16\ns_cselect_b32 s58, 2, 3")
        a("s_cmp_lg_u32 s3, 1\ns_cbranch_scc1 L_role")
        a("v_mov_b32 v10, 0\nv_mov_b32 v4, -1\nv_mov_b32 v5, -1\nv_mov_b32 v6, -1\nv_mov_b32 v7, -1\nv_lshlrev_b32 v8, 4, v0")
        a("s_mul_i32 s44, s44, 24\ns_add_u32 s44, s44, s48\ns_lshl_b32 s44, s44, 12\ns_add_u32 s44, s44, 0x%x" % SB)
        for i in range(4):
            a("buffer_store_dwordx4 v[4:7], v8, s[28:31], s44 offen offset:%d sc1" % (i * 1024))
        a("v_mov_b32 v9, 1\ns_waitcnt vmcnt(0)")
        a("s_mov_b64 exec, 1\nbuffer_atomic_add v9, v10, s[32:35], 0 offen\ns_mov_b64 exec, -1")
        a("s_branch L_role")
        self.box_reset()
        self.finish_attn()
        self.w64()
        self.roles()

    def box_reset(self):
        a = self.a
        a("L_box:")
        a("v_mov_b32 v12, -1\nv_mov_b32 v13, -1\nv_mov_b32 v14, -1\nv_mov_b32 v15, -1\nv_lshlrev_b32 v8, 4, v0\nv_mov_b32 v9, 0\nv_mov_b32 v7, 1")
        a("s_cmp_eq_u32 s53, 0\ns_cbranch_scc1 L_box_x")
        a("s_cmp_eq_u32 s49, 0\ns_cbranch_scc1 L_box_l")
        a("s_mov_b64 exec, 1\nds_add_u32 v9, v7 offset:%d\ns_mov_b64 exec, -1\nv_mov_b32 v7, 0" % L_FLAG)
        self.lds_wait(L_FLAG + self.o.get("boxflag", 4), self.o.get("boxcnt", 4), 2, t=10)
        a("L_box_l:")
        for i in range(4):
            a("buffer_store_dwordx4 v[12:15], v8, s[28:31], s52 offen sc1\nbuffer_store_dwordx4 v[12:15], v8, s[28:31], s52 offen offset:1024 sc1")
            a("s_mov_b64 exec, 0xffff\nbuffer_store_dwordx4 v[12:15], v8, s[28:31], s52 offen offset:2048 sc1\ns_mov_b64 exec, -1\ns_add_u32 s52, s52, s53")
        a("L_box_x:")
        a("s_waitcnt vmcnt(0)")
        a("s_mov_b64 exec, 1\nds_add_u32 v9, v7 offset:%d\ns_mov_b64 exec, -1" % L_FLAG)
        a("s_setpc_b64 s[50:51]")

    def w64(self):
        a = self.a
        WF = 64
        a("L_w64:\nL_wi:")
        a("s_lshl_b32 s46, s3, 10\ns_add_u32 s46, s46, %d" % L_WB)
        for i in range(18):
            a("s_mov_b32 m0, s46\ns_add_u32 s46, s46, 4096")
            a("buffer_load_dwordx4 v%d, s[36:39], s45 offen nt lds" % (204 + i))
            lab = a.label("L_wn")
            a("s_cbranch_vccz %s\ns_waitcnt vmcnt(%d)\n%s:" % (lab, self.o.get("op_win", 6) - 1, lab))
        a("s_setpc_b64 s[50:51]")
        a("L_wf:")
        a("v_mov_b32 v8, 0\nv_mov_b32 v9, 1\ns_waitcnt vmcnt(0)")
        a("s_mov_b64 exec, 1\nds_add_u32 v8, v9 offset:%d\ns_mov_b64 exec, -1" % (L_FLAG + 24))
        self.lds_wait(L_FLAG + 24, "s48", 0, t=10)
        a("L_wr:")
        for tt in range(9):
            for ks in range(2):
                for hh in range(2):
                    r = WF + tt * 8 + ks * 4 + hh * 2
                    areg, off = (222 + tt % 4, (tt // 4) * 128) if tt < 8 else (226, 1024)
                    a("ds_read_b64_tr_b16 v[%d:%d], v%d offset:%d" % (r, r + 1, areg, (32 * ks + 16 * hh) * 1152 + off))
            if tt % 2 == 1:
                a("s_waitcnt lgkmcnt(4)")
        a("s_waitcnt lgkmcnt(0)")
        a("s_setpc_b64 s[50:51]")

    def mm(self, kind, fill=None):
        a = self.a
        WF, BF = 64, 140
        PRE = self.o.get("mmpre", 6)
        fill = list(fill or [])
        order = [(t, ks) for t in range(8) for ks in range(2)]
        def rd(i):
            t, ks = order[i]
            a("ds_read_b128 v[%d:%d], v%d offset:%d" % (BF + 4 * i, BF + 4 * i + 3, 56 + t, ks * 64))
        a("s_barrier")
        c0 = "0"
        if kind == "o":
            a("ds_read_b128 v[28:31], v48\nds_read_b128 v[32:35], v48 offset:64")
        for i in range(PRE):
            rd(i)
        nxt = PRE
        if kind == "o":
            a("s_waitcnt lgkmcnt(%d)" % (PRE + 1))
            a("v_mfma_f32_16x16x32_bf16 v[20:23], v[228:231], v[28:31], 0")
            rd(nxt); nxt += 1
            a("v_mfma_f32_16x16x32_bf16 v[20:23], v[236:239], v[28:31], v[20:23]")
            a("s_waitcnt lgkmcnt(%d)" % (PRE + 1))
            a("v_mfma_f32_16x16x32_bf16 v[20:23], v[232:235], v[32:35], v[20:23]")
            rd(nxt); nxt += 1
            a("v_mfma_f32_16x16x32_bf16 v[20:23], v[240:243], v[32:35], v[20:23]")
            rd(nxt); nxt += 1
            rd(nxt); nxt += 1
            a("s_nop 3")
            c0 = "v[20:23]"
        for i, (t, ks) in enumerate(order):
            a("s_waitcnt lgkmcnt(%d)" % (nxt - i - 1))
            w = WF + 8 * t + 4 * ks
            a("v_mfma_f32_16x16x32_bf16 v[12:15], v[%d:%d], v[%d:%d], %s" % (w, w + 3, BF + 4 * i, BF + 4 * i + 3, c0 if i == 0 else "v[12:15]"))
            if nxt < 16:
                rd(nxt); nxt += 1
            if i < 2:
                w = WF + 64 + 4 * ks
                a("v_mfma_f32_16x16x32_bf16 v[16:19], v[%d:%d], v[%d:%d], %s" % (w, w + 3, BF + 4 * i, BF + 4 * i + 3, c0 if i == 0 else "v[16:19]"))
                if nxt < 16:
                    rd(nxt); nxt += 1
            if fill:
                a(fill.pop(0))
        assert not fill
        def st(fl, nop):
            a("s_mov_b64 exec, s[56:57]")
            a("buffer_store_dwordx4 v[16:19], v49, s[28:31], s55 offen %s" % fl)
            a("s_mov_b64 exec, -1")
            a("s_nop %d" % nop)
            a("buffer_store_dwordx4 v[12:15], v52, s[28:31], s54 offen %s" % fl)
        if kind == "a":
            a("s_cbranch_scc0 L_mm_r")
            st("", 3)
            a("s_branch L_mm_l\nL_mm_r:")
            st("sc1", 3)
            a("L_mm_l:")
        else:
            st("sc1", 4)

    def out_base(self, base_sreg):
        self.a("s_mul_i32 s54, s3, %d\ns_add_u32 s54, s54, s%d\ns_mul_i32 s55, s3, %d\ns_add_u32 s55, s55, s%d\ns_add_u32 s55, s55, %d" % (8 * TSTR, base_sreg, TSTR, base_sreg, 32 * TSTR))

    def xy(self, sl):
        a = self.a
        a("v_bfe_u32 v16, v0, 1, 2\nv_mov_b32 v17, s3\ns_cmp_eq_u32 s%d, 8\ns_cselect_b64 vcc, -1, 0\nv_and_b32 v24, 1, v0" % sl)
        a("v_cndmask_b32 v18, v16, v17, vcc\nv_cndmask_b32 v19, v17, v16, vcc")
        a("v_lshlrev_b32 v54, 7, v24\nv_lshl_add_u32 v54, v19, 4, v54\nv_lshl_add_u32 v54, v2, 1, v54\nv_lshrrev_b32 v16, 1, v18\nv_lshl_add_u32 v54, v16, 6, v54\nv_and_b32 v16, 1, v18\nv_lshl_add_u32 v54, v16, 3, v54")

    def roles(self):
        a = self.a
        G = 140
        a("L_role:")
        a("s_cmp_eq_u32 s58, 2\ns_cselect_b32 s47, %d, 0" % (9216 - 1152))
        a("s_lshl_b32 s46, s3, 3\nv_lshrrev_b32 v5, 3, v0\nv_add_u32 v5, s46, v5\nv_mul_u32_u24 v5, 7282, v5\nv_lshlrev_b32 v8, 4, v0\ns_lshl_b32 s46, s3, 10\nv_add_u32 v8, s46, v8")
        for i in range(18):
            if i:
                a("v_add_u32 v5, %d, v5\nv_add_u32 v8, 4096, v8" % (32 * 7282))
            a("v_bfe_u32 v4, v5, 17, 2\nv_lshlrev_b32 v4, 5, v4\nv_xor_b32 v4, v4, v8\nv_lshrrev_b32 v6, 16, v5\nv_mad_u32_u24 v%d, v6, s47, v4" % (204 + i))
        a("v_lshrrev_b32 v10, 2, v0\nv_mul_u32_u24 v10, 1152, v10\nv_and_b32 v11, 3, v0\nv_lshl_add_u32 v10, v11, 3, v10\nv_bfe_u32 v11, v0, 3, 2\nv_add_u32 v10, %d, v10" % L_WB)
        a("v_xor_b32 v226, s3, v11\nv_lshl_add_u32 v226, v226, 5, v10")
        a("s_lshl_b32 s46, s3, 8\nv_add_u32 v10, s46, v10")
        for j in range(4):
            a("v_xor_b32 v%d, %d, v11\nv_lshl_add_u32 v%d, v%d, 5, v10" % (222 + j, j, 222 + j, 222 + j))
        a("v_mov_b32 v8, 0\nv_mov_b32 v9, 0\nv_lshlrev_b32 v12, 3, v0\nds_write_b64 v12, v[8:9] offset:%d" % L_ZERO)
        a("v_and_b32 v12, 1, v0\nv_lshlrev_b32 v48, 7, v12\nv_lshl_add_u32 v48, v2, 4, v48\nv_add_u32 v48, %d, v48" % L_OPD)
        a("v_lshrrev_b32 v14, 1, v1\nv_mov_b32 v15, %d" % (L_ZERO + 64))
        for t in range(8):
            a("v_cmp_eq_u32 vcc, %d, v14\ns_nop 1\nv_cndmask_b32 v%d, v15, v48, vcc" % (t, 56 + t))
        a("v_bfe_u32 v52, v0, 3, 1\nv_lshl_add_u32 v52, v52, 2, v2\nv_mul_u32_u24 v52, %d, v52\nv_and_b32 v14, 7, v0\nv_lshl_add_u32 v52, v14, 4, v52" % TSTR)
        a("v_lshlrev_b32 v49, 5, v2\nv_lshl_add_u32 v49, v12, 4, v49")
        a("v_lshlrev_b32 v50, 4, v0")
        a("v_mul_u32_u24 v51, 384, v2\nv_lshl_add_u32 v53, v1, 4, v51")
        a("s_mov_b32 s56, 0x00030003\ns_mov_b32 s57, 0x00030003\ns_mov_b32 s96, 0")
        a("s_waitcnt lgkmcnt(0)")
        a("s_cmp_eq_u32 s58, 2\ns_cbranch_scc1 L_a")
        a("s_mul_i32 s98, s97, 57\ns_lshr_b32 s98, s98, 9\ns_mul_i32 s99, s98, 9\ns_sub_u32 s99, s97, s99")
        a("s_lshr_b32 s46, s98, 2\ns_mul_i32 s46, s46, 9\ns_add_u32 s46, s46, s99\ns_mul_i32 s101, s46, %d\ns_and_b32 s46, s98, 3\ns_mul_i32 s46, s46, 2304\ns_add_u32 s101, s101, s46\ns_add_u32 s101, s101, 0x%x" % (4 * TSTR, WS_M3))
        a("s_sub_u32 s63, s3, 1")
        a("s_cmp_eq_u32 s58, 3\ns_cbranch_scc1 L_ob_s")
        self.srd(36, 12, 4096 * 1152)
        a("s_mul_i32 s45, s59, 73728\ns_mov_b32 s48, 4")
        a("s_cmp_eq_u32 s3, 0\ns_cselect_b64 vcc, %d, 1\ns_call_b64 s[50:51], L_wi\ns_call_b64 s[50:51], L_wf" % self.o.get("w0pace", 0))
        a("s_lshl_b32 s46, s3, 4\nv_add_u32 v4, s46, v1\nv_mul_u32_u24 v4, 1152, v4\nv_lshl_add_u32 v4, v2, 4, v4\nv_add_u32 v4, %d, v4" % L_WB)
        a("v_mov_b32 v28, 0x3f803f80\nv_mov_b32 v29, v28\nv_mov_b32 v30, v28\nv_mov_b32 v31, v28")
        for h in range(2):
            for kk in range(9):
                a("ds_read_b128 v[%d:%d], v4 offset:%d" % (G + 4 * kk, G + 4 * kk + 3, (9 * h + kk) * 64))
            a("s_waitcnt lgkmcnt(0)")
            for kk in range(9):
                a("v_mfma_f32_16x16x32_bf16 v[12:15], v[%d:%d], v[28:31], %s" % (G + 4 * kk, G + 4 * kk + 3, "0" if h + kk == 0 else "v[12:15]"))
        a("s_lshr_b32 s46, s3, 1\ns_lshl_b32 s46, s46, 6\ns_and_b32 s47, s3, 1\ns_lshl_b32 s47, s47, 3\ns_add_u32 s46, s46, s47\nv_lshlrev_b32 v4, 4, v2\nv_add_u32 v4, s46, v4\ns_mov_b32 s40, 0xffff0000\ns_nop 3")
        for r in range(4):
            a("v_mul_f32 v%d, 0x%x, v%d" % (12 + r, f32(-1.0 / 576), 12 + r))
        a("v_cvt_pk_bf16_f32 v16, v12, v13\nv_cvt_pk_bf16_f32 v17, v14, v15")
        a("v_lshlrev_b32 v20, 16, v16\nv_and_b32 v21, s40, v16\nv_lshlrev_b32 v22, 16, v17\nv_and_b32 v23, s40, v17")
        for r in range(4):
            a("v_sub_f32 v%d, v%d, v%d" % (12 + r, 12 + r, 20 + r))
        a("v_cvt_pk_bf16_f32 v18, v12, v13\nv_cvt_pk_bf16_f32 v19, v14, v15")
        a("ds_write_b64 v4, v[16:17] offset:%d\nds_write_b64 v4, v[18:19] offset:%d" % (L_RM, L_RM + 128))
        a("s_mov_b64 exec, 1\nds_add_u32 v8, v9 offset:%d\ns_mov_b64 exec, -1" % (L_FLAG + 28))
        self.lds_wait(L_FLAG + 28, 4, 1, t=10)
        a("v_lshlrev_b32 v4, 4, v2")
        for q in range(4):
            a("ds_read_b128 v[%d:%d], v4 offset:%d" % (228 + 4 * q, 231 + 4 * q, L_RM + 64 * q))
        a("v_lshrrev_b32 v4, 3, v1\nv_lshlrev_b32 v55, 6, v4\nv_and_b32 v4, 3, v0\nv_lshl_add_u32 v55, v4, 4, v55\nv_bfe_u32 v5, v0, 2, 1\nv_lshl_add_u32 v55, v5, 3, v55\nv_lshl_add_u32 v55, v2, 1, v55")
        a("s_lshl_b32 s46, s63, 7\nv_add_u32 v55, s46, v55")
        a("s_lshl_b32 s46, s59, 7\ns_add_u32 s46, s46, 0x%x" % WS_M2)
        self.out_base(46)
        a("s_waitcnt lgkmcnt(0)")
        a("L_ob_s:")
        self.srd(36, 20, 4608 * 1152)
        self.xy(99)
        a("s_mul_i32 s45, s97, 73728")
        a("s_cmp_lg_u32 s3, 0\ns_cbranch_scc1 L_ob_1")
        a("s_call_b64 s[50:51], L_finish")
        a("s_branch L_ob_p")
        a("L_ob_1:")
        a("s_cmp_eq_u32 s3, 3\ns_cbranch_scc1 L_ob_x")
        a("s_cmp_lg_u32 s58, 1\ns_cbranch_scc1 L_ob_g")
        a("s_mov_b64 vcc, 1\ns_call_b64 s[50:51], L_wi")
        a("s_branch L_ob_g")
        a("L_ob_x:")
        a("s_mov_b32 s52, s101\ns_cmp_eq_u32 s58, 0\ns_cselect_b32 s53, 0, %d\ns_cmp_eq_u32 s58, 1\ns_cselect_b32 s49, 1, 0" % TSTR)
        a("s_call_b64 s[50:51], L_box")
        a("L_ob_g:")
        self.lds_wait(L_FLAG, 7, 1)
        a("L_ob_p:")
        a("s_mul_i32 s45, s97, 73728\ns_mov_b32 s48, 4")
        a("s_cmp_eq_u32 s58, 3\ns_cbranch_scc1 L_ob_li")
        a("s_mov_b32 s48, 8")
        a("s_cmp_ge_u32 s63, 2\ns_cbranch_scc1 L_ob_2")
        a("s_mul_i32 s52, s59, 6144\ns_mul_i32 s53, s63, 3072\ns_add_u32 s52, s52, s53\ns_add_u32 s52, s52, 0x%x" % WS_M1)
        self.poll_begin("L_op_poll")
        a("buffer_load_dwordx2 v[12:13], v51, s[28:31], s52 offen offset:256 sc1")
        a("buffer_load_dwordx2 v[14:15], v51, s[28:31], s52 offen offset:%d sc1" % (256 + 1536))
        a("buffer_load_dwordx4 v[16:19], v53, s[28:31], s52 offen sc1")
        a("buffer_load_dwordx4 v[20:23], v53, s[28:31], s52 offen offset:1536 sc1")
        self.poll_end("L_op_poll", range(12, 24), 24)
        self.stamp(5)
        a("v_max_f32 v24, v12, v14")
        a("v_mov_b32 v25, v24\ns_nop 1\nv_permlane16_swap_b32 v24, v25\nv_max_f32 v24, v24, v25")
        a("v_mov_b32 v25, v24\ns_nop 1\nv_permlane32_swap_b32 v24, v25\nv_max_f32 v24, v24, v25")
        a("v_sub_f32 v12, v12, v24\nv_sub_f32 v14, v14, v24\nv_exp_f32 v12, v12\nv_exp_f32 v14, v14\ns_nop 0")
        a("v_mul_f32 v13, v12, v13\nv_fmac_f32 v13, v14, v15")
        for r in range(4):
            a("v_mul_f32 v%d, v12, v%d" % (16 + r, 16 + r))
        a("v_mov_b32 v25, v13")
        for r in range(4):
            a("v_fmac_f32 v%d, v14, v%d" % (16 + r, 20 + r))
        a("v_permlane16_swap_b32 v13, v25\nv_add_f32 v13, v13, v25")
        a("v_permlane32_swap_b32 v16, v18\nv_mov_b32 v25, v13\nv_permlane32_swap_b32 v17, v19")
        a("v_add_f32 v16, v16, v18\nv_add_f32 v17, v17, v19")
        a("v_permlane32_swap_b32 v13, v25\nv_add_f32 v13, v13, v25")
        a("v_permlane16_swap_b32 v16, v17\nv_rcp_f32 v13, v13\nv_add_f32 v16, v16, v17")
        a("v_mul_f32 v16, v16, v13\nv_cvt_pk_bf16_f32 v16, v16, v16")
        a("ds_write_b16 v55, v16 offset:%d" % L_OPD)
        a("s_waitcnt lgkmcnt(0)")
        a("L_ob_2:")
        a("L_mmo:")
        self.mm("o")
        self.stamp(6)
        a("s_lshl_b32 s46, s59, 5\ns_add_u32 s46, s46, 0x%x\ns_cmp_eq_u32 s3, 1\ns_cselect_b64 exec, 3, 0" % WS_MU)
        a("buffer_store_dwordx4 v[20:23], v50, s[28:31], s46 offen sc1")
        a("s_mov_b64 exec, -1")
        a("s_cmp_eq_u32 s58, 0\ns_cbranch_scc1 L_ob_end")
        a("s_cmp_lt_u32 s63, 2\ns_cbranch_scc1 L_ob_3")
        a("L_ob_li:")
        a("s_mov_b64 vcc, 0\ns_call_b64 s[50:51], L_wi")
        a("L_ob_3:")
        a("s_call_b64 s[50:51], L_wf")
        self.stamp(12)
        a("s_lshl_b32 s46, s97, 7\ns_add_u32 s46, s46, 0x%x" % WS_M4)
        self.out_base(46)
        a("s_mul_i32 s52, s3, %d\ns_add_u32 s52, s52, s101" % TSTR)
        a("s_mul_i32 s41, s98, 1152\ns_add_u32 s41, s41, 0x%x" % WS_ST)
        a("s_mov_b32 s42, 0x00ff00ff\ns_mov_b32 s43, 0x00ff00ff\ns_mov_b32 s46, -1\ns_mov_b32 s47, 15")
        a("s_mov_b32 s48, 0x%x\ns_mov_b32 s49, 0x%x" % (f32(0.044715), f32(-2.0 * math.sqrt(2.0 / math.pi) * LOG2E)))
        a("s_mov_b32 s44, 0xaaaaaaaa\ns_mov_b32 s45, 0xaaaaaaaa")
        a("v_lshrrev_b32 v4, 2, v0\nv_lshlrev_b32 v4, 7, v4\nv_and_b32 v5, 3, v0\nv_lshl_add_u32 v4, v5, 3, v4")
        for r in (12, 13, G + 8, G + 9, G + 10, G + 11):
            a("v_mov_b32 v%d, 0" % r)
        a("s_mov_b64 exec, s[46:47]")
        self.poll_begin("L_s_poll")
        a("buffer_load_dwordx2 v[12:13], v4, s[28:31], s41 offen sc1")
        self.poll_end("L_s_poll", [12, 13], 14)
        a("s_mov_b64 exec, -1")
        def b_loads():
            a("buffer_load_dwordx4 v[%d:%d], v50, s[28:31], s52 offen sc1" % (G, G + 3))
            a("buffer_load_dwordx4 v[%d:%d], v50, s[28:31], s52 offen offset:1024 sc1" % (G + 4, G + 7))
            a("s_mov_b64 exec, 0xffff")
            a("buffer_load_dwordx4 v[%d:%d], v50, s[28:31], s52 offen offset:2048 sc1" % (G + 8, G + 11))
            a("s_mov_b64 exec, -1")
        b_loads()
        a("v_permlane32_swap_b32 v12, v13\nv_add_f32 v12, v12, v13\nv_mov_b32 v13, v12\ns_nop 1\nv_permlane16_swap_b32 v12, v13\nv_add_f32 v12, v12, v13")
        self.row_reduce("v_add_f32", [12])
        a("v_mov_b32 v14, 0x%x\nv_fmac_f32 v14, 0x%x, v12\nv_rsq_f32 v14, v14\ns_nop 0\nv_mov_b32 v15, v14\ns_nop 1\nv_permlane32_swap_b32 v14, v15" % (f32(1e-5), f32(1.0 / 576)))
        a("v_cndmask_b32 v14, v14, v15, s[44:45]")
        a("s_mov_b32 s60, 0\ns_branch L_b_c\nL_b_poll:")
        b_loads()
        a("L_b_c:")
        for i in range(1, 3):
            a("s_waitcnt vmcnt(%d)" % (2 - i))
            a("v_pk_add_f32 v[%d:%d], v[%d:%d], v[%d:%d]" % (G, G + 1, G, G + 1, G + 4 * i, G + 4 * i + 1))
            a("v_pk_add_f32 v[%d:%d], v[%d:%d], v[%d:%d]" % (G + 2, G + 3, G + 2, G + 3, G + 4 * i + 2, G + 4 * i + 3))
        a("s_add_u32 s60, s60, 1\ns_cmp_gt_u32 s60, %d" % SPIN)
        a("v_permlane32_swap_b32 v%d, v%d\nv_permlane32_swap_b32 v%d, v%d" % (G, G + 2, G + 1, G + 3))
        a("v_add_f32 v%d, v%d, v%d\nv_add_f32 v%d, v%d, v%d\ns_nop 1" % (G, G, G + 2, G + 1, G + 1, G + 3))
        a("v_permlane16_swap_b32 v%d, v%d\nv_add_f32 v12, v%d, v%d" % (G, G + 1, G, G + 1))
        a("v_cmp_u_f32 vcc, v12, v12\nv_mul_f32 v12, v12, v14")
        a("s_cbranch_scc1 L_b_poll_x\ns_cbranch_vccnz L_b_poll\nL_b_poll_x:")
        self.stamp(13)
        a("v_mul_f32 v13, v12, v12\nv_fma_f32 v13, v13, s48, 1.0\nv_mul_f32 v15, s49, v12\nv_mul_f32 v13, v13, v15")
        a("v_exp_f32 v13, v13\nv_mul_f32_dpp v12, v12, v12 row_ror:8 row_mask:0xf bank_mask:0xf\nv_add_f32 v13, 1.0, v13\nv_rcp_f32 v13, v13\ns_mov_b64 exec, s[42:43]\nv_mul_f32 v12, v12, v13")
        a("v_cvt_pk_bf16_f32 v12, v12, v12")
        a("ds_write_b16 v54, v12 offset:%d" % L_OPD)
        a("s_mov_b64 exec, -1")
        a("s_waitcnt lgkmcnt(0)")
        self.mm("b")
        self.stamp(7)
        a("L_ob_end:")
        if self.diag:
            a("s_cmp_lg_u32 s3, 1\ns_cbranch_scc1 L_opd0")
            self.flush_stamps([5])
            a("L_opd0:")
            a("s_cmp_lg_u32 s3, 0\ns_cbranch_scc1 L_end")
            self.flush_stamps([0, 1, 2, 3, 4, 6, 7, 12, 13, 14])
        a("s_endpgm")

        a("L_a:")
        a("s_lshl_b32 s59, s62, 2\ns_add_u32 s59, s59, s3")
        self.xy(62)
        self.srd(36, 4, 2304)
        a("v_mul_u32_u24 v51, 1152, v24\nv_lshl_add_u32 v51, v18, 5, v51\nv_lshl_add_u32 v51, v19, 3, v51\nv_lshl_add_u32 v51, v2, 1, v51")
        a("s_lshl_b32 s45, s62, 7\nv_add_u32 v51, s45, v51")
        a("buffer_load_ushort v53, v51, s[36:39], 0 offen")
        a("v_lshlrev_b32 v55, 2, v24")
        a("s_lshr_b32 s98, s63, 1\ns_lshr_b32 s46, s98, 2\ns_mul_i32 s46, s46, %d\ns_and_b32 s47, s98, 3\ns_mul_i32 s47, s47, 9\ns_add_u32 s47, s47, s62\ns_lshl_b32 s47, s47, 1\ns_and_b32 s99, s63, 1\ns_add_u32 s47, s47, s99\ns_lshl_b32 s47, s47, 7\ns_add_u32 s46, s46, s47\ns_add_u32 s46, s46, 0x%x" % (36 * TSTR, WS_M3))
        self.out_base(46)
        a("s_waitcnt vmcnt(0)")
        a("v_lshlrev_b32 v53, 16, v53")
        a("s_cmp_eq_u32 s99, 0\ns_cselect_b32 s36, s16, s18\ns_cselect_b32 s37, s17, s19\ns_mov_b32 s38, %d\ns_mov_b32 s39, 0x20000" % (576 * 9216))
        a("s_cmp_lg_u32 s3, 0\ns_cbranch_scc1 L_a_1")
        a("s_call_b64 s[50:51], L_finish")
        a("s_branch L_a_2")
        a("L_a_1:")
        if self.o.get("a12", 0):
            a("s_cmp_gt_u32 s3, %d\ns_cbranch_scc1 L_a_3" % self.o.get("a12"))
            self.lds_wait(L_FLAG + 4, self.o.get("a12cnt", 4), 1, t=12)
            a("s_branch L_a_2\nL_a_3:")
        a("s_cmp_lg_u32 s3, 3\ns_cbranch_scc1 L_a_w")
        a("s_lshl_b32 s52, s62, 2\ns_add_u32 s52, s52, s63\ns_mul_i32 s52, s52, %d\ns_add_u32 s52, s52, 0x%x\ns_cmp_lt_u32 s63, 4\ns_cselect_b32 s53, 2304, 0\ns_mov_b32 s49, 0" % (TSTR, WS_M4))
        a("s_call_b64 s[50:51], L_box")
        a("L_a_w:")
        self.lds_wait(L_FLAG, 7, 1, t=12)
        a("L_a_2:")
        a("s_mul_i32 s45, s62, %d\ns_mul_i32 s46, s98, 1152\ns_add_u32 s45, s45, s46" % (64 * 9216))
        a("s_mov_b64 vcc, 0\ns_call_b64 s[50:51], L_wi")
        a("ds_read_b32 v47, v55 offset:%d" % L_MX)
        a("s_mov_b32 s40, 0xffff0000")
        a("s_mul_i32 s44, s59, %d\ns_add_u32 s44, s44, 0x%x\ns_add_u32 s45, s44, 4096\ns_add_u32 s46, s44, 8192" % (TSTR, WS_M2))
        a("s_mul_i32 s41, s98, 9\ns_add_u32 s41, s41, s62\ns_lshl_b32 s41, s41, 7\ns_lshl_b32 s47, s3, 3\ns_add_u32 s41, s41, s47\ns_add_u32 s41, s41, 0x%x" % WS_ST)
        a("s_mov_b32 s42, 0x00ff00ff\ns_mov_b32 s43, 0x00ff00ff\ns_cmp_eq_u32 s99, 0\ns_cselect_b64 s[48:49], 3, 0")
        a("v_mov_b32 v20, 0")
        a("s_waitcnt vmcnt(0) lgkmcnt(0)")
        a("v_sub_f32 v47, v53, v47")
        a("s_barrier")
        if self.o.get("loc", 1):
            a("ds_read_b32 v44, v20 offset:%d" % (L_MX + 8))
        self.stamp(12)
        self.gather_sum("L_r1_poll", G, 8, 44, between=lambda: a("s_call_b64 s[50:51], L_wr" + ("\nv_readfirstlane_b32 s96, v44\ns_nop 3\ns_cmp_lg_u32 s96, 0\ns_cselect_b64 s[52:53], 0, s[48:49]\ns_cselect_b64 s[48:49], s[48:49], 0")))
        self.stamp(5)
        a("v_add_f32 v24, v47, v%d" % G)
        a("v_cvt_pk_bf16_f32 v13, v24, v24")
        a("s_mov_b64 exec, s[42:43]\nds_write_b16 v54, v13 offset:%d\ns_mov_b64 exec, -1" % L_OPD)
        a("v_mov_b32 v46, v%d\nv_mul_f32 v24, v24, v24\nv_mov_b32 v25, v24" % G)
        a("s_waitcnt lgkmcnt(0)")
        dpp = " row_mask:0xf bank_mask:0xf"
        self.mm("a", fill=[
            "v_permlane32_swap_b32 v24, v25\nv_add_f32 v24, v24, v25\nv_mov_b32 v25, v24",
            "v_permlane16_swap_b32 v24, v25\nv_add_f32 v24, v24, v25",
            "v_add_f32_dpp v24, v24, v24 quad_perm:[2,3,0,1]" + dpp,
            "v_add_f32_dpp v24, v24, v24 row_ror:4" + dpp,
            "s_mov_b64 exec, s[48:49]\nbuffer_store_dword v24, v55, s[28:31], s41 offen\ns_mov_b64 exec, s[52:53]\nbuffer_store_dword v24, v55, s[28:31], s41 offen sc1\ns_mov_b64 exec, -1\ns_cmp_lg_u32 s96, 0",
        ])
        self.stamp(6)
        a("s_cmp_eq_u32 s3, s63\ns_cbranch_scc1 L_a_red")
        if self.diag:
            a("s_cmp_lg_u32 s3, 0\ns_cbranch_scc1 L_end")
            self.flush_stamps([0, 1, 2, 3, 4, 5, 6, 12, 14])
        a("s_endpgm")
        a("L_a_red:")
        self.srd(36, 22, 2304)
        a("s_mov_b32 s47, 0x%x" % WS_MU)
        self.poll_begin("L_mu_poll")
        a("buffer_load_dword v12, v50, s[28:31], s47 offen sc1\nbuffer_load_dword v13, v50, s[28:31], s47 offen offset:1024 sc1")
        self.poll_end("L_mu_poll", [12, 13], 14)
        a("v_add_f32 v12, v12, v13")
        self.xrow("v_add_f32", 12, 13)
        for ctrl in ("row_ror:8", "row_ror:4", "row_ror:2"):
            a("s_nop 1")
            self.dpp("v_add_f32", 12, 12, 12, ctrl)
        a("v_sub_f32 v46, v46, v12")
        a("v_cvt_pk_bf16_f32 v46, v46, v46\nv_and_b32 v46, s40, v46\nv_add_f32 v53, v53, v46")
        a("v_cvt_pk_bf16_f32 v53, v53, v53\nv_and_b32 v53, s40, v53")
        a("s_add_u32 s44, s44, 0x%x\ns_add_u32 s45, s45, 0x%x\ns_add_u32 s46, s46, 0x%x" % ((WS_M4 - WS_M2,) * 3))
        self.gather_sum("L_r2_poll", G, 9, 44)
        self.stamp(7)
        a("v_cvt_pk_bf16_f32 v%d, v%d, v%d\nv_and_b32 v%d, s40, v%d" % (G, G, G, G, G))
        a("v_add_f32 v53, v53, v%d" % G)
        a("v_cvt_pk_bf16_f32 v53, v53, v53")
        a("s_mov_b64 exec, s[42:43]")
        a("buffer_store_short v53, v51, s[36:39], 0 offen")
        a("s_cmp_lg_u32 s59, 0\ns_cbranch_scc1 L_red_end")
        a("s_mov_b64 exec, 1\nv_mov_b32 v16, s61\nv_mov_b32 v17, 0")
        a("buffer_store_dword v16, v17, s[28:31], 0 offen offset:%d sc1" % WS_EPOCH)
        a("L_red_end:")
        self.stamp(11)
        if self.diag:
            self.flush_stamps([7, 11])
            a("s_cmp_lg_u32 s3, 0\ns_cbranch_scc1 L_end")
            self.flush_stamps([0, 1, 2, 3, 4, 5, 6, 12, 14])
        a("s_endpgm")

    def gather_sum(self, name, G, n, sbase, between=None, sleep=0):
        a = self.a
        def loads():
            for i in range(n):
                a("buffer_load_dwordx4 v[%d:%d], v50, s[28:31], s%d offen offset:%d sc1" % (G + 4 * i, G + 4 * i + 3, sbase + i // 4, (i % 4) * 1024))
        if between is not None:
            loads()
            between()
            a("s_mov_b32 s60, 0\ns_branch %s_c\n%s:" % (name, name))
            if sleep:
                a("s_sleep %d" % sleep)
            loads()
            a("%s_c:" % name)
        else:
            self.poll_begin(name)
            loads()
        for i in range(1, n):
            a("s_waitcnt vmcnt(%d)" % (n - 1 - i))
            a("v_pk_add_f32 v[%d:%d], v[%d:%d], v[%d:%d]" % (G, G + 1, G, G + 1, G + 4 * i, G + 4 * i + 1))
            a("v_pk_add_f32 v[%d:%d], v[%d:%d], v[%d:%d]" % (G + 2, G + 3, G + 2, G + 3, G + 4 * i + 2, G + 4 * i + 3))
        a("s_add_u32 s60, s60, 1\ns_cmp_gt_u32 s60, %d" % SPIN)
        a("v_permlane32_swap_b32 v%d, v%d\nv_permlane32_swap_b32 v%d, v%d" % (G, G + 2, G + 1, G + 3))
        a("v_add_f32 v%d, v%d, v%d\nv_add_f32 v%d, v%d, v%d" % (G, G, G + 2, G + 1, G + 1, G + 3))
        a("s_nop 1")
        a("v_permlane16_swap_b32 v%d, v%d" % (G, G + 1))
        a("v_add_f32 v%d, v%d, v%d" % (G, G, G + 1))
        a("s_nop 1")
        self.dpp("v_add_f32", G, G, G, "row_ror:8")
        a("v_cmp_u_f32 vcc, v%d, v%d" % (G, G))
        a("s_cbranch_scc1 %s_x" % name)
        a("s_cbranch_vccnz %s\n%s_x:" % (name, name))

    def build(self):
        a = self.a
        a("s_load_dwordx16 s[4:19], s[0:1], 0\ns_load_dwordx8 s[20:27], s[0:1], 64")
        a("s_cmp_ge_u32 s2, 256\ns_cbranch_scc1 L_end")
        if self.diag:
            for k in range(15):
                a("s_mov_b64 s[%d:%d], 0" % (64 + 2 * k, 65 + 2 * k))
        self.stamp(0)
        if self.o.get("padto", 0) or self.o.get("dbgtime", 0) or self.o.get("padmin", 0):
            a("s_memrealtime s[90:91]")
        a("v_lshrrev_b32 v1, 6, v0\nv_and_b32 v0, 63, v0")
        a("v_readfirstlane_b32 s3, v1")
        a("v_mov_b32 v4, 0\nv_mov_b32 v5, 0\nv_mov_b32 v6, 0\nv_mov_b32 v7, 0")
        a("ds_write_b128 v4, v[4:7] offset:%d\nds_write_b128 v4, v[4:7] offset:%d" % (L_FLAG, L_FLAG + 16))
        if self.o.get("order", 1) == 1:
            a("s_cmp_lt_u32 s3, 4\ns_cbranch_scc1 L_service")
            self.streaming()
            a("L_service:")
            self.service()
        else:
            a("s_cmp_ge_u32 s3, 4\ns_cbranch_scc1 L_stream")
            self.service()
            self.streaming()
        a("L_end:\ns_endpgm")
        return wrap(a.text(), 256, 512, LDS_BYTES, 256, 102, accum=256)


if __name__ == "__main__":
    import argparse
    ap = argparse.ArgumentParser()
    ap.add_argument("out")
    ap.add_argument("--diag", action="store_true")
    ap.add_argument("--opt", action="append", default=[])
    args = ap.parse_args()
    opts = {}
    for o in args.opt:
        k, v = o.split("=", 1)
        try: v = int(v)
        except ValueError: pass
        opts[k] = v
    open(args.out, "w").write(Gen(diag=args.diag, nback=opts.get('nback', 5), win=opts.get('win', 8), opts=opts).build())
```
